```python
import torch

def _softmax(x, axis=-1):
    return torch.softmax(x, dim=axis)
def _gelu(x):
    return torch.nn.functional.gelu(x, approximate="tanh")
def _silu(x):
    return torch.nn.functional.silu(x)
def _sigmoid(x):
    return torch.sigmoid(x)
def _layernorm(x, axis=-1, eps=1e-5):
    m = x.mean(dim=axis, keepdim=True)
    v = x.var(dim=axis, keepdim=True, unbiased=False)
    return (x - m) / torch.sqrt(v + eps)
def _scatter_add(tgt, idx, src, axis=0):
    return tgt.clone().index_add_(axis, idx, src)
def _segment_sum(src, seg, n):
    out = torch.zeros((n,) + src.shape[1:], dtype=src.dtype)
    return out.index_add_(0, seg, src)
def _pad(x, pw):
    flat = tuple(v for pair in reversed(pw) for v in pair)
    return torch.nn.functional.pad(x, flat)

kernel_name = 'recurrent_scan__ssm_conv_h3__dense_activation_squared_relu__prompt'

def setup_inputs():

    _w = (lambda a: (lambda t: t.to(torch.bfloat16) if t.is_floating_point() else t)(torch.as_tensor(a)))
    def _A_setup():
        B, S, D = 1, 2048, 640
        ks = 4
        return {
            "q": _w((lambda *s: torch.randn(*s, dtype=torch.bfloat16) * 0.05)(B, S, D)),
            "k": _w((lambda *s: torch.randn(*s, dtype=torch.bfloat16) * 0.2)(B, S, D)),
            "v": _w((lambda *s: torch.randn(*s, dtype=torch.bfloat16) * 0.2)(B, S, D)),
            "shift_k": _w((lambda *s: torch.randn(*s, dtype=torch.bfloat16) * 0.2)(D, ks) * 0.5),
            "ssm_k": _w((lambda *s: torch.randn(*s, dtype=torch.bfloat16) * 0.2)(D, S) * (1.0 / S ** 0.5)),
            "ssm_D": _w((lambda *s: torch.randn(*s, dtype=torch.bfloat16) * 0.2)(D)),
        }
    _A_in = _A_setup()

    def _B_setup():
        B, S, D, F = 1, 2048, 640, 1536
        return {
            "x": _w((lambda *s: torch.randn(*s, dtype=torch.bfloat16) * 0.05)(B, S, D)),
            "w1": _w((lambda *s: torch.randn(*s, dtype=torch.bfloat16) * 0.1)(D, F)),
            "b1": _w((lambda *s: torch.randn(*s, dtype=torch.bfloat16) * 0.8)(F)),
            "w2": _w((lambda *s: torch.randn(*s, dtype=torch.bfloat16) * 0.1)(F, D)),
            "b2": _w((lambda *s: torch.randn(*s, dtype=torch.bfloat16) * 6.4)(D)),
        }
    _B_in = _B_setup()

    return {
        "A_q": _A_in["q"],
        "A_k": _A_in["k"],
        "A_v": _A_in["v"],
        "A_shift_k": _A_in["shift_k"],
        "A_ssm_k": _A_in["ssm_k"],
        "A_ssm_D": _A_in["ssm_D"],
        "B_x": _B_in["x"],
        "B_w1": _B_in["w1"],
        "B_b1": _B_in["b1"],
        "B_w2": _B_in["w2"],
        "B_b2": _B_in["b2"],
    }

def reference(A_q, A_k, A_v, A_shift_k, A_ssm_k, A_ssm_D, B_x, B_w1, B_b1, B_w2, B_b2):
    def _A_ref(q, k, v, shift_k, ssm_k, ssm_D):
        B, S, D = q.shape
        ks = shift_k.shape[-1]
        k_pad = _pad(k, ((0, 0), (ks - 1, 0), (0, 0)))
        k_shift = torch.zeros_like(k)
        for t in range(ks):
            k_shift = k_shift + k_pad[:, t:t + S, :] * shift_k[:, ks - 1 - t][None, None, :]
        kv = k_shift * v
        L = 2 * S
        kv_pad = _pad(kv, ((0, 0), (0, S), (0, 0)))
        kf_pad = _pad(ssm_k, ((0, 0), (0, S)))
        kv_f = (lambda x, axes=(-2,-1): torch.fft.rfft2(x.float(), dim=axes))(kv_pad[:, None, :, :], axes=(1, 2))
        kf_f = (lambda x, axes=(-2,-1): torch.fft.rfft2(x.float(), dim=axes))(kf_pad[:, None, :], axes=(1, 2))
        kf_f = (lambda x, *d: x.permute(*d))(kf_f, 1, 2, 0)
        y_f = kv_f * kf_f[None, :, :, :]
        y = (lambda x, s, axes=(-2,-1): torch.fft.irfft2(x, s=s, dim=axes).to(torch.bfloat16))(y_f, (1, L), axes=(1, 2))[:, 0, :S, :]
        y = y + kv * ssm_D[None, None, :]
        return q * y

    def _B_ref(x, w1, b1, w2, b2):
        h = torch.einsum("bsd,df->bsf", x, w1) + b1
        zero = torch.zeros_like(h)
        r = torch.where(h > zero, h, zero)
        h = r * r
        out = torch.einsum("bsf,fd->bsd", h, w2) + b2
        return out

    x = A_q
    xn = _layernorm(x, axis=-1)
    s = _A_ref(xn, A_k, A_v, A_shift_k, A_ssm_k, A_ssm_D)
    g = _silu(_B_ref(xn, B_w1, B_b1, B_w2, B_b2))
    return x + s * g
```

```python
import re

REG_RE = re.compile(r'^(-|\|)?(?:abs\()?([vas])(\d+|\[(\d+):(\d+)\])\)?\|?$')

def regs_of(tok):
    tok = tok.strip()
    if tok in ('vcc', 'vcc_lo', 'vcc_hi'): return ['vcc']
    if tok in ('exec', 'exec_lo', 'exec_hi'): return ['exec']
    if tok == 'm0': return ['m0']
    m = REG_RE.match(tok)
    if not m: return []
    cls = m.group(2)
    if m.group(4) is not None:
        return ['%s%d' % (cls, i) for i in range(int(m.group(4)), int(m.group(5)) + 1)]
    return ['%s%s' % (cls, m.group(3))]

TRANS = ('v_exp_f32', 'v_log_f32', 'v_rcp_f32', 'v_rsq_f32', 'v_sqrt_f32', 'v_sin_f32', 'v_cos_f32', 'v_rcp_iflag_f32')
SCC_WR = ('s_add_u32', 's_addc_u32', 's_sub_u32', 's_subb_u32', 's_add_i32', 's_sub_i32', 's_lshl_b32', 's_lshr_b32', 's_and_b32', 's_or_b32',
          's_xor_b32', 's_and_b64', 's_or_b64', 's_xor_b64', 's_andn2_b64', 's_lshl_b64', 's_lshr_b64', 's_min_u32', 's_max_u32', 's_ashr_i32',
          's_and_saveexec_b64', 's_or_saveexec_b64', 's_bfe_u32', 's_not_b32', 's_addk_i32', 's_lshl1_add_u32', 's_lshl2_add_u32',
          's_lshl3_add_u32', 's_lshl4_add_u32', 's_andn2_b32', 's_not_b64', 's_bcnt1_i32_b64')

class Ins:
    __slots__ = ('text', 'op', 'defs', 'uses', 'kind', 'tag', 'mods', 'opaque', 'srcc', 'is_label', 'lds_dma', 'comment')
    def __init__(self, text, tag=None, opaque=False):
        self.text = text; self.tag = tag; self.opaque = opaque; self.srcc = []; self.lds_dma = False
        t = text.split(';')[0].strip()
        self.is_label = t.endswith(':')
        self.defs = []; self.uses = []; self.kind = 'other'; self.op = ''; self.mods = ''
        if self.is_label or not t or t.startswith('.'):
            self.kind = 'label' if self.is_label else 'directive'
            return
        parts = t.split(None, 1)
        op = parts[0]; self.op = op
        rest = parts[1] if len(parts) > 1 else ''
        ops = []
        depth = 0; cur = ''
        for ch in rest:
            if ch in '[(': depth += 1
            if ch in '])': depth -= 1
            if ch == ',' and depth == 0: ops.append(cur.strip()); cur = ''
            else: cur += ch
        if cur.strip(): ops.append(cur.strip())
        if ops:
            last = ops[-1].split()
            ops[-1] = last[0]; self.mods = ' '.join(last[1:])
            if last[0] in ('offen', 'off') and op.startswith('buffer'): pass
        R = [regs_of(o) for o in ops]
        allr = [r for x in R for r in x]
        d = self.defs; u = self.uses
        mods = self.mods.split()
        if op.startswith('buffer_load') or op.startswith('global_load'):
            self.kind = 'vmem'
            if 'lds' in mods:
                self.lds_dma = True; u += allr + ['m0']
            else:
                d += R[0]; u += [r for x in R[1:] for r in x]
                if 'd16' in op: u += R[0]
        elif op.startswith('buffer_store') or op.startswith('global_store'):
            self.kind = 'vmem_st'; u += allr
        elif op.startswith('buffer_atomic') :
            self.kind = 'vmem'; u += allr
            if 'sc0' in mods: d += R[0]
        elif op.startswith('global_atomic'):
            self.kind = 'vmem'
            if 'sc0' in mods: d += R[0]; u += [r for x in R[1:] for r in x]
            else: u += allr
        elif op.startswith('buffer_inv') or op.startswith('buffer_wbl2'):
            self.kind = 'vmem_st'
        elif op.startswith('ds_'):
            if op.startswith('ds_read') or op.startswith('ds_bpermute') or op.startswith('ds_permute') or op.startswith('ds_swizzle'):
                self.kind = 'ds'; d += R[0]; u += [r for x in R[1:] for r in x]
                if 'd16' in op: u += R[0]
            else:
                self.kind = 'ds'; u += allr
        elif op.startswith('s_load') or op.startswith('s_buffer_load') or op in ('s_memtime', 's_memrealtime'):
            self.kind = 'smem'; d += R[0]; u += [r for x in R[1:] for r in x]
        elif op.startswith('s_waitcnt'): self.kind = 'wait'
        elif op == 's_nop': self.kind = 'nop'
        elif op in ('s_barrier', 's_sleep', 's_setprio', 's_endpgm', 's_branch', 's_sethalt'): self.kind = 'sctl'
        elif op.startswith('s_cbranch'):
            self.kind = 'branch'
            if 'scc' in op: u.append('scc')
            if 'vcc' in op: u.append('vcc')
            if 'exec' in op: u.append('exec')
        elif op.startswith('s_cmp') or op.startswith('s_bitcmp'):
            self.kind = 'salu'; d.append('scc'); u += allr
        elif op == 's_getpc_b64':
            self.kind = 'salu'; d += R[0]
        elif op.startswith('s_'):
            self.kind = 'salu'; d += R[0]; u += [r for x in R[1:] for r in x]
            if op in SCC_WR: d.append('scc')
            if op in ('s_cselect_b32', 's_cselect_b64', 's_addc_u32', 's_subb_u32'): u.append('scc')
            if 'saveexec' in op: d.append('exec'); u.append('exec')
            if op in ('s_addk_i32', 's_mulk_i32'): u += R[0]
        elif op.startswith('v_mfma'):
            self.kind = 'mfma32' if '32x32' in op else 'mfma16'
            d += R[0]; u += R[1] + R[2] + R[3]; self.srcc = R[3]
        elif op.startswith('v_'):
            self.kind = 'valu'
            base = op.replace('_e32', '').replace('_e64', '').replace('_dpp', '').replace('_sdwa', '')
            if base in TRANS: self.kind = 'trans'
            if base.startswith('v_dot'): self.kind = 'dot'
            if base.startswith('v_permlane'):
                self.kind = 'permlane'; d += R[0] + R[1]; u += R[0] + R[1]
            else:
                d += R[0]; u += [r for x in R[1:] for r in x]
                if base in ('v_fmac_f32', 'v_dot2c_f32_bf16', 'v_pk_fmac_f16', 'v_writelane_b32', 'v_fmac_f16') : u += R[0]
                if base.startswith('v_add_co') or base.startswith('v_sub_co'):
                    d += R[1]
                if '_dpp' in op or 'row_' in self.mods or 'quad_perm' in self.mods or 'wave_' in self.mods:
                    u += R[0]; self.mods += ' DPP'
        else:
            raise ValueError("unknown instruction: " + text)
    def is_valu(self): return self.kind in ('valu', 'trans', 'dot', 'permlane')
    def is_mfma(self): return self.kind in ('mfma16', 'mfma32')

class Stream:
    def __init__(self): self.ins = []
    def __call__(self, text, tag=None):
        for line in text.strip('\n').split('\n'):
            if line.split(';')[0].strip() == '': continue
            self.ins.append(Ins(line.strip(), tag=tag))
        return self
    def raw(self, text):
        i = Ins('; raw'); i.kind = 'raw'; i.text = text; self.ins.append(i); return self
    def wait_vm_tag(self, tag):
        i = Ins('; waitvm'); i.kind = 'waitvm'; i.tag = tag; self.ins.append(i); return self
    def wait_vm_all(self):
        i = Ins('; waitvmall'); i.kind = 'waitvmall'; self.ins.append(i); return self
    def wait_lds_all(self):
        i = Ins('; waitlds'); i.kind = 'waitlds'; self.ins.append(i); return self
    def extend(self, other):
        self.ins += other.ins if isinstance(other, Stream) else other; return self

def insert_waits(ins):
    out = []
    vm = []
    lg = []
    def emit_wait(vmn=None, lgn=None):
        parts = []
        if vmn is not None: parts.append('vmcnt(%d)' % min(vmn, 63))
        if lgn is not None: parts.append('lgkmcnt(%d)' % min(lgn, 15))
        out.append(Ins('s_waitcnt ' + ' '.join(parts)))
    for i in ins:
        if i.kind == 'raw':
            out.append(i); continue
        if i.kind == 'waitvm':
            idx = max([n for n, e in enumerate(vm) if e['tag'] == i.tag], default=-1)
            if idx >= 0:
                emit_wait(vmn=len(vm) - 1 - idx); del vm[:idx + 1]
            continue
        if i.kind == 'waitvmall':
            if vm: emit_wait(vmn=0); vm.clear()
            continue
        if i.kind == 'waitlds':
            if lg: emit_wait(lgn=0); lg.clear()
            continue
        if i.kind == 'wait':
            m = re.search(r'vmcnt\((\d+)\)', i.text)
            if m:
                n = int(m.group(1))
                if len(vm) > n: del vm[:len(vm) - n]
            m = re.search(r'lgkmcnt\((\d+)\)', i.text)
            if m:
                n = int(m.group(1))
                if n == 0: lg.clear()
                elif not any(e['smem'] for e in lg) and len(lg) > n: del lg[:len(lg) - n]
            out.append(i); continue
        touched = set(i.uses) | set(i.defs)
        vt = set(i.uses) if i.kind == 'vmem' else touched
        lt = set(i.uses) if i.kind == 'ds' else touched
        vidx = max([n for n, e in enumerate(vm) if e['defs'] & vt], default=-1)
        lidx = max([n for n, e in enumerate(lg) if e['defs'] & lt and not (e['smem'] and False)], default=-1)
        vmn = lgn = None
        if vidx >= 0: vmn = len(vm) - 1 - vidx
        if lidx >= 0:
            if any(e['smem'] for e in lg): lgn = 0
            else: lgn = len(lg) - 1 - lidx
        if vmn is not None or lgn is not None:
            emit_wait(vmn, lgn)
            if vmn is not None:
                keep = min(vmn, 63); del vm[:len(vm) - keep]
            if lgn is not None:
                keep = min(lgn, 15); del lg[:len(lg) - keep]
        out.append(i)
        if i.kind in ('vmem', 'vmem_st'):
            vm.append(dict(defs=set(i.defs), tag=i.tag))
            assert len(vm) <= 63, "too many outstanding VMEM ops at: " + i.text
        elif i.kind == 'ds':
            lg.append(dict(defs=set(i.defs), smem=False))
            if len(lg) > 15:
                pass
        elif i.kind == 'smem':
            lg.append(dict(defs=set(i.defs), smem=True))
    return out

def insert_nops(ins):
    out = []
    pos = 0
    lastw = {}
    lastc = {}
    laststore = {}
    def states(i):
        if i.kind == 'nop': return int(i.text.split()[1], 0) + 1
        if i.kind in ('label', 'directive'): return 0
        return 1
    for i in ins:
        if i.kind in ('label', 'directive'):
            out.append(i); continue
        if i.kind == 'raw':
            out.append(Ins('s_nop 7')); out.append(Ins('s_nop 7'))
            out.append(i); out.append(Ins('s_nop 7')); out.append(Ins('s_nop 7'))
            pos += 34; continue
        need = 0
        def req(ppos, n):
            nonlocal need
            need = max(need, n - (pos - ppos - 1))
        isv = i.is_valu(); ism = i.is_mfma()
        mem = i.kind in ('vmem', 'vmem_st', 'ds')
        for r in i.uses:
            w = lastw.get(r)
            if w:
                p, k, op = w
                if k in ('mfma16', 'mfma32'):
                    big = k == 'mfma32'
                    if ism:
                        if r in i.srcc:
                            same = (i.kind == k and i.defs == lastw[r][2])
                            if not same: req(p, 10 if big else 6)
                        else: req(p, 12 if big else 8)
                    elif isv or mem: req(p, 12 if big else 8)
                elif k in ('valu', 'trans', 'dot', 'permlane'):
                    if r[0] in 'va' and r[1:].isdigit():
                        if ism: req(p, 2)
                        if isv and ('DPP' in i.mods or i.kind == 'permlane'): req(p, 2)
                        if i.op.startswith('v_readfirstlane') or i.op.startswith('v_readlane'): req(p, 1)
                        if k == 'trans' and isv and i.kind != 'trans': req(p, 1)
                        if k == 'trans' and (ism or mem): req(p, 1)
                        if k == 'dot' and (isv or ism or mem):
                            if not (i.kind == 'dot' and i.op == op and r in i.defs and i.op.startswith('v_dot2c')): req(p, 3)
                    else:
                        if isv: req(p, 2)
                        if i.kind in ('vmem', 'vmem_st'): req(p, 5)
                        if i.op.startswith('v_readlane') or i.op.startswith('v_writelane'): req(p, 4)
                        if i.kind in ('salu', 'branch', 'smem'): req(p, 1)
                elif k == 'salu':
                    if r == 'm0' and i.lds_dma: req(p, 1)
        for r in i.defs:
            w = lastw.get(r)
            if w and w[1] in ('mfma16', 'mfma32'):
                big = w[1] == 'mfma32'
                if not ism: req(w[0], 12 if big else 8)
                elif not (i.kind == w[1] and i.defs == w[2]) and r not in i.srcc: req(w[0], 10 if big else 6)
            if w and w[1] == 'dot' and isv and not (i.kind == 'dot' and i.op == w[2]): req(w[0], 3)
            c = lastc.get(r)
            if c and isv: req(c[0], 7 if c[1] == 'mfma32' else 3)
            s = laststore.get(r)
            if s is not None: req(s, 2 if isv else 1)
        while need > 0:
            n = min(need, 16)
            out.append(Ins('s_nop %d' % (n - 1))); pos += n; need -= n
        out.append(i)
        for r in i.defs:
            lastw[r] = (pos, i.kind, list(i.defs) if ism else i.op)
        if ism:
            for r in i.srcc: lastc[r] = (pos, i.kind)
        if i.kind == 'vmem_st' and ('x4' in i.op or 'x3' in i.op):
            for r in i.uses:
                if r[0] in 'va': laststore[r] = pos
        pos += states(i)
    return out

def finalize(stream):
    a = insert_waits(stream.ins)
    b = insert_nops(a)
    return b

def render(ins):
    return '\n'.join((i.text if (i.is_label or i.kind in ('raw', 'directive')) else '    ' + i.text) for i in ins) + '\n'
```

```python
import sys, struct, json
from asmlib import *

NAME = "recurrent_scan__ssm_conv_h3__dense_activation_squared_relu__prompt"
S, D, F = 2048, 640, 1536
def f2h(x): return '0x%08x' % struct.unpack('<I', struct.pack('<f', x))[0]

WS_EPOCH = 0
WS_FLAG_P = 0x1000
WS_FLAG_G = 0x5000
WS_FLAG_C = 0x9000
WS_FLAG_W = 0xC000
WS_STATS = 0x10000
WS_KVT = 0x100000
WS_YT = 0x400000
WS_H = 0x800000
WS_W2T = 0x1000000
WS_TS = 0x1300000
WS_BYTES = 0x1400000
NA = 160

def v(a, n=1): return 'v%d' % a if n == 1 else 'v[%d:%d]' % (a, a + n - 1)
def a_(a, n=1): return 'a%d' % a if n == 1 else 'a[%d:%d]' % (a, a + n - 1)
def s(a, n=1): return 's%d' % a if n == 1 else 's[%d:%d]' % (a, a + n - 1)

S_ID, S_WAVE, S_TAG = 2, 4, 5
SRD_Q, SRD_K, SRD_V, SRD_W1, SRD_W2, SRD_H, SRD_OUT, SRD_WS = 8, 12, 16, 20, 24, 28, 32, 36
P_Q, P_K, P_V, P_SHK, P_SSMK, P_SSMD, P_BX, P_W1, P_B1, P_W2, P_B2, P_OUT, P_DBG, P_WS = [40 + 2 * i for i in range(14)]
S_T, S_FS, S_T64, S_CS = 68, 69, 70, 71
S_PK, S_DIS = 72, 77
S_XOFF, S_WOFF, S_XM0, S_WM0 = 73, 74, 75, 76
S_W2OFF = 78
S_SPIN = 79
S_T0, S_T1, S_T2, S_T3, S_T4, S_T5 = 80, 81, 82, 83, 84, 85
S_ONES, S_EPOCH = 86, 87
S_MASK = 88
S_DVAL = 90
S_HOFF = 92
SRD_DBG = 96
OOB = 0x80000000

def I(text, tag=None): return [Ins(l.strip(), tag=tag) for l in text.strip('\n').split('\n') if l.split(';')[0].strip()]
def waitvm(tag):
    w = Ins('; waitvm'); w.kind = 'waitvm'; w.tag = tag; return w
def waitlds():
    w = Ins('; waitlds'); w.kind = 'waitlds'; return w
def waitvmall():
    w = Ins('; waitvmall'); w.kind = 'waitvmall'; return w

def weight(i):
    if i.kind in ('vmem', 'vmem_st'):
        return 12 if ('x4' in i.op) else 4
    if i.kind in ('waitvm', 'waitlds', 'waitvmall', 'label'): return 0
    return 1

def merge(main, bg, lo=0.0, hi=1.0):
    if not bg: return list(main)
    pos = [k for k, i in enumerate(main) if i.is_mfma()]
    if not pos: pos = list(range(len(main)))
    n = len(pos)
    a, b = int(lo * n), max(int(hi * n), int(lo * n) + 1)
    slots = pos[a:b]
    tot = sum(weight(i) for i in bg) or 1
    after = {}
    cum = 0
    for i in bg:
        k = min(int(cum * len(slots) / tot), len(slots) - 1)
        after.setdefault(slots[k], []).append(i)
        cum += weight(i)
    out = []
    for k, i in enumerate(main):
        out.append(i)
        out += after.get(k, [])
    return out

class Gen:
    def __init__(self, role, o):
        self.role = role; self.o = o; self.lab = 0; self.tail = []; self.tsnames = []
    def label(self, base):
        self.lab += 1
        return 'L%s_%s%d' % (self.role, base, self.lab)
    def ts(self, name):
        if not self.o.get('ts') or len(self.tsnames) >= 64: return []
        k = len(self.tsnames); self.tsnames.append(name)
        return I(f's_memtime s[6:7]\ns_waitcnt lgkmcnt(0)\nv_writelane_b32 v19, s6, {k}')

    def flag_load(self, base, sidx_code, lane_code, vaddr, vflag):
        return I(sidx_code) + I(lane_code) + I(f"""
        v_add_u32 {v(vaddr)}, {s(S_T0)}, {v(vaddr)}
        v_lshlrev_b32 {v(vaddr)}, 6, {v(vaddr)}
        v_add_u32 {v(vaddr)}, {base}, {v(vaddr)}
        buffer_load_dword {v(vflag)}, {v(vaddr)}, {s(SRD_WS,4)}, 0 offen sc1
        """)
    def poll(self, vflag, vaddr, nm):
        L = self.label('slow' + nm); Lb = self.label('back' + nm)
        br = Ins('s_cbranch_vccnz %s' % L); br.text += '\n%s:' % Lb
        self.tail.append(f"""{L}:
    s_mov_b32 {s(S_SPIN)}, 0
{L}_l:
    s_sleep 1
    buffer_load_dword {v(vflag)}, {v(vaddr)}, {s(SRD_WS,4)}, 0 offen sc1
    s_add_u32 {s(S_SPIN)}, {s(S_SPIN)}, 1
    s_cmp_gt_u32 {s(S_SPIN)}, 0x8000
    s_cbranch_scc1 {L}_x
    s_waitcnt vmcnt(0)
    v_cmp_ne_u32 vcc, {s(S_TAG)}, {v(vflag)}
    s_nop 4
    s_cbranch_vccnz {L}_l
{L}_x:
    s_waitcnt vmcnt(0)
    s_nop 7
    s_branch {Lb}
""")
        return I('v_cmp_ne_u32 vcc, %s, %s' % (s(S_TAG), v(vflag))) + [br]
    def set_flag(self, base, idx_code, t1, t2):
        return I(idx_code) + I(f"""
        s_lshl_b32 {s(S_T0)}, {s(S_T0)}, 6
        s_add_u32 {s(S_T0)}, {s(S_T0)}, {base}
        v_mov_b32 {v(t1)}, {s(S_T0)}
        v_mov_b32 {v(t2)}, {OOB}
        v_cmp_eq_u32 vcc, 0, v0
        v_cndmask_b32 {v(t1)}, {v(t2)}, {v(t1)}, vcc
        v_mov_b32 {v(t2)}, {s(S_TAG)}
        buffer_store_dword {v(t2)}, {v(t1)}, {s(SRD_WS,4)}, 0 offen sc1
        """, tag='flag')

    def prologue(self):
        L = I(f"""
        s_load_dwordx16 s[40:55], s[0:1], 0
        s_load_dwordx8 s[56:63], s[0:1], 64
        s_load_dwordx4 s[64:67], s[0:1], 96
        v_and_b32 v1, 63, v0
        v_lshrrev_b32 v2, 6, v0
        s_and_b32 {s(S_T0)}, {s(S_ID)}, 7
        s_lshr_b32 {s(S_T1)}, {s(S_ID)}, 3
        v_readfirstlane_b32 {s(S_WAVE)}, v2
        s_lshr_b32 {s(S_T2)}, {s(S_T0)}, 1
        s_lshl_b32 {s(S_T2)}, {s(S_T2)}, 2
        s_lshr_b32 {s(S_T3)}, {s(S_T1)}, 3
        s_add_u32 {s(S_T)}, {s(S_T2)}, {s(S_T3)}
        s_and_b32 {s(S_T2)}, {s(S_T0)}, 1
        s_lshl_b32 {s(S_T2)}, {s(S_T2)}, 3
        s_and_b32 {s(S_CS)}, {s(S_T1)}, 7
        s_add_u32 {s(S_FS)}, {s(S_T2)}, {s(S_CS)}
        s_lshl_b32 {s(S_T64)}, {s(S_T0)}, 2
        s_add_u32 {s(S_T64)}, {s(S_T64)}, {s(S_T3)}
        s_mov_b32 {s(S_ONES)}, 0x3f803f80
        """)
        return L
    def srds(self, lst):
        L = []
        for srd, p, n in lst:
            L += I(f"""
            s_mov_b32 {s(srd)}, {s(p)}
            s_mov_b32 {s(srd+1)}, {s(p+1)}
            s_mov_b32 {s(srd+2)}, {n}
            s_mov_b32 {s(srd+3)}, 0x20000
            """)
        return L
    def make_tag(self):
        return I(f"""
        s_mul_i32 {s(S_TAG)}, {s(S_EPOCH)}, 0x9e3779b1
        s_add_u32 {s(S_TAG)}, {s(S_TAG)}, 0x7f4a7c15
        """)

    def p_stat_load(self, R):
        return I(f"""
        s_and_b32 {s(S_T0)}, {s(S_ID)}, 7
        s_lshl_b32 {s(S_T0)}, {s(S_T0)}, 8
        s_and_b32 {s(S_T1)}, {s(S_ID)}, -8
        s_add_u32 {s(S_T0)}, {s(S_T0)}, {s(S_T1)}
        s_lshl_b32 {s(S_T1)}, {s(S_WAVE)}, 1
        s_add_u32 {s(S_T0)}, {s(S_T0)}, {s(S_T1)}
        v_lshrrev_b32 {v(R+12)}, 5, v1
        v_add_u32 {v(R+12)}, {s(S_T0)}, {v(R+12)}
        v_and_b32 {v(R+13)}, 31, v1
        v_mul_u32_u24 {v(R+10)}, 1280, {v(R+12)}
        v_lshl_add_u32 {v(R+11)}, {v(R+13)}, 3, {v(R+10)}
        v_lshl_add_u32 {v(R+10)}, {v(R+13)}, 4, {v(R+10)}
        buffer_load_dwordx4 {v(R,4)}, {v(R+10)}, {s(SRD_Q,4)}, 0 offen
        buffer_load_dwordx4 {v(R+4,4)}, {v(R+10)}, {s(SRD_Q,4)}, 0 offen offset:512
        buffer_load_dwordx2 {v(R+8,2)}, {v(R+11)}, {s(SRD_Q,4)}, 0 offen offset:1024
        """)
    def p_stat_compute(self, R):
        A, B, T, U = R + 14, R + 15, R + 16, R + 17
        assert A % 2 == 0
        L = I(f'v_mov_b32 {v(A)}, 0\nv_mov_b32 {v(B)}, 0')
        for i in range(10):
            L += I(f'v_dot2c_f32_bf16 {v(A)}, {s(S_ONES)}, {v(R+i)}\nv_dot2c_f32_bf16 {v(B)}, {v(R+i)}, {v(R+i)}')
        for rot in (8, 4, 2, 1):
            L += I(f'v_add_f32_dpp {v(A)}, {v(A)}, {v(A)} row_ror:{rot} row_mask:0xf bank_mask:0xf')
            L += I(f'v_add_f32_dpp {v(B)}, {v(B)}, {v(B)} row_ror:{rot} row_mask:0xf bank_mask:0xf')
        L += I(f"""
        v_mov_b32 {v(T)}, {v(A)}
        v_mov_b32 {v(U)}, {v(B)}
        v_permlane16_swap_b32 {v(A)}, {v(T)}
        v_permlane16_swap_b32 {v(B)}, {v(U)}
        v_add_f32 {v(A)}, {v(A)}, {v(T)}
        v_add_f32 {v(B)}, {v(B)}, {v(U)}
        v_mul_f32 {v(A)}, {f2h(1.0/640)}, {v(A)}
        v_mul_f32 {v(B)}, {f2h(1.0/640)}, {v(B)}
        v_fma_f32 {v(B)}, -{v(A)}, {v(A)}, {v(B)}
        v_max_f32 {v(B)}, 0, {v(B)}
        v_cvt_pk_bf16_f32 {v(A)}, {v(A)}, {v(B)}
        v_and_b32 {v(B)}, 0xffff0000, {v(A)}
        v_lshlrev_b32 {v(A)}, 16, {v(A)}
        v_add_f32 {v(B)}, {f2h(1e-5)}, {v(B)}
        v_cvt_pk_bf16_f32 {v(B)}, {v(B)}, {v(B)}
        v_lshlrev_b32 {v(B)}, 16, {v(B)}
        v_sqrt_f32 {v(B)}, {v(B)}
        v_cvt_pk_bf16_f32 {v(B)}, {v(B)}, {v(B)}
        v_lshlrev_b32 {v(B)}, 16, {v(B)}
        v_lshlrev_b32 {v(T)}, 3, {v(R+12)}
        v_add_u32 {v(T)}, {WS_STATS}, {v(T)}
        v_mov_b32 {v(U)}, {OOB}
        v_cmp_eq_u32 vcc, 0, {v(R+13)}
        v_cndmask_b32 {v(T)}, {v(U)}, {v(T)}, vcc
        """)
        L += I(f'buffer_store_dwordx2 {v(A,2)}, {v(T)}, {s(SRD_WS,4)}, 0 offen sc1', tag='pstore')
        return L

    PK_K, PK_V, PK_W, PK_A, PK_T, PK_OUT = 144, 172, 188, 204, 214, 128
    PT = 143360
    def p_kv_load(self):
        K, V_, W, A = self.PK_K, self.PK_V, self.PK_W, self.PK_A
        L = I(f"""
        v_mul_u32_u24 {v(A+9)}, 6554, v0
        v_lshrrev_b32 {v(A+9)}, 16, {v(A+9)}
        v_mul_u32_u24 {v(A+8)}, 10, {v(A+9)}
        v_sub_u32 {v(A+8)}, v0, {v(A+8)}
        s_lshl_b32 {s(S_T0)}, {s(S_T64)}, 6
        s_sub_u32 {s(S_T0)}, {s(S_T0)}, 3
        s_mul_i32 {s(S_T1)}, {s(S_CS)}, 160
        v_lshlrev_b32 {v(A)}, 2, {v(A+9)}
        v_add_u32 {v(A)}, {s(S_T0)}, {v(A)}
        v_mul_i32_i24 {v(A)}, 1280, {v(A)}
        v_lshl_add_u32 {v(A+1)}, {v(A+8)}, 4, {s(S_T1)}
        v_add_u32 {v(A)}, {v(A)}, {v(A+1)}
        v_mov_b32 {v(A+1)}, {OOB}
        v_cmp_gt_u32 vcc, 160, v0
        v_cndmask_b32 {v(A)}, {v(A+1)}, {v(A)}, vcc
        """)
        for i in range(1, 7): L += I(f'v_add_u32 {v(A+i)}, {1280*i}, {v(A)}')
        for i in range(7): L += I(f'buffer_load_dwordx4 {v(K+4*i,4)}, {v(A+i)}, {s(SRD_K,4)}, 0 offen')
        for i in range(4): L += I(f'buffer_load_dwordx4 {v(V_+4*i,4)}, {v(A+3+i)}, {s(SRD_V,4)}, 0 offen')
        L += I(f"""
        s_mul_i32 {s(S_T1)}, {s(S_CS)}, 640
        v_lshl_add_u32 {v(A+7)}, {v(A+8)}, 6, {s(S_T1)}
        """)
        for i in range(4): L += I(f'global_load_dwordx4 {v(W+4*i,4)}, {v(A+7)}, {s(P_SHK,2)} offset:{16*i}')
        return L
    def p_kv_compute(self):
        K, V_, W, A, T = self.PK_K, self.PK_V, self.PK_W, self.PK_A, self.PK_T
        KU, VU, WU, AC, OUT = T, T + 14, T + 22, T + 30, self.PK_OUT
        L = []
        for dd in range(4):
            for r in range(7):
                L += I(f'v_lshlrev_b32 {v(KU+2*r)}, 16, {v(K+4*r+dd)}\nv_and_b32 {v(KU+2*r+1)}, 0xffff0000, {v(K+4*r+dd)}')
            for j in range(4):
                for h in range(2):
                    src = W + 4 * dd + 2 * h + (j >> 1)
                    L += I(f'v_and_b32 {v(WU+2*j+h)}, 0xffff0000, {v(src)}' if j & 1 else f'v_lshlrev_b32 {v(WU+2*j+h)}, 16, {v(src)}')
            for r in range(4):
                L += I(f'v_lshlrev_b32 {v(VU+2*r)}, 16, {v(V_+4*r+dd)}\nv_and_b32 {v(VU+2*r+1)}, 0xffff0000, {v(V_+4*r+dd)}')
            for t in range(4): L += I(f'v_pk_mul_f32 {v(AC+2*t,2)}, {v(KU+2*t,2)}, {v(WU+6,2)}')
            for j in (2, 1, 0):
                for t in range(4): L += I(f'v_pk_fma_f32 {v(AC+2*t,2)}, {v(KU+2*(t+3-j),2)}, {v(WU+2*j,2)}, {v(AC+2*t,2)}')
            for t in range(4): L += I(f'v_pk_mul_f32 {v(AC+2*t,2)}, {v(AC+2*t,2)}, {v(VU+2*t,2)}')
            for h in range(2):
                ch = 2 * dd + h
                L += I(f'v_cvt_pk_bf16_f32 {v(OUT+2*ch)}, {v(AC+h)}, {v(AC+2+h)}\nv_cvt_pk_bf16_f32 {v(OUT+2*ch+1)}, {v(AC+4+h)}, {v(AC+6+h)}')
        L += I(f"""
        v_and_b32 {v(T)}, 14, {v(A+8)}
        v_xor_b32 {v(T)}, {v(T)}, {v(A+9)}
        v_lshlrev_b32 {v(T)}, 3, {v(T)}
        v_lshl_add_u32 {v(T)}, {v(A+8)}, 10, {v(T)}
        v_mov_b32 {v(T+1)}, 12288
        v_cmp_gt_u32 vcc, 160, v0
        v_cndmask_b32 {v(T)}, {v(T+1)}, {v(T)}, vcc
        v_add_u32 {v(T)}, {self.PT}, {v(T)}
        """)
        for i in range(8): L += I(f'ds_write_b64 {v(T)}, {v(OUT+2*i,2)} offset:{128*i}')
        L1 = L
        L = I(f"""
        v_lshrrev_b32 {v(T)}, 3, v0
        v_and_b32 {v(T+1)}, 7, v0
        v_lshrrev_b32 {v(T+2)}, 6, v0
        v_lshlrev_b32 {v(T+4)}, 1, {v(T+1)}
        v_lshlrev_b32 {v(T+5)}, 7, {v(T)}
        v_add_u32 {v(T+5)}, {self.PT}, {v(T+5)}
        """)
        for i in range(3):
            L += I(f"""
            v_add_u32 {v(T+3)}, {4*i}, {v(T+2)}
            v_and_b32 {v(T+3)}, 14, {v(T+3)}
            v_xor_b32 {v(T+3)}, {v(T+3)}, {v(T+4)}
            v_lshl_add_u32 {v(T+3)}, {v(T+3)}, 3, {v(T+5)}
            ds_read_b128 {v(OUT+4*i,4)}, {v(T+3)} offset:{4096*i}
            """)
        L += I(f"""
        s_mul_i32 {s(S_T0)}, {s(S_CS)}, {80*4096}
        s_lshl_b32 {s(S_T1)}, {s(S_T64)}, 7
        s_add_u32 {s(S_T0)}, {s(S_T0)}, {s(S_T1)}
        s_add_u32 {s(S_T0)}, {s(S_T0)}, {WS_KVT}
        v_lshlrev_b32 {v(T+6)}, 12, {v(T)}
        v_lshl_add_u32 {v(T+6)}, {v(T+1)}, 4, {v(T+6)}
        v_add_u32 {v(T+7)}, {32*4096}, {v(T+6)}
        v_add_u32 {v(T+8)}, {64*4096}, {v(T+6)}
        v_mov_b32 {v(T+9)}, {OOB}
        v_cmp_gt_u32 vcc, 128, v0
        v_cndmask_b32 {v(T+8)}, {v(T+9)}, {v(T+8)}, vcc
        """)
        for i in range(3):
            L += I(f'buffer_store_dwordx4 {v(OUT+4*i,4)}, {v(T+6+i)}, {s(SRD_WS,4)}, {s(S_T0)} offen sc1', tag='pstore')
        return L1, L

    W2STG = 143360
    def p_w2_load(self, T):
        L = I(f"""
        s_cmp_lt_u32 {s(S_ID)}, 96
        s_cselect_b32 {s(S_DIS)}, 0, {OOB}
        s_min_u32 {s(S_T0)}, {s(S_ID)}, 95
        s_lshl_b32 {s(S_T0)}, {s(S_T0)}, 2
        s_add_u32 {s(S_T0)}, {s(S_T0)}, {s(S_WAVE)}
        s_mul_i32 {s(S_T1)}, {s(S_T0)}, 1366
        s_lshr_b32 {s(S_T1)}, {s(S_T1)}, 16
        s_mul_i32 {s(S_T2)}, {s(S_T1)}, 48
        s_sub_u32 {s(S_T2)}, {s(S_T0)}, {s(S_T2)}
        s_mul_i32 {s(S_T2)}, {s(S_T2)}, {32*1280}
        s_mul_i32 {s(S_T1)}, {s(S_T1)}, 160
        s_add_u32 {s(S_T2)}, {s(S_T2)}, {s(S_T1)}
        s_mul_i32 {s(S_W2OFF)}, {s(S_T0)}, 5120
        s_add_u32 {s(S_W2OFF)}, {s(S_W2OFF)}, {WS_W2T}
        s_mul_i32 {s(S_T3)}, {s(S_WAVE)}, 5120
        s_add_u32 {s(S_T3)}, {s(S_T3)}, {self.W2STG}
        s_mov_b32 {s(S_T1)}, 0x1999999a
        """)
        for n in range(5):
            comp = 1024 * n if n < 4 else 0
            L += I(f"""
            v_add_u32 {v(T)}, {64*n}, v1
            v_mul_hi_u32 {v(T+1)}, {v(T)}, {s(S_T1)}
            v_mul_u32_u24 {v(T+2)}, 10, {v(T+1)}
            v_sub_u32 {v(T+2)}, {v(T)}, {v(T+2)}
            v_mul_u32_u24 {v(T+1)}, 1280, {v(T+1)}
            v_lshl_add_u32 {v(T+1)}, {v(T+2)}, 4, {v(T+1)}
            v_subrev_u32 {v(T+8+n)}, {comp}, {v(T+1)}
            v_or_b32 {v(T+8+n)}, {s(S_DIS)}, {v(T+8+n)}
            """)
        L += I(f's_mov_b32 m0, {s(S_T3)}')
        for n in range(4): L += I(f'buffer_load_dwordx4 {v(T+8+n)}, {s(SRD_W2,4)}, {s(S_T2)} offen offset:{1024*n} lds', tag='w2slab')
        L += I(f's_add_u32 m0, {s(S_T3)}, 4096')
        L += I(f'buffer_load_dwordx4 {v(T+12)}, {s(SRD_W2,4)}, {s(S_T2)} offen lds', tag='w2slab')
        L += I(f"""
        v_bfe_u32 {v(T)}, v1, 5, 1
        v_lshlrev_b32 {v(T)}, 4, {v(T)}
        v_bfe_u32 {v(T+1)}, v1, 4, 1
        v_lshl_add_u32 {v(T)}, {v(T+1)}, 2, {v(T)}
        v_bfe_u32 {v(T+1)}, v1, 2, 2
        v_add_u32 {v(T)}, {v(T)}, {v(T+1)}
        v_mul_u32_u24 {v(T)}, 160, {v(T)}
        v_and_b32 {v(T+1)}, 3, v1
        v_lshl_add_u32 {v(T)}, {v(T+1)}, 3, {v(T)}
        v_add_u32 {v(T+13)}, {s(S_T3)}, {v(T)}
        v_lshlrev_b32 {v(T+14)}, 4, v1
        v_or_b32 {v(T+14)}, {s(S_DIS)}, {v(T+14)}
        """)
        return L
    def p_w2_store(self, T, R):
        L = [waitvm('w2slab')]
        for ct in range(5):
            for al in range(2): L += I(f'ds_read_b64_tr_b16 {v(R[ct]+2*al,2)}, {v(T+13)} offset:{al*1280 + ct*32}')
        for ct in range(5):
            if ct == 4:
                L += I(f's_add_u32 {s(S_W2OFF)}, {s(S_W2OFF)}, 4096')
                L += I(f'buffer_store_dwordx4 {v(R[ct],4)}, {v(T+14)}, {s(SRD_WS,4)}, {s(S_W2OFF)} offen sc1', tag='wstore')
            else:
                L += I(f'buffer_store_dwordx4 {v(R[ct],4)}, {v(T+14)}, {s(SRD_WS,4)}, {s(S_W2OFF)} offen offset:{1024*ct} sc1', tag='wstore')
        return L

    XST, WST, CSA = 0, 81920, 143360
    G_XD, G_WD, G_XA, G_XB, G_WA, G_WC = 2, 6, 9, 13, 17, 18
    G_ACC, G_XF, G_WF, G_CSF, G_CS = 20, 68, 76, 100, 112
    def g1_setup(self, T):
        XD, WD, XA, XB, WA, WC = self.G_XD, self.G_WD, self.G_XA, self.G_XB, self.G_WA, self.G_WC
        L = I(f"""
        v_lshrrev_b32 {v(T)}, 3, v1
        v_and_b32 {v(T+1)}, 7, v1
        v_lshrrev_b32 {v(T+2)}, 4, v1
        s_lshl_b32 {s(S_T0)}, {s(S_WAVE)}, 5
        v_add_u32 {v(T)}, {s(S_T0)}, {v(T)}
        v_mul_u32_u24 {v(T)}, 1280, {v(T)}
        v_xor_b32 {v(T+3)}, {v(T+1)}, {v(T+2)}
        v_add_u32 {v(T+4)}, 4, {v(T+2)}
        v_xor_b32 {v(T+4)}, {v(T+1)}, {v(T+4)}
        v_lshl_add_u32 {v(XD)}, {v(T+3)}, 4, {v(T)}
        v_lshl_add_u32 {v(T+4)}, {v(T+4)}, 4, {v(T)}
        v_add_u32 {v(XD+1)}, {10240-1024}, {v(T+4)}
        v_add_u32 {v(XD+2)}, {20480-2048}, {v(XD)}
        v_add_u32 {v(XD+3)}, {30720-3072}, {v(T+4)}
        s_mul_i32 {s(S_XOFF)}, {s(S_T)}, 163840
        s_lshl_b32 {s(S_XM0)}, {s(S_WAVE)}, 12
        s_mul_i32 {s(S_WOFF)}, {s(S_FS)}, 192
        s_mul_i32 {s(S_WM0)}, {s(S_WAVE)}, 3072
        s_add_u32 {s(S_WM0)}, {s(S_WM0)}, {self.WST}
        s_mul_i32 {s(S_T0)}, {s(S_WAVE)}, 192
        s_mov_b32 {s(S_T1)}, 0x15555556
        """)
        for i in range(3):
            L += I(f"""
            v_add_u32 {v(T)}, {s(S_T0)}, v1
            v_add_u32 {v(T)}, {64*i}, {v(T)}
            v_mul_hi_u32 {v(T+1)}, {v(T)}, {s(S_T1)}
            v_mul_u32_u24 {v(T+2)}, 12, {v(T+1)}
            v_sub_u32 {v(T+2)}, {v(T)}, {v(T+2)}
            v_mul_u32_u24 {v(T+1)}, 3072, {v(T+1)}
            v_lshl_add_u32 {v(T+1)}, {v(T+2)}, 4, {v(T+1)}
            v_subrev_u32 {v(WD+i)}, {1024*i}, {v(T+1)}
            """)
        return L
    def g1_setup2(self, T):
        XA, XB, WA, WC = self.G_XA, self.G_XB, self.G_WA, self.G_WC
        L = I(f"""
        v_and_b32 {v(T)}, 31, v1
        v_lshrrev_b32 {v(T+1)}, 5, v1
        v_bfe_u32 {v(T+2)}, v1, 1, 3
        v_lshlrev_b32 {v(T)}, 7, {v(T)}
        v_add_u32 {v(T)}, {s(S_XM0)}, {v(T)}
        """)
        for ks in range(4):
            L += I(f"""
            v_add_u32 {v(T+3)}, {2*ks}, {v(T+1)}
            v_xor_b32 {v(T+3)}, {v(T+3)}, {v(T+2)}
            v_lshl_add_u32 {v(XA+ks)}, {v(T+3)}, 4, {v(T)}
            v_add_u32 {v(XB+ks)}, 65536, {v(XA+ks)}
            """)
        L += I(f"""
        v_lshrrev_b32 {v(T)}, 5, v1
        v_lshlrev_b32 {v(T)}, 3, {v(T)}
        v_bfe_u32 {v(T+1)}, v1, 2, 2
        v_add_u32 {v(T)}, {v(T)}, {v(T+1)}
        v_mul_u32_u24 {v(T)}, 192, {v(T)}
        v_bfe_u32 {v(T+1)}, v1, 4, 1
        v_lshl_add_u32 {v(T)}, {v(T+1)}, 5, {v(T)}
        v_and_b32 {v(T+1)}, 3, v1
        v_lshl_add_u32 {v(T)}, {v(T+1)}, 3, {v(T)}
        v_add_u32 {v(WA)}, {self.WST}, {v(T)}
        s_mul_i32 {s(S_T0)}, {s(S_WAVE)}, 3072
        v_add_u32 {v(WC)}, {s(S_T0)}, {v(WA)}
        """)
        return L
    def g1_dma(self, c):
        XD, WD = self.G_XD, self.G_WD
        stg = c % 5
        L = [f's_add_u32 m0, {s(S_XM0)}, {self.XST + stg*16384}']
        for i in range(4): L.append(f'buffer_load_dwordx4 {v(XD+i)}, {s(SRD_Q,4)}, {s(S_XOFF)} offen offset:{1024*i} lds')
        L.append(f's_add_u32 {s(S_XOFF)}, {s(S_XOFF)}, 128')
        L.append(f's_add_u32 m0, {s(S_WM0)}, {stg*12288}')
        for i in range(3): L.append(f'buffer_load_dwordx4 {v(WD+i)}, {s(SRD_W1,4)}, {s(S_WOFF)} offen offset:{1024*i} lds')
        L.append(f's_add_u32 {s(S_WOFF)}, {s(S_WOFF)}, {64*3072}')
        return [Ins(t, tag='g1c%d' % c) for t in L]
    def g1_reads(self, n):
        c, ks = n >> 2, n & 3
        stg = c % 5; b = n & 1
        XF, WF = self.G_XF + 4 * b, self.G_WF + 12 * b
        L = [f'ds_read_b128 {v(XF,4)}, {v(self.G_XA+ks)} offset:{stg*16384}' if stg < 4 else f'ds_read_b128 {v(XF,4)}, {v(self.G_XB+ks)}']
        for ft in range(3):
            for al in range(2):
                L.append(f'ds_read_b64_tr_b16 {v(WF+4*ft+2*al,2)}, {v(self.G_WA)} offset:{stg*12288 + (16*ks+4*al)*192 + ft*64}')
        return [Ins(t) for t in L]
    def g1_cs_reads(self, c):
        stg = c % 5
        return [Ins(f'ds_read_b64_tr_b16 {v(self.G_CSF+4*ft+2*al,2)}, {v(self.G_WC)} offset:{stg*12288 + (4*al)*192 + ft*64}') for ft in range(3) for al in range(2)]
    def g1_cs_dots(self):
        return [Ins(f'v_dot2c_f32_bf16 {v(self.G_CS+ft)}, {s(S_ONES)}, {v(self.G_CSF+4*ft+i)}') for i in range(4) for ft in range(3)]
    def g1_init(self):
        L = []
        for i in range(48): L += I(f'v_mov_b32 {v(self.G_ACC+i)}, 0')
        for i in range(3): L += I(f'v_mov_b32 {v(self.G_CS+i)}, 0')
        return L
    def g1_main(self, bg):
        ACC = self.G_ACC
        out = [waitvm('g1c0'), waitlds()] + I('s_barrier') + self.g1_reads(0)
        for c in range(10):
            main = []
            for ks in range(4):
                n = 4 * c + ks
                b = n & 1
                M = [Ins(f'v_mfma_f32_32x32x16_bf16 {v(ACC+16*ft,16)}, {v(self.G_WF+12*b+4*ft,4)}, {v(self.G_XF+4*b,4)}, {v(ACC+16*ft,16)}') for ft in range(3)]
                pre = []; R = []
                if n + 1 < 40:
                    if ks == 3: pre = [waitvm('g1c%d' % (c + 1)), waitlds()] + I('s_barrier')
                    R = self.g1_reads(n + 1)
                X = []
                if ks == 0: X = self.g1_cs_reads(c)
                if ks == 1: X = self.g1_cs_dots()[:6]
                if ks == 2: X = self.g1_cs_dots()[6:]
                main += [M[0]] + pre + R[:4] + [M[1]] + R[4:] + X[:3] + [M[2]] + X[3:]
            B = list(bg.get(c, []))
            if c in (0, 1, 2, 4, 6, 8): out += self.ts('g1 c%d' % c)
            out += merge(main, B, 0.0, 0.8)
        return out
    def g1_epilogue(self, bg):
        ACC = self.G_ACC
        ST_, B1, AX, BX, RS, AD = 116, 118, 76, 88, 92, 94
        CS = self.G_CS
        L = I(f"""
        v_and_b32 {v(AD)}, 31, v1
        v_lshlrev_b32 {v(AD)}, 2, {v(AD)}
        v_add_u32 {v(AD)}, {self.CSA}, {v(AD)}
        s_mul_i32 {s(S_T0)}, {s(S_WAVE)}, 384
        v_add_u32 {v(AD+1)}, {s(S_T0)}, {v(AD)}
        """)
        for ft in range(3): L += I(f'v_mov_b32 {v(100+ft)}, {v(CS+ft)}')
        for ft in range(3): L += I(f'v_permlane32_swap_b32 {v(CS+ft)}, {v(100+ft)}')
        for ft in range(3): L += I(f'v_add_f32 {v(CS+ft)}, {v(CS+ft)}, {v(100+ft)}')
        for ft in range(3): L += I(f'ds_write_b32 {v(AD+1)}, {v(CS+ft)} offset:{128*ft}')
        L += [waitlds()] + I('s_barrier') + self.ts('ep: barrier')
        for w in range(4):
            for ft in range(3): L += I(f'ds_read_b32 {v(100+3*w+ft)}, {v(AD)} offset:{384*w + 128*ft}')
        L += I(f"""
        v_cmp_gt_u32 vcc, 32, v1
        v_rcp_f32 {v(RS)}, {v(ST_+1)}
        v_xor_b32 {v(BX)}, 0x80000000, {v(ST_)}
        v_lshrrev_b32 {v(BX+1)}, 16, {v(BX)}
        v_or_b32 {v(BX)}, {v(BX)}, {v(BX+1)}
        v_lshrrev_b32 {v(BX+1)}, 16, {v(ST_+1)}
        v_mov_b32 {v(BX+2)}, 0
        v_mov_b32 {v(BX+3)}, 0
        """)
        for ft in range(3):
            a = AX + 4 * ft; cs = CS + ft
            L += I(f"""
            v_add_f32 {v(cs)}, {v(100+ft)}, {v(103+ft)}
            v_add_f32 {v(a)}, {v(106+ft)}, {v(109+ft)}
            v_add_f32 {v(cs)}, {v(cs)}, {v(a)}
            v_cvt_pk_bf16_f32 {v(a)}, {v(cs)}, {v(cs)}
            v_lshlrev_b32 {v(a+1)}, 16, {v(a)}
            v_sub_f32 {v(a+1)}, {v(cs)}, {v(a+1)}
            v_cvt_pk_bf16_f32 {v(a)}, {v(cs)}, {v(a+1)}
            v_cndmask_b32 {v(a)}, 0, {v(a)}, vcc
            v_cndmask_b32 {v(a+1)}, 0, {v(B1+ft)}, vcc
            v_mov_b32 {v(a+2)}, 0
            v_mov_b32 {v(a+3)}, 0
            v_mfma_f32_32x32x16_bf16 {v(ACC+16*ft,16)}, {v(a,4)}, {v(BX,4)}, {v(ACC+16*ft,16)}
            """)
        L += I(f"""
        s_lshl_b32 {s(S_T0)}, {s(S_T)}, 3
        s_lshl_b32 {s(S_T1)}, {s(S_WAVE)}, 1
        s_add_u32 {s(S_T0)}, {s(S_T0)}, {s(S_T1)}
        s_mul_i32 {s(S_T0)}, {s(S_T0)}, {48*1024}
        s_mul_i32 {s(S_T1)}, {s(S_FS)}, 3072
        s_add_u32 {s(S_T0)}, {s(S_T0)}, {s(S_T1)}
        s_add_u32 {s(S_T4)}, {s(S_T0)}, {WS_H}
        v_bfe_u32 {v(AD)}, v1, 4, 1
        v_mul_u32_u24 {v(AD)}, {48*1024}, {v(AD)}
        v_lshrrev_b32 {v(AD+1)}, 5, v1
        v_lshl_add_u32 {v(AD)}, {v(AD+1)}, 8, {v(AD)}
        v_and_b32 {v(AD+1)}, 15, v1
        v_lshl_add_u32 {v(AD)}, {v(AD+1)}, 4, {v(AD)}
        """)
        E = []
        for ft in range(3):
            A = ACC + 16 * ft
            for cc in range(2):
                for p in range(4 * cc, 4 * cc + 4):
                    r = A + 2 * p
                    E += I(f"""
                    v_max_f32 {v(r)}, 0, {v(r)}
                    v_max_f32 {v(r+1)}, 0, {v(r+1)}
                    v_pk_mul_f32 {v(r,2)}, {v(r,2)}, {v(RS,2)} op_sel_hi:[1,0]
                    v_pk_mul_f32 {v(r,2)}, {v(r,2)}, {v(r,2)}
                    """)
                for d in range(4):
                    r = A + 8 * cc + 2 * d
                    E += I(f'v_cvt_pk_bf16_f32 {v(A+8*cc+d)}, {v(r)}, {v(r+1)}')
                E += I(f'buffer_store_dwordx4 {v(A+8*cc,4)}, {v(AD)}, {s(SRD_WS,4)}, {s(S_T4)} offen offset:{1024*ft + 512*cc} sc1', tag='hstore')
        return L + self.ts('ep: xmfma') + merge(E, bg)

    def w2_setup(self, vaddr):
        return I(f"""
        s_mul_i32 {s(S_W2OFF)}, {s(S_CS)}, {48*5120}
        s_mul_i32 {s(S_T0)}, {s(S_WAVE)}, {12*5120}
        s_add_u32 {s(S_W2OFF)}, {s(S_W2OFF)}, {s(S_T0)}
        s_add_u32 {s(S_W2OFF)}, {s(S_W2OFF)}, {WS_W2T}
        v_lshlrev_b32 {v(vaddr)}, 4, v1
        """)
    def w2_load(self, n, vaddr):
        L = I(f'buffer_load_dwordx4 {a_(4*n,4)}, {v(vaddr)}, {s(SRD_WS,4)}, {s(S_W2OFF)} offen offset:{1024*(n%4)} sc1', tag='w2')
        if n % 4 == 3: L += I(f's_add_u32 {s(S_W2OFF)}, {s(S_W2OFF)}, 4096')
        return L

    CWS = 21248
    C_S0, C_S1, C_S2 = 208, 224, 240
    C_ACC, C_XF, C_HF, C_HD, C_XB, C_HB = 20, 52, 116, 132, 136, 137
    def c_hload(self):
        A = 200
        L = I(f"""
        s_lshl_b32 {s(S_T0)}, {s(S_ID)}, 2
        s_add_u32 {s(S_T0)}, {s(S_T0)}, {s(S_WAVE)}
        s_lshl_b32 {s(S_T1)}, {s(S_T0)}, 1
        s_and_b32 {s(S_T1)}, {s(S_T1)}, -4
        s_load_dword {s(S_DVAL)}, {s(P_SSMD,2)}, {s(S_T1)}
        s_lshl_b32 {s(S_T0)}, {s(S_T0)}, 12
        v_lshlrev_b32 {v(A)}, 4, v1
        v_add_u32 {v(A)}, {s(S_T0)}, {v(A)}
        v_add_u32 {v(A+1)}, 1020, {v(A)}
        v_add_u32 {v(A+2)}, 1016, {v(A)}
        v_add_u32 {v(A+3)}, -4, {v(A)}
        v_add_u32 {v(A+4)}, -8, {v(A)}
        v_max_i32 {v(A+3)}, 0, {v(A+3)}
        v_max_i32 {v(A+4)}, 0, {v(A+4)}
        """)
        for i in range(4):
            L += I(f'buffer_load_dwordx4 {v(self.C_S0+4*i,4)}, {v(A)}, {s(SRD_H,4)}, 0 offen offset:{1024*i}')
            if i == 0:
                L += I(f'buffer_load_dwordx4 {v(self.C_S1,4)}, {v(A+3)}, {s(SRD_H,4)}, 0 offen')
                L += I(f'buffer_load_dwordx4 {v(self.C_S2,4)}, {v(A+4)}, {s(SRD_H,4)}, 0 offen')
            else:
                L += I(f'buffer_load_dwordx4 {v(self.C_S1+4*i,4)}, {v(A+1)}, {s(SRD_H,4)}, 0 offen offset:{1024*(i-1)}')
                L += I(f'buffer_load_dwordx4 {v(self.C_S2+4*i,4)}, {v(A+2)}, {s(SRD_H,4)}, 0 offen offset:{1024*(i-1)}')
        return L
    def c_prep_regs(self):
        S0, S1, S2 = self.C_S0, self.C_S1, self.C_S2
        M = s(S_MASK, 2)
        L = I(f"""
        v_cmp_eq_u32 {M}, 0, v1
        v_cndmask_b32 {v(S1+3)}, {v(S1+3)}, {v(S0+2)}, {M}
        v_cndmask_b32 {v(S1+2)}, {v(S1+2)}, {v(S0+1)}, {M}
        v_cndmask_b32 {v(S1+1)}, {v(S1+1)}, {v(S0+0)}, {M}
        v_cndmask_b32 {v(S1+0)}, {v(S1+0)}, 0, {M}
        v_cndmask_b32 {v(S2+3)}, {v(S2+3)}, {v(S0+1)}, {M}
        v_cndmask_b32 {v(S2+2)}, {v(S2+2)}, {v(S0+0)}, {M}
        v_cndmask_b32 {v(S2+1)}, {v(S2+1)}, 0, {M}
        v_cndmask_b32 {v(S2+0)}, {v(S2+0)}, 0, {M}
        """)
        for k in range(16): L += I(f'v_alignbit_b32 {v(160+k)}, {v(S0+k)}, {v(S1+k)}, 16')
        for k in range(16): L += I(f'v_alignbit_b32 {v(S2+k)}, {v(S1+k)}, {v(S2+k)}, 16')
        L += I(f"""
        s_mul_i32 {s(S_T0)}, {s(S_WAVE)}, {self.CWS}
        v_lshlrev_b32 v176, 4, v1
        v_add_u32 v176, {s(S_T0)}, v176
        v_bfe_u32 v177, v1, 1, 2
        v_mul_u32_u24 v177, 4160, v177
        v_and_b32 v178, 1, v1
        v_lshl_add_u32 v177, v178, 4, v177
        v_add_u32 v177, {s(S_T0)}, v177
        v_min_u32 v179, 29, v1
        v_lshlrev_b32 v179, 4, v179
        s_add_u32 {s(S_T0)}, {s(S_T0)}, 16640
        v_add_u32 v179, {s(S_T0)}, v179
        v_mov_b32 v180, 0
        v_mov_b32 v181, 0
        v_mov_b32 v182, 0
        v_mov_b32 v183, 0
        """)
        XB, HB, HD = self.C_XB, self.C_HB, self.C_HD
        L += I(f"""
        v_and_b32 v184, 15, v1
        v_lshrrev_b32 v185, 4, v1
        v_lshlrev_b32 {v(XB)}, 5, v184
        v_lshlrev_b32 v186, 4, v185
        v_sub_u32 {v(XB)}, {v(XB)}, v186
        v_add_u32 {v(XB)}, 48, {v(XB)}
        v_add_u32 {v(XB)}, {s(S_T0)}, {v(XB)}
        v_bfe_u32 v187, v1, 2, 2
        v_mul_u32_u24 {v(HB)}, 4160, v187
        v_add_u32 {v(HB)}, {v(HB)}, v186
        v_and_b32 v187, 3, v1
        v_lshl_add_u32 {v(HB)}, v187, 3, {v(HB)}
        s_sub_u32 {s(S_T0)}, {s(S_T0)}, {16640 - 8}
        v_add_u32 {v(HB)}, {s(S_T0)}, {v(HB)}
        s_and_b32 {s(S_T1)}, {s(S_WAVE)}, 1
        s_lshl_b32 {s(S_T1)}, {s(S_T1)}, 4
        s_lshr_b32 {s(S_DVAL)}, {s(S_DVAL)}, {s(S_T1)}
        s_and_b32 {s(S_DVAL)}, {s(S_DVAL)}, 0xffff
        v_lshrrev_b32 v186, 3, v184
        v_add_u32 v186, v186, v185
        v_and_b32 v187, 1, v184
        v_lshlrev_b32 v187, 4, v187
        v_lshlrev_b32 v187, v187, {s(S_DVAL)}
        v_bfe_u32 v188, v184, 1, 2
        v_mov_b32 v189, 99
        v_cmp_eq_u32 vcc, 1, v186
        v_cndmask_b32 v188, v189, v188, vcc
        """)
        for w in range(4): L += I(f'v_cmp_eq_u32 vcc, {w}, v188\nv_cndmask_b32 {v(HD+w)}, 0, v187, vcc')
        return L
    def c_write_copies(self):
        S0, S1, S2 = self.C_S0, self.C_S1, self.C_S2
        L = I('ds_write_b128 v177, v[180:183]\nds_write_b128 v179, v[180:183]')
        for i in range(4):
            L += I(f'ds_write_b128 v176, {v(S0+4*i,4)} offset:{32 + 1024*i}')
            L += I(f'ds_write_b128 v176, {v(160+4*i,4)} offset:{32 + 4160 + 1024*i}')
            L += I(f'ds_write_b128 v176, {v(S1+4*i,4)} offset:{32 + 2*4160 + 1024*i}')
            L += I(f'ds_write_b128 v176, {v(S2+4*i,4)} offset:{32 + 3*4160 + 1024*i}')
        return L
    C_XL = 140
    def c_xload(self):
        L = I(f"""
        s_lshl_b32 {s(S_T0)}, {s(S_ID)}, 2
        s_add_u32 {s(S_T0)}, {s(S_T0)}, {s(S_WAVE)}
        s_lshl_b32 {s(S_T0)}, {s(S_T0)}, 12
        s_add_u32 {s(S_T0)}, {s(S_T0)}, {WS_KVT}
        v_lshlrev_b32 v138, 4, v1
        """)
        for i in range(4): L += I(f'buffer_load_dwordx4 {v(self.C_XL+4*i,4)}, v138, {s(SRD_WS,4)}, {s(S_T0)} offen offset:{1024*i} sc1')
        return L
    def c_xwrite(self):
        return [Ins(f'ds_write_b128 v176, {v(self.C_XL+4*i,4)} offset:{16640 + 480 + 1024*i}') for i in range(4)]
    def c_xread(self, q, b):
        return Ins(f'ds_read_b128 {v(self.C_XF + 32*(q&1) + 4*b, 4)}, {v(self.C_XB)} offset:{512*b + 64*(7-q)}')
    def c_hread(self, idx):
        q, a = idx // 8, idx % 8
        r = self.C_HF + 4 * (idx % 4)
        return [Ins(f'ds_read_b64_tr_b16 {v(r+2*al,2)}, {v(self.C_HB)} offset:{512*a + 64*q + 8*(1-al)}') for al in range(2)]
    def c_main(self, bg):
        ACC = self.C_ACC
        out = [self.c_xread(0, b) for b in range(8)]
        for idx in range(3): out += self.c_hread(idx)
        for b in range(8): out += I(f'v_mfma_f32_16x16x32_bf16 {v(ACC+4*b,4)}, {v(self.C_HD,4)}, {v(self.C_XF+4*b,4)}, 0')
        for q in range(8):
            main = []
            for a in range(8):
                idx = 8 * q + a
                hr = self.C_HF + 4 * (idx % 4)
                first = True
                for b in range(7 - a, -1, -1):
                    main.append(Ins(f'v_mfma_f32_16x16x32_bf16 {v(ACC+4*(a+b),4)}, {v(hr,4)}, {v(self.C_XF+32*(q&1)+4*b,4)}, {v(ACC+4*(a+b),4)}'))
                    if first and idx + 3 < 64: main += self.c_hread(idx + 3)
                    first = False
            xr = [self.c_xread(q + 1, b) for b in range(8)] if q < 7 else []
            if q in (0, 2, 4, 6, 7): out += self.ts('conv q%d' % q)
            m1 = merge(main, xr, 0.0, 0.7)
            out += merge(m1, bg.get(q, []), 0.0, 1.0)
        return out
    def c_post(self):
        ACC = self.C_ACC
        L = I(f"""
        s_lshl_b32 {s(S_T0)}, {s(S_ID)}, 2
        s_add_u32 {s(S_T0)}, {s(S_T0)}, {s(S_WAVE)}
        s_lshl_b32 {s(S_T0)}, {s(S_T0)}, 12
        s_add_u32 {s(S_T0)}, {s(S_T0)}, {WS_YT}
        v_and_b32 v52, 15, v1
        v_lshlrev_b32 v52, 5, v52
        v_bfe_u32 v53, v1, 4, 1
        v_lshl_add_u32 v52, v53, 9, v52
        v_bfe_u32 v53, v1, 5, 1
        v_lshl_add_u32 v52, v53, 4, v52
        """)
        for p in range(4):
            Q = 56 + 4 * p
            a0, a1 = ACC + 8 * p, ACC + 8 * p + 4
            L += I(f"""
            v_cvt_pk_bf16_f32 {v(Q)}, {v(a0)}, {v(a0+1)}
            v_cvt_pk_bf16_f32 {v(Q+1)}, {v(a0+2)}, {v(a0+3)}
            v_cvt_pk_bf16_f32 {v(Q+2)}, {v(a1)}, {v(a1+1)}
            v_cvt_pk_bf16_f32 {v(Q+3)}, {v(a1+2)}, {v(a1+3)}
            v_permlane16_swap_b32 {v(Q)}, {v(Q+2)}
            v_permlane16_swap_b32 {v(Q+1)}, {v(Q+3)}
            """)
            L += I(f'buffer_store_dwordx4 {v(Q,4)}, v52, {s(SRD_WS,4)}, {s(S_T0)} offen offset:{1024*p} sc1', tag='ystore')
        return L

    G2_ACC = (20, 40)
    G2_HR, G2_NR, G2_OFF = 104, 38, 11
    G2_HV = 2
    G2_RA = 5
    F_X, F_B, F_ST, F_Y = 60, 70, 80, 82
    F_PP, F_XU, F_T = 188, 104, 124
    def hreg(self, n): return self.G2_HR + 4 * ((n + self.G2_OFF) % self.G2_NR)
    def g2_setup(self):
        L = I(f"""
        v_lshlrev_b32 v2, 4, v1
        v_add_u32 v3, 4096, v2
        v_add_u32 v4, 8192, v2
        s_mul_i32 {s(S_T0)}, {s(S_WAVE)}, {12*1024}
        s_add_u32 {s(S_T0)}, {s(S_T0)}, {WS_H}
        s_lshl_b32 {s(S_T1)}, {s(S_T64)}, 2
        """)
        for sg in range(4):
            L += I(f"""
            s_add_u32 {s(S_T2)}, {s(S_WAVE)}, {1+sg}
            s_and_b32 {s(S_T2)}, {s(S_T2)}, 3
            s_add_u32 {s(S_T3)}, {s(S_T1)}, {s(S_T2)}
            s_mul_i32 {s(S_T3)}, {s(S_T3)}, {48*1024}
            s_add_u32 {s(S_HOFF+sg)}, {s(S_T3)}, {s(S_T0)}
            """)
            if sg < 3:
                L += I(f"""
                s_mul_i32 {s(S_T2)}, {s(S_T2)}, 15360
                s_add_u32 {s(S_T2)}, {s(S_T2)}, {5120*sg}
                v_add_u32 {v(self.G2_RA+sg)}, {s(S_T2)}, v2
                """)
        L += I(f's_mul_i32 {s(S_T2)}, {s(S_WAVE)}, 15360\nv_add_u32 v8, {s(S_T2)}, v2')
        return L
    def g2_hload(self, n):
        sg, kk = n // 12, n % 12
        return Ins(f'buffer_load_dwordx4 {v(self.hreg(n),4)}, {v(self.G2_HV + kk//4)}, {s(SRD_WS,4)}, {s(S_HOFF+sg)} offen offset:{1024*(kk%4)} sc1')
    def f_loads(self):
        L = I(f"""
        s_lshl_b32 {s(S_T0)}, {s(S_T64)}, 6
        s_lshl_b32 {s(S_T1)}, {s(S_WAVE)}, 4
        s_add_u32 {s(S_T0)}, {s(S_T0)}, {s(S_T1)}
        v_and_b32 v9, 15, v1
        v_add_u32 v9, {s(S_T0)}, v9
        v_lshrrev_b32 v10, 4, v1
        s_mul_i32 {s(S_T2)}, {s(S_CS)}, 160
        v_lshl_add_u32 v10, v10, 3, {s(S_T2)}
        v_mul_u32_u24 v11, 1280, v9
        v_add_u32 v11, v11, v10
        """)
        for ct in range(5): L += I(f'buffer_load_dwordx2 {v(self.F_X+2*ct,2)}, v11, {s(SRD_Q,4)}, 0 offen offset:{32*ct}')
        for ct in range(5): L += I(f'global_load_dwordx2 {v(self.F_B+2*ct,2)}, v10, {s(P_B2,2)} offset:{32*ct}')
        L += I(f"""
        v_lshlrev_b32 v12, 3, v9
        v_add_u32 v12, {WS_STATS}, v12
        buffer_load_dwordx2 {v(self.F_ST,2)}, v12, {s(SRD_WS,4)}, 0 offen sc1
        """)
        return L
    def f_yloads(self):
        L = I(f"""
        v_lshlrev_b32 v12, 11, v10
        v_lshl_add_u32 v12, v9, 1, v12
        v_add_u32 v12, {WS_YT}, v12
        """)
        for ct in range(5):
            for r in range(4):
                L += I(f's_mov_b32 {s(S_T0)}, {(16*ct + r)*4096}')
                L += I(f'buffer_load_ushort {v(self.F_Y+4*ct+r)}, v12, {s(SRD_WS,4)}, {s(S_T0)} offen sc1')
        return L
    def f_pre(self):
        XU, SU, T, PP = self.F_XU, self.F_Y, self.F_T, self.F_PP
        X, B, ST_ = self.F_X, self.F_B, self.F_ST
        L = I(f"""
        v_rcp_f32 {v(T)}, {v(ST_+1)}
        v_mul_f32 {v(T+1)}, {v(ST_)}, {v(T)}
        v_xor_b32 {v(T+1)}, 0x80000000, {v(T+1)}
        """)
        for p in range(10):
            L += I(f"""
            v_lshlrev_b32 {v(XU+2*p)}, 16, {v(X+p)}
            v_and_b32 {v(XU+2*p+1)}, 0xffff0000, {v(X+p)}
            v_lshlrev_b32 {v(SU+2*p)}, 16, {v(SU+2*p)}
            v_lshlrev_b32 {v(SU+2*p+1)}, 16, {v(SU+2*p+1)}
            v_pk_fma_f32 {v(T+2,2)}, {v(XU+2*p,2)}, {v(T,2)}, {v(T,2)} op_sel:[0,0,1] op_sel_hi:[1,0,1]
            v_pk_mul_f32 {v(SU+2*p,2)}, {v(SU+2*p,2)}, {v(T+2,2)}
            """)
        P2 = []
        for p in range(10):
            P2 += I(f"""
            v_lshlrev_b32 {v(T+4)}, 16, {v(B+p)}
            v_and_b32 {v(T+5)}, 0xffff0000, {v(B+p)}
            v_pk_add_f32 {v(PP+2*p,2)}, {v(PP+2*p,2)}, {v(PP+20+2*p,2)}
            v_pk_add_f32 {v(T+4,2)}, {v(T+4,2)}, {v(PP+40+2*p,2)}
            v_pk_add_f32 {v(PP+2*p,2)}, {v(PP+2*p,2)}, {v(T+4,2)}
            """)
        return L, P2
    def f_final(self):
        ACC = self.G2_ACC[1]; PP = self.F_PP
        XU, SU, T, X = self.F_XU, self.F_Y, self.F_T, self.F_X
        L = I(f's_mov_b32 {s(S_T0)}, {f2h(-1.4426950408889634)}')
        for ct in range(5):
            for h in range(2):
                p = 2 * ct + h
                U = T + 2 + 2 * (p & 1) + 4
                L += I(f"""
                v_pk_add_f32 {v(ACC+2*p,2)}, {v(ACC+2*p,2)}, {v(PP+2*p,2)}
                v_mul_f32 {v(U)}, {s(S_T0)}, {v(ACC+2*p)}
                v_mul_f32 {v(U+1)}, {s(S_T0)}, {v(ACC+2*p+1)}
                v_exp_f32 {v(U)}, {v(U)}
                v_exp_f32 {v(U+1)}, {v(U+1)}
                v_add_f32 {v(U)}, 1.0, {v(U)}
                v_add_f32 {v(U+1)}, 1.0, {v(U+1)}
                v_rcp_f32 {v(U)}, {v(U)}
                v_rcp_f32 {v(U+1)}, {v(U+1)}
                v_pk_mul_f32 {v(U,2)}, {v(U,2)}, {v(ACC+2*p,2)}
                v_pk_fma_f32 {v(U,2)}, {v(U,2)}, {v(SU+2*p,2)}, {v(XU+2*p,2)}
                v_cvt_pk_bf16_f32 {v(X+p)}, {v(U)}, {v(U+1)}
                """)
            L += I(f'buffer_store_dwordx2 {v(X+2*ct,2)}, v11, {s(SRD_OUT,4)}, 0 offen offset:{32*ct}')
        return L
    def g2_main(self, first_unloaded, mid):
        out = []
        nxt = first_unloaded
        pre1, pre2 = self.f_pre()
        for sg in range(4):
            ACC = self.G2_ACC[sg & 1]
            for kk in range(12):
                n = sg * 12 + kk
                M = []
                for ct in range(5):
                    c = '0' if kk == 0 else v(ACC + 4 * ct, 4)
                    M.append(Ins(f'v_mfma_f32_16x16x32_bf16 {v(ACC+4*ct,4)}, {a_(20*kk+4*ct,4)}, {v(self.hreg(n),4)}, {c}'))
                B = []
                cnt = 0
                while nxt < 48 and nxt - self.G2_NR <= n - 1 and cnt < 1:
                    B.append(self.g2_hload(nxt)); nxt += 1; cnt += 1
                B += mid.get(n, [])
                if sg >= 1 and kk == 1:
                    P = self.G2_ACC[(sg - 1) & 1]
                    B += [Ins(f'ds_write_b128 {v(self.G2_RA+sg-1)}, {v(P+4*ct,4)} offset:{1024*ct}') for ct in range(5)]
                if sg == 3 and kk == 3:
                    B += [waitlds()] + I('s_barrier')
                    for sp in range(3):
                        for ct in range(5):
                            B.append(Ins(f'ds_read_b128 {v(self.F_PP + 4*(5*sp+ct), 4)}, v8 offset:{5120*sp + 1024*ct}'))
                if sg == 3 and 4 <= kk < 8:
                    k = kk - 4; m = (len(pre2) + 3) // 4
                    B += pre2[k*m:(k+1)*m]
                if sg == 3 and 8 <= kk < 12:
                    k = kk - 8; m = (len(pre1) + 3) // 4
                    B += pre1[k*m:(k+1)*m]
                if kk == 0 or n in (1, 4): out += self.ts('g2 n%d' % n)
                out += merge(M, B)
        assert nxt == 48
        return out

TSNAMES = {}
def build_role(role, o):
    g = Gen(role, o)
    L = []
    def ts(name): return g.ts(name)
    L += ts('entry')
    L += g.prologue()
    first = [(SRD_Q, P_Q, S*D*2), (SRD_K, P_K, S*D*2), (SRD_V, P_V, S*D*2), (SRD_WS, P_WS, WS_BYTES), (SRD_W1, P_W1, D*F*2)]
    if role == 'A': first += [(SRD_W2, P_W2, D*F*2)]
    rest = [(SRD_OUT, P_OUT, S*D*2), (SRD_DBG, P_DBG, 256)] + ([(SRD_H, P_SSMK, S*D*2)] if role == 'A' else [])
    L += g.srds(first)
    L += I(f's_load_dword {s(S_EPOCH)}, {s(P_WS,2)}, {WS_EPOCH}')
    L += ts('prologue')
    L += g.g1_setup(20)
    L += g.g1_dma(0) + g.g1_dma(1)
    if role == 'A': L += g.p_w2_load(240)
    L += ts('dma0-1')
    L += g.p_stat_load(214)
    L += g.p_kv_load()
    L += ts('P loads')
    L += merge(g.srds(rest) + g.g1_setup2(20) + g.g1_init() + g.make_tag(), g.g1_dma(2) + g.g1_dma(3) + g.g1_dma(4))
    L += ts('dma2-4')
    pk1, pk2 = g.p_kv_compute()
    bg = {c: [] for c in range(10)}
    for c in range(1, 6): bg[c] += g.g1_dma(c + 4)
    bg[0] += g.p_stat_compute(214)
    if role == 'A': bg[0] += g.p_w2_store(240, [128, 132, 136, 140, 232])
    n1 = len(pk1)
    bg[1] += pk1[:n1 // 3]; bg[2] += pk1[n1 // 3: 2 * n1 // 3]; bg[3] += pk1[2 * n1 // 3:]
    bg[4] += pk2
    bg[0] += I(f"""
        v_mov_b32 v122, 1
        v_mov_b32 v123, {OOB}
        v_cmp_eq_u32 vcc, 0, v0
        v_cndmask_b32 v123, v123, 0, vcc
        buffer_atomic_add v122, v123, {s(SRD_DBG,4)}, 0 offen sc0
        s_mul_i32 {s(S_T0)}, {s(S_FS)}, 192
        v_and_b32 v121, 31, v1
        v_lshl_add_u32 v121, v121, 1, {s(S_T0)}
        global_load_ushort v118, v121, {s(P_B1,2)}
        global_load_ushort v119, v121, {s(P_B1,2)} offset:64
        global_load_ushort v120, v121, {s(P_B1,2)} offset:128
        """)
    if role == 'A':
        bg[2] += [waitvm('wstore')]
        bg[3] = g.set_flag(WS_FLAG_W, f's_mov_b32 {s(S_T0)}, {s(S_ID)}', 124, 125) + bg[3]
    bg[5] += [waitvm('pstore')]
    bg[6] = g.set_flag(WS_FLAG_P, f's_mov_b32 {s(S_T0)}, {s(S_ID)}', 124, 125) + bg[6]
    bg[4] += I(f"""
        v_cmp_eq_u32 vcc, 255, v122
        v_cmp_eq_u32 {s(S_MASK,2)}, 0, v0
        s_and_b64 vcc, vcc, {s(S_MASK,2)}
        v_mov_b32 v123, {OOB}
        v_cndmask_b32 v123, v123, 0, vcc
        v_mov_b32 v122, {s(S_TAG)}
        buffer_store_dword v122, v123, {s(SRD_WS,4)}, 0 offen sc1
        """)
    bg[5] = g.flag_load(WS_FLAG_W, f's_mul_i32 {s(S_T0)}, {s(S_CS)}, 12\ns_mul_i32 {s(S_T1)}, {s(S_WAVE)}, 3\ns_add_u32 {s(S_T0)}, {s(S_T0)}, {s(S_T1)}',
                        'v_min_u32 v126, 2, v1', 126, 127) + bg[5]
    w2l = [g.w2_load(n, 139) for n in range(60)]
    bg[6] += g.poll(127, 126, 'w2') + g.w2_setup(139)
    bg[6] += g.flag_load(WS_FLAG_P, f's_lshl_b32 {s(S_T0)}, {s(S_T)}, 7\ns_lshl_b32 {s(S_T1)}, {s(S_WAVE)}, 5\ns_add_u32 {s(S_T0)}, {s(S_T0)}, {s(S_T1)}\n'
                         f's_and_b32 {s(S_T1)}, {s(S_T0)}, 0xf8\ns_lshr_b32 {s(S_T0)}, {s(S_T0)}, 8\ns_add_u32 {s(S_T0)}, {s(S_T0)}, {s(S_T1)}',
                         'v_and_b32 v126, 3, v1\nv_lshlrev_b32 v126, 3, v126', 126, 127)
    k = 0
    if role == 'A':
        hl = g.c_hload()
        bg[6] += hl
        bg[7] += g.flag_load(WS_FLAG_P, f's_mul_i32 {s(S_T0)}, {s(S_ID)}, 3277\ns_lshr_b32 {s(S_T0)}, {s(S_T0)}, 16\ns_lshl_b32 {s(S_T0)}, {s(S_T0)}, 3',
                             'v_and_b32 v124, 3, v1\nv_lshlrev_b32 v124, 6, v124\nv_bfe_u32 v125, v1, 2, 3\nv_add_u32 v124, v124, v125', 124, 125)
        per = {7: 7, 8: 4, 9: 7}
    else:
        per = {6: 5, 7: 7, 8: 7, 9: 7}
    stat_ld = g.poll(127, 126, 'st') + I(f"""
        s_lshl_b32 {s(S_T0)}, {s(S_T)}, 7
        s_lshl_b32 {s(S_T1)}, {s(S_WAVE)}, 5
        s_add_u32 {s(S_T0)}, {s(S_T0)}, {s(S_T1)}
        v_and_b32 v126, 31, v1
        v_add_u32 v126, {s(S_T0)}, v126
        v_lshlrev_b32 v126, 3, v126
        v_add_u32 v126, {WS_STATS}, v126
        buffer_load_dwordx2 v[116:117], v126, {s(SRD_WS,4)}, 0 offen sc1
        """)
    bg[8] += stat_ld
    if role == 'A':
        bg[8] += g.poll(125, 124, 'kv') + g.c_xload()
        bg[9] += g.c_prep_regs()
    for c in sorted(per):
        for _ in range(per[c]): bg[c] += w2l[k]; k += 1
    L += g.g1_main(bg)
    L += ts('G1 main done')
    gflag = g.set_flag(WS_FLAG_G, f's_lshl_b32 {s(S_T0)}, {s(S_T)}, 4\ns_add_u32 {s(S_T0)}, {s(S_T0)}, {s(S_FS)}', 16, 17)
    hflag_idx = f's_lshr_b32 {s(S_T0)}, {s(S_T64)}, 1\ns_lshl_b32 {s(S_T0)}, {s(S_T0)}, 4\ns_lshl_b32 {s(S_T1)}, {s(S_WAVE)}, 2\ns_add_u32 {s(S_T0)}, {s(S_T0)}, {s(S_T1)}'
    if role == 'A':
        e_bg = []
        for _ in range(6): e_bg += w2l[k]; k += 1
        L += g.g1_epilogue(e_bg)
        L += ts('G1 epilogue')
        L += g.c_write_copies() + g.c_xwrite()
        L += g.g2_setup()
        L += ts('conv setup')
        cb = {q: [] for q in range(8)}
        cb[1] += [waitvm('hstore')] + I('s_barrier') + gflag
        rem = 60 - k
        qi = 0
        for j in range(rem):
            cb[j * 4 // rem] += w2l[k]; k += 1
        cb[3] += g.flag_load(WS_FLAG_G, hflag_idx, 'v_and_b32 v13, 3, v1', 13, 14)
        cb[4] += g.poll(14, 13, 'g1')
        hp = [g.g2_hload(n) for n in range(27)]
        cb[4] += hp[:5]; cb[5] += hp[5:13]; cb[6] += hp[13:21]; cb[7] += hp[21:27]
        L += g.c_main(cb)
        L += ts('conv main')
        L += g.c_post()
        L += merge([g.g2_hload(n) for n in range(27, 38)] , [])
        cflag = [waitvm('ystore')] + I('s_barrier') + g.set_flag(WS_FLAG_C, f's_mov_b32 {s(S_T0)}, {s(S_ID)}', 16, 17)
        first_unl = 38
    else:
        e_bg = []
        for _ in range(6): e_bg += w2l[k]; k += 1
        L += g.g1_epilogue(e_bg)
        L += ts('G1 epilogue')
        L += g.g2_setup()
        L += [waitvm('hstore')] + I('s_barrier') + gflag
        while k < 60: L += w2l[k]; k += 1
        L += g.flag_load(WS_FLAG_G, hflag_idx, 'v_and_b32 v13, 3, v1', 13, 14)
        L += g.poll(14, 13, 'g1')
        L += ts('G1 flags')
        L += [g.g2_hload(n) for n in range(38)]
        cflag = I('s_barrier')
        first_unl = 38
    L += ts('G2 start')
    mid = {}
    fl = g.f_loads()
    mid[1] = fl[:13]; mid[2] = fl[13:18]; mid[3] = fl[18:]
    mid[10] = cflag
    mid[26] = g.flag_load(WS_FLAG_C, f's_mul_i32 {s(S_T0)}, {s(S_CS)}, 20', 'v_min_u32 v13, 19, v1', 13, 14)
    yl = g.f_yloads()
    mid[31] = g.poll(14, 13, 'y') + yl[:9]
    for j, n in enumerate(range(32, 37)): mid[n] = yl[9 + 7*j: 9 + 7*(j+1)]
    mid[36] += yl[9 + 35:]
    L += g.g2_main(first_unl, mid)
    L += ts('G2 main done')
    L += g.f_final()
    L += ts('F done')
    if o.get('ts'):
        L += [waitvmall()] + ts('end')
        L += I(f"""
        s_lshl_b32 {s(S_T0)}, {s(S_ID)}, 10
        s_lshl_b32 {s(S_T1)}, {s(S_WAVE)}, 8
        s_add_u32 {s(S_T0)}, {s(S_T0)}, {s(S_T1)}
        s_add_u32 {s(S_T0)}, {s(S_T0)}, {WS_TS}
        v_lshlrev_b32 v2, 2, v1
        buffer_store_dword v19, v2, {s(SRD_WS,4)}, {s(S_T0)} offen
        """)
        TSNAMES[role] = g.tsnames
    L += I('s_endpgm')
    st = Stream(); st.ins = L
    return render(finalize(st)) + ''.join(g.tail)

HEADER = """; Kernarg layout (112 bytes, ptrs only): q k v shift_k ssm_k ssm_D B_x w1 b1 w2 b2 out debug ws
; @launch grid=(256,1,1) block=(256,1,1) lds=163840
.amdgcn_target "amdgcn-amd-amdhsa--gfx950"
.text
.globl {n}_kernel
.p2align 8
.type {n}_kernel,@function
{n}_kernel:
"""
FOOTER = """
.section .rodata,"a"
.p2align 6
.amdhsa_kernel {n}_kernel
  .amdhsa_next_free_vgpr 512
  .amdhsa_next_free_sgpr 102
  .amdhsa_accum_offset 256
  .amdhsa_group_segment_fixed_size 0
  .amdhsa_kernarg_size 112
  .amdhsa_user_sgpr_count 2
  .amdhsa_user_sgpr_kernarg_segment_ptr 1
  .amdhsa_system_sgpr_workgroup_id_x 1
.end_amdhsa_kernel
"""
def build(o):
    txt = HEADER.format(n=NAME)
    txt += f"""    s_cmp_ge_u32 s2, 256
    s_cbranch_scc1 L_exit
    s_cmp_ge_u32 s2, {NA}
    s_cbranch_scc1 L_roleB
"""
    txt += build_role('A', o)
    txt += "L_exit:\n    s_endpgm\n.p2align 6\nL_roleB:\n"
    txt += build_role('B', o)
    txt += FOOTER.format(n=NAME)
    return txt

if __name__ == '__main__':
    o = {k: True for k in sys.argv[2:]}
    out = sys.argv[1] if len(sys.argv) > 1 else 'k.s'
    open(out, 'w').write(build(o))
    if o.get('ts'): json.dump(TSNAMES, open(out + '.ts.json', 'w'))
    print("wrote", out)
```

```python
import sys, struct, json
from asmlib import *

NAME = "recurrent_scan__ssm_conv_h3__dense_activation_squared_relu__prompt"
S, D, F = 2048, 640, 1536
def f2h(x): return '0x%08x' % struct.unpack('<I', struct.pack('<f', x))[0]

WS_EPOCH = 0
WS_FLAG_P = 0x1000
WS_FLAG_G = 0x5000
WS_FLAG_C = 0x9000
WS_FLAG_W = 0xC000
WS_STATS = 0x10000
WS_KVT = 0x100000
WS_YT = 0x400000
WS_H = 0x800000
WS_W2T = 0x1000000
WS_TS = 0x1300000
WS_BYTES = 0x1400000
NA = 160

def v(a, n=1): return 'v%d' % a if n == 1 else 'v[%d:%d]' % (a, a + n - 1)
def a_(a, n=1): return 'a%d' % a if n == 1 else 'a[%d:%d]' % (a, a + n - 1)
def s(a, n=1): return 's%d' % a if n == 1 else 's[%d:%d]' % (a, a + n - 1)

S_ID, S_WAVE, S_TAG = 2, 4, 5
SRD_Q, SRD_K, SRD_V, SRD_W1, SRD_W2, SRD_H, SRD_OUT, SRD_WS = 8, 12, 16, 20, 24, 28, 32, 36
P_Q, P_K, P_V, P_SHK, P_SSMK, P_SSMD, P_BX, P_W1, P_B1, P_W2, P_B2, P_OUT, P_DBG, P_WS = [40 + 2 * i for i in range(14)]
S_T, S_FS, S_T64, S_CS = 68, 69, 70, 71
S_PK, S_DIS = 72, 77
S_XOFF, S_WOFF, S_XM0, S_WM0 = 73, 74, 75, 76
S_W2OFF = 78
S_SPIN = 79
S_T0, S_T1, S_T2, S_T3, S_T4, S_T5 = 80, 81, 82, 83, 84, 85
S_ONES, S_EPOCH = 86, 87
S_MASK = 88
S_DVAL = 90
S_CB = 91
S_HOFF = 92
SRD_DBG = 96
OOB = 0x80000000

def I(text, tag=None): return [Ins(l.strip(), tag=tag) for l in text.strip('\n').split('\n') if l.split(';')[0].strip()]
def waitvm(tag):
    w = Ins('; waitvm'); w.kind = 'waitvm'; w.tag = tag; return w
def waitlds():
    w = Ins('; waitlds'); w.kind = 'waitlds'; return w
def waitvmall():
    w = Ins('; waitvmall'); w.kind = 'waitvmall'; return w

def weight(i):
    if i.kind in ('vmem', 'vmem_st'):
        return 12 if ('x4' in i.op) else 4
    if i.kind in ('waitvm', 'waitlds', 'waitvmall', 'label'): return 0
    return 1

def merge(main, bg, lo=0.0, hi=1.0):
    if not bg: return list(main)
    pos = [k for k, i in enumerate(main) if i.is_mfma()]
    if not pos: pos = list(range(len(main)))
    n = len(pos)
    a, b = int(lo * n), max(int(hi * n), int(lo * n) + 1)
    slots = pos[a:b]
    tot = sum(weight(i) for i in bg) or 1
    after = {}
    cum = 0
    for i in bg:
        k = min(int(cum * len(slots) / tot), len(slots) - 1)
        after.setdefault(slots[k], []).append(i)
        cum += weight(i)
    out = []
    for k, i in enumerate(main):
        out.append(i)
        out += after.get(k, [])
    return out

def est_times(stream):
    t = 0; pipe = 0; out = []
    for i in stream:
        if i.is_mfma():
            t = max(t, pipe); out.append(t)
            pipe = t + (32 if i.kind == 'mfma32' else 16); t += 8
        elif i.kind in ('waitvm', 'waitlds', 'waitvmall', 'label'):
            out.append(t)
        else:
            out.append(t); t += 8 if i.kind == 'trans' else 4
    return out, max(t, pipe)

def merge_time(stream, vm, lo=0.0, hi=1.0):
    if not vm: return list(stream)
    groups = []; cur = []
    for i in vm:
        cur.append(i)
        if i.kind in ('vmem', 'vmem_st'):
            groups.append(cur); cur = []
    if cur:
        if groups: groups[-1] += cur
        else: groups.append(cur)
    times, total = est_times(stream)
    n = len(groups)
    tgt = [total * (lo + (hi - lo) * (k + 0.0) / n) for k in range(n)]
    out = []; k = 0
    for i, t in zip(stream, times):
        while k < n and t >= tgt[k]:
            out += groups[k]; k += 1
        out.append(i)
    while k < n:
        out += groups[k]; k += 1
    return out

class Gen:
    def __init__(self, role, o):
        self.role = role; self.o = o; self.lab = 0; self.tail = []; self.tsnames = []
    def label(self, base):
        self.lab += 1
        return 'L%s_%s%d' % (self.role, base, self.lab)
    def ts(self, name):
        if not self.o.get('ts') or len(self.tsnames) >= 62: return []
        k = len(self.tsnames); self.tsnames.append(name)
        return I(f's_memtime s[6:7]\ns_waitcnt lgkmcnt(0)\nv_writelane_b32 v19, s6, {k}')

    def flag_load(self, base, sidx_code, lane_code, vaddr, vflag):
        return I(sidx_code) + I(lane_code) + I(f"""
        v_add_u32 {v(vaddr)}, {s(S_T0)}, {v(vaddr)}
        v_lshlrev_b32 {v(vaddr)}, 6, {v(vaddr)}
        v_add_u32 {v(vaddr)}, {base}, {v(vaddr)}
        buffer_load_dword {v(vflag)}, {v(vaddr)}, {s(SRD_WS,4)}, 0 offen sc1
        """)
    def poll(self, vflag, vaddr, nm, exp=None, srd=None):
        exp = S_TAG if exp is None else exp
        srd = SRD_WS if srd is None else srd
        L = self.label('slow' + nm); Lb = self.label('back' + nm)
        br = Ins('s_cbranch_vccnz %s' % L); br.text += '\n%s:' % Lb
        self.tail.append(f"""{L}:
    s_mov_b32 {s(S_SPIN)}, 0
{L}_l:
    s_sleep 1
    buffer_load_dword {v(vflag)}, {v(vaddr)}, {s(srd,4)}, 0 offen sc1
    s_add_u32 {s(S_SPIN)}, {s(S_SPIN)}, 1
    s_cmp_gt_u32 {s(S_SPIN)}, 0x8000
    s_cbranch_scc1 {L}_x
    s_waitcnt vmcnt(0)
    v_cmp_ne_u32 vcc, {s(exp)}, {v(vflag)}
    s_nop 4
    s_cbranch_vccnz {L}_l
{L}_x:
    s_waitcnt vmcnt(0)
    s_nop 7
    s_branch {Lb}
""")
        return I('v_cmp_ne_u32 vcc, %s, %s' % (s(exp), v(vflag))) + [br]
    def set_flag(self, base, idx_code, t1, t2):
        return I(idx_code) + I(f"""
        s_lshl_b32 {s(S_T0)}, {s(S_T0)}, 6
        s_add_u32 {s(S_T0)}, {s(S_T0)}, {base}
        v_mov_b32 {v(t1)}, {s(S_T0)}
        v_mov_b32 {v(t2)}, {OOB}
        v_cmp_eq_u32 vcc, 0, v0
        v_cndmask_b32 {v(t1)}, {v(t2)}, {v(t1)}, vcc
        v_mov_b32 {v(t2)}, {s(S_TAG)}
        buffer_store_dword {v(t2)}, {v(t1)}, {s(SRD_WS,4)}, 0 offen sc1
        """, tag='flag')

    def prologue(self):
        L = I(f"""
        s_load_dwordx16 s[40:55], s[0:1], 0
        s_load_dwordx8 s[56:63], s[0:1], 64
        s_load_dwordx4 s[64:67], s[0:1], 96
        v_and_b32 v1, 63, v0
        v_lshrrev_b32 v2, 6, v0
        s_and_b32 {s(S_T0)}, {s(S_ID)}, 7
        s_lshr_b32 {s(S_T1)}, {s(S_ID)}, 3
        v_readfirstlane_b32 {s(S_WAVE)}, v2
        s_lshr_b32 {s(S_T2)}, {s(S_T0)}, 1
        s_lshl_b32 {s(S_T2)}, {s(S_T2)}, 2
        s_lshr_b32 {s(S_T3)}, {s(S_T1)}, 3
        s_add_u32 {s(S_T)}, {s(S_T2)}, {s(S_T3)}
        s_and_b32 {s(S_T2)}, {s(S_T0)}, 1
        s_lshl_b32 {s(S_T2)}, {s(S_T2)}, 3
        s_and_b32 {s(S_CS)}, {s(S_T1)}, 7
        s_add_u32 {s(S_FS)}, {s(S_T2)}, {s(S_CS)}
        s_lshl_b32 {s(S_T64)}, {s(S_T0)}, 2
        s_add_u32 {s(S_T64)}, {s(S_T64)}, {s(S_T3)}
        s_mov_b32 {s(S_ONES)}, 0x3f803f80
        """)
        return L
    def srds(self, lst):
        L = []
        for srd, p, n in lst:
            L += I(f"""
            s_mov_b32 {s(srd)}, {s(p)}
            s_mov_b32 {s(srd+1)}, {s(p+1)}
            s_mov_b32 {s(srd+2)}, {n}
            s_mov_b32 {s(srd+3)}, 0x20000
            """)
        return L
    def make_tag(self):
        return I(f"""
        s_mul_i32 {s(S_TAG)}, {s(S_EPOCH)}, 0x9e3779b1
        s_add_u32 {s(S_TAG)}, {s(S_TAG)}, 0x7f4a7c15
        """)

    def p_stat_load(self, R):
        return I(f"""
        s_and_b32 {s(S_T0)}, {s(S_ID)}, 7
        s_lshl_b32 {s(S_T0)}, {s(S_T0)}, 8
        s_and_b32 {s(S_T1)}, {s(S_ID)}, -8
        s_add_u32 {s(S_T0)}, {s(S_T0)}, {s(S_T1)}
        s_lshl_b32 {s(S_T1)}, {s(S_WAVE)}, 1
        s_add_u32 {s(S_T0)}, {s(S_T0)}, {s(S_T1)}
        v_lshrrev_b32 {v(R+12)}, 5, v1
        v_add_u32 {v(R+12)}, {s(S_T0)}, {v(R+12)}
        v_and_b32 {v(R+13)}, 31, v1
        v_mul_u32_u24 {v(R+10)}, 1280, {v(R+12)}
        v_lshl_add_u32 {v(R+11)}, {v(R+13)}, 3, {v(R+10)}
        v_lshl_add_u32 {v(R+10)}, {v(R+13)}, 4, {v(R+10)}
        buffer_load_dwordx4 {v(R,4)}, {v(R+10)}, {s(SRD_Q,4)}, 0 offen
        buffer_load_dwordx4 {v(R+4,4)}, {v(R+10)}, {s(SRD_Q,4)}, 0 offen offset:512
        buffer_load_dwordx2 {v(R+8,2)}, {v(R+11)}, {s(SRD_Q,4)}, 0 offen offset:1024
        """)
    def p_stat_compute(self, R):
        A, B, T, U = R + 14, R + 15, R + 16, R + 17
        assert A % 2 == 0
        L = I(f'v_mov_b32 {v(A)}, 0\nv_mov_b32 {v(B)}, 0')
        for i in range(10):
            L += I(f'v_dot2c_f32_bf16 {v(A)}, {s(S_ONES)}, {v(R+i)}\nv_dot2c_f32_bf16 {v(B)}, {v(R+i)}, {v(R+i)}')
        for rot in (8, 4, 2, 1):
            L += I(f'v_add_f32_dpp {v(A)}, {v(A)}, {v(A)} row_ror:{rot} row_mask:0xf bank_mask:0xf')
            L += I(f'v_add_f32_dpp {v(B)}, {v(B)}, {v(B)} row_ror:{rot} row_mask:0xf bank_mask:0xf')
        L += I(f"""
        v_mov_b32 {v(T)}, {v(A)}
        v_mov_b32 {v(U)}, {v(B)}
        v_permlane16_swap_b32 {v(A)}, {v(T)}
        v_permlane16_swap_b32 {v(B)}, {v(U)}
        v_add_f32 {v(A)}, {v(A)}, {v(T)}
        v_add_f32 {v(B)}, {v(B)}, {v(U)}
        v_mul_f32 {v(A)}, {f2h(1.0/640)}, {v(A)}
        v_mul_f32 {v(B)}, {f2h(1.0/640)}, {v(B)}
        v_fma_f32 {v(B)}, -{v(A)}, {v(A)}, {v(B)}
        v_max_f32 {v(B)}, 0, {v(B)}
        v_cvt_pk_bf16_f32 {v(A)}, {v(A)}, {v(B)}
        v_and_b32 {v(B)}, 0xffff0000, {v(A)}
        v_lshlrev_b32 {v(A)}, 16, {v(A)}
        v_add_f32 {v(B)}, {f2h(1e-5)}, {v(B)}
        v_cvt_pk_bf16_f32 {v(B)}, {v(B)}, {v(B)}
        v_lshlrev_b32 {v(B)}, 16, {v(B)}
        v_sqrt_f32 {v(B)}, {v(B)}
        v_cvt_pk_bf16_f32 {v(B)}, {v(B)}, {v(B)}
        v_lshlrev_b32 {v(B)}, 16, {v(B)}
        v_lshlrev_b32 {v(T)}, 3, {v(R+12)}
        v_add_u32 {v(T)}, {WS_STATS}, {v(T)}
        v_mov_b32 {v(U)}, {OOB}
        v_cmp_eq_u32 vcc, 0, {v(R+13)}
        v_cndmask_b32 {v(T)}, {v(U)}, {v(T)}, vcc
        """)
        L += I(f'buffer_store_dwordx2 {v(A,2)}, {v(T)}, {s(SRD_WS,4)}, 0 offen sc1', tag='wstore')
        return L

    PK_K, PK_V, PK_W, PK_A, PK_T, PK_OUT = 144, 172, 188, 204, 214, 128
    PT = 114688
    def p_kv_load(self):
        K, V_, W, A = self.PK_K, self.PK_V, self.PK_W, self.PK_A
        L = I(f"""
        v_mul_u32_u24 {v(A+9)}, 6554, v0
        v_lshrrev_b32 {v(A+9)}, 16, {v(A+9)}
        v_mul_u32_u24 {v(A+8)}, 10, {v(A+9)}
        v_sub_u32 {v(A+8)}, v0, {v(A+8)}
        s_lshl_b32 {s(S_T0)}, {s(S_T64)}, 6
        s_sub_u32 {s(S_T0)}, {s(S_T0)}, 3
        s_mul_i32 {s(S_T1)}, {s(S_CS)}, 160
        v_lshlrev_b32 {v(A)}, 2, {v(A+9)}
        v_add_u32 {v(A)}, {s(S_T0)}, {v(A)}
        v_mul_i32_i24 {v(A)}, 1280, {v(A)}
        v_lshl_add_u32 {v(A+1)}, {v(A+8)}, 4, {s(S_T1)}
        v_add_u32 {v(A)}, {v(A)}, {v(A+1)}
        v_mov_b32 {v(A+1)}, {OOB}
        v_cmp_gt_u32 vcc, 160, v0
        v_cndmask_b32 {v(A)}, {v(A+1)}, {v(A)}, vcc
        """)
        for i in range(1, 7): L += I(f'v_add_u32 {v(A+i)}, {1280*i}, {v(A)}')
        for i in range(7): L += I(f'buffer_load_dwordx4 {v(K+4*i,4)}, {v(A+i)}, {s(SRD_K,4)}, 0 offen')
        for i in range(4): L += I(f'buffer_load_dwordx4 {v(V_+4*i,4)}, {v(A+3+i)}, {s(SRD_V,4)}, 0 offen')
        L += I(f"""
        s_mul_i32 {s(S_T1)}, {s(S_CS)}, 640
        v_lshl_add_u32 {v(A+7)}, {v(A+8)}, 6, {s(S_T1)}
        """)
        for i in range(4): L += I(f'global_load_dwordx4 {v(W+4*i,4)}, {v(A+7)}, {s(P_SHK,2)} offset:{16*i}')
        return L
    def p_kv_compute(self, packed=True):
        K, V_, W, A, T = self.PK_K, self.PK_V, self.PK_W, self.PK_A, self.PK_T
        KU, VU, WU, AC, OUT = T, T + 14, T + 22, T + 30, self.PK_OUT
        L = []
        for dd in range(4):
            for r in range(7):
                L += I(f'v_lshlrev_b32 {v(KU+2*r)}, 16, {v(K+4*r+dd)}\nv_and_b32 {v(KU+2*r+1)}, 0xffff0000, {v(K+4*r+dd)}')
            for j in range(4):
                for h in range(2):
                    src = W + 4 * dd + 2 * h + (j >> 1)
                    L += I(f'v_and_b32 {v(WU+2*j+h)}, 0xffff0000, {v(src)}' if j & 1 else f'v_lshlrev_b32 {v(WU+2*j+h)}, 16, {v(src)}')
            for r in range(4):
                L += I(f'v_lshlrev_b32 {v(VU+2*r)}, 16, {v(V_+4*r+dd)}\nv_and_b32 {v(VU+2*r+1)}, 0xffff0000, {v(V_+4*r+dd)}')
            for t in range(4): L += I(f'v_pk_mul_f32 {v(AC+2*t,2)}, {v(KU+2*t,2)}, {v(WU+6,2)}')
            for j in (2, 1, 0):
                for t in range(4): L += I(f'v_pk_fma_f32 {v(AC+2*t,2)}, {v(KU+2*(t+3-j),2)}, {v(WU+2*j,2)}, {v(AC+2*t,2)}')
            for t in range(4): L += I(f'v_pk_mul_f32 {v(AC+2*t,2)}, {v(AC+2*t,2)}, {v(VU+2*t,2)}')
            for h in range(2):
                ch = 2 * dd + h
                L += I(f'v_cvt_pk_bf16_f32 {v(OUT+2*ch)}, {v(AC+h)}, {v(AC+2+h)}\nv_cvt_pk_bf16_f32 {v(OUT+2*ch+1)}, {v(AC+4+h)}, {v(AC+6+h)}')
        L += I(f"""
        v_and_b32 {v(T)}, 14, {v(A+8)}
        v_xor_b32 {v(T)}, {v(T)}, {v(A+9)}
        v_lshlrev_b32 {v(T)}, 3, {v(T)}
        v_lshl_add_u32 {v(T)}, {v(A+8)}, 10, {v(T)}
        v_mov_b32 {v(T+1)}, 12288
        v_cmp_gt_u32 vcc, 160, v0
        v_cndmask_b32 {v(T)}, {v(T+1)}, {v(T)}, vcc
        v_add_u32 {v(T)}, {self.PT}, {v(T)}
        """)
        for i in range(8): L += I(f'ds_write_b64 {v(T)}, {v(OUT+2*i,2)} offset:{128*i}')
        L1 = L
        L = I(f"""
        v_lshrrev_b32 {v(T)}, 3, v0
        v_and_b32 {v(T+1)}, 7, v0
        v_lshrrev_b32 {v(T+2)}, 6, v0
        v_lshlrev_b32 {v(T+4)}, 1, {v(T+1)}
        v_lshlrev_b32 {v(T+5)}, 7, {v(T)}
        v_add_u32 {v(T+5)}, {self.PT}, {v(T+5)}
        """)
        for i in range(3):
            L += I(f"""
            v_add_u32 {v(T+3)}, {4*i}, {v(T+2)}
            v_and_b32 {v(T+3)}, 14, {v(T+3)}
            v_xor_b32 {v(T+3)}, {v(T+3)}, {v(T+4)}
            v_lshl_add_u32 {v(T+3)}, {v(T+3)}, 3, {v(T+5)}
            ds_read_b128 {v(OUT+4*i,4)}, {v(T+3)} offset:{4096*i}
            """)
        L += I(f"""
        s_mul_i32 {s(S_T0)}, {s(S_CS)}, {80*4096}
        s_lshl_b32 {s(S_T1)}, {s(S_T64)}, 7
        s_add_u32 {s(S_T0)}, {s(S_T0)}, {s(S_T1)}
        s_add_u32 {s(S_T0)}, {s(S_T0)}, {WS_KVT}
        v_lshlrev_b32 {v(T+6)}, 12, {v(T)}
        v_lshl_add_u32 {v(T+6)}, {v(T+1)}, 4, {v(T+6)}
        v_add_u32 {v(T+7)}, {32*4096}, {v(T+6)}
        v_add_u32 {v(T+8)}, {64*4096}, {v(T+6)}
        v_mov_b32 {v(T+9)}, {OOB}
        v_cmp_gt_u32 vcc, 128, v0
        v_cndmask_b32 {v(T+8)}, {v(T+9)}, {v(T+8)}, vcc
        """)
        for i in range(3):
            L += I(f'buffer_store_dwordx4 {v(OUT+4*i,4)}, {v(T+6+i)}, {s(SRD_WS,4)}, {s(S_T0)} offen sc1', tag='pstore')
        return L1, L

    W2STG = 131072
    def p_w2_load(self, T):
        L = I(f"""
        s_cmp_lt_u32 {s(S_ID)}, 96
        s_cselect_b32 {s(S_DIS)}, 0, {OOB}
        s_min_u32 {s(S_T0)}, {s(S_ID)}, 95
        s_lshl_b32 {s(S_T0)}, {s(S_T0)}, 2
        s_add_u32 {s(S_T0)}, {s(S_T0)}, {s(S_WAVE)}
        s_mul_i32 {s(S_T1)}, {s(S_T0)}, 1366
        s_lshr_b32 {s(S_T1)}, {s(S_T1)}, 16
        s_mul_i32 {s(S_T2)}, {s(S_T1)}, 48
        s_sub_u32 {s(S_T2)}, {s(S_T0)}, {s(S_T2)}
        s_mul_i32 {s(S_T2)}, {s(S_T2)}, {32*1280}
        s_mul_i32 {s(S_T1)}, {s(S_T1)}, 160
        s_add_u32 {s(S_T2)}, {s(S_T2)}, {s(S_T1)}
        s_mul_i32 {s(S_W2OFF)}, {s(S_T0)}, 5120
        s_add_u32 {s(S_W2OFF)}, {s(S_W2OFF)}, {WS_W2T}
        s_mul_i32 {s(S_T3)}, {s(S_WAVE)}, 5120
        s_add_u32 {s(S_T3)}, {s(S_T3)}, {self.W2STG}
        s_mov_b32 {s(S_T1)}, 0x1999999a
        """)
        for n in range(5):
            comp = 1024 * n if n < 4 else 0
            L += I(f"""
            v_add_u32 {v(T)}, {64*n}, v1
            v_mul_hi_u32 {v(T+1)}, {v(T)}, {s(S_T1)}
            v_mul_u32_u24 {v(T+2)}, 10, {v(T+1)}
            v_sub_u32 {v(T+2)}, {v(T)}, {v(T+2)}
            v_mul_u32_u24 {v(T+1)}, 1280, {v(T+1)}
            v_lshl_add_u32 {v(T+1)}, {v(T+2)}, 4, {v(T+1)}
            v_subrev_u32 {v(T+8+n)}, {comp}, {v(T+1)}
            v_or_b32 {v(T+8+n)}, {s(S_DIS)}, {v(T+8+n)}
            """)
        L += I(f's_mov_b32 m0, {s(S_T3)}')
        for n in range(4): L += I(f'buffer_load_dwordx4 {v(T+8+n)}, {s(SRD_W2,4)}, {s(S_T2)} offen offset:{1024*n} lds', tag='w2slab')
        L += I(f's_add_u32 m0, {s(S_T3)}, 4096')
        L += I(f'buffer_load_dwordx4 {v(T+12)}, {s(SRD_W2,4)}, {s(S_T2)} offen lds', tag='w2slab')
        L += I(f"""
        v_bfe_u32 {v(T)}, v1, 5, 1
        v_lshlrev_b32 {v(T)}, 4, {v(T)}
        v_bfe_u32 {v(T+1)}, v1, 4, 1
        v_lshl_add_u32 {v(T)}, {v(T+1)}, 2, {v(T)}
        v_bfe_u32 {v(T+1)}, v1, 2, 2
        v_add_u32 {v(T)}, {v(T)}, {v(T+1)}
        v_mul_u32_u24 {v(T)}, 160, {v(T)}
        v_and_b32 {v(T+1)}, 3, v1
        v_lshl_add_u32 {v(T)}, {v(T+1)}, 3, {v(T)}
        v_add_u32 {v(T+13)}, {s(S_T3)}, {v(T)}
        v_lshlrev_b32 {v(T+14)}, 4, v1
        v_or_b32 {v(T+14)}, {s(S_DIS)}, {v(T+14)}
        """)
        return L
    def p_w2_store(self, T, R):
        L = [waitvm('w2slab')]
        for ct in range(5):
            for al in range(2): L += I(f'ds_read_b64_tr_b16 {v(R[ct]+2*al,2)}, {v(T+13)} offset:{al*1280 + ct*32}')
        for ct in range(5):
            if ct == 4:
                L += I(f's_add_u32 {s(S_W2OFF)}, {s(S_W2OFF)}, 4096')
                L += I(f'buffer_store_dwordx4 {v(R[ct],4)}, {v(T+14)}, {s(SRD_WS,4)}, {s(S_W2OFF)} offen sc1', tag='wstore')
            else:
                L += I(f'buffer_store_dwordx4 {v(R[ct],4)}, {v(T+14)}, {s(SRD_WS,4)}, {s(S_W2OFF)} offen offset:{1024*ct} sc1', tag='wstore')
        return L

    XST, WST, CSA = 0, 65536, 155648
    NST = 4
    G_XD, G_WD, G_XA, G_XB, G_WA, G_WC = 2, 6, 9, 13, 17, 18
    G_ACC, G_XF, G_WF, G_CSF, G_CS = 20, 68, 76, 100, 112
    G_ONE = 112
    def g1_setup(self, T):
        XD, WD, XA, XB, WA, WC = self.G_XD, self.G_WD, self.G_XA, self.G_XB, self.G_WA, self.G_WC
        L = I(f"""
        v_lshrrev_b32 {v(T)}, 3, v1
        v_and_b32 {v(T+1)}, 7, v1
        v_lshrrev_b32 {v(T+2)}, 4, v1
        s_lshl_b32 {s(S_T0)}, {s(S_WAVE)}, 5
        v_add_u32 {v(T)}, {s(S_T0)}, {v(T)}
        v_mul_u32_u24 {v(T)}, 1280, {v(T)}
        v_xor_b32 {v(T+3)}, {v(T+1)}, {v(T+2)}
        v_add_u32 {v(T+4)}, 4, {v(T+2)}
        v_xor_b32 {v(T+4)}, {v(T+1)}, {v(T+4)}
        v_lshl_add_u32 {v(XD)}, {v(T+3)}, 4, {v(T)}
        v_lshl_add_u32 {v(T+4)}, {v(T+4)}, 4, {v(T)}
        v_add_u32 {v(XD+1)}, {10240-1024}, {v(T+4)}
        v_add_u32 {v(XD+2)}, {20480-2048}, {v(XD)}
        v_add_u32 {v(XD+3)}, {30720-3072}, {v(T+4)}
        s_mul_i32 {s(S_XOFF)}, {s(S_T)}, 163840
        s_lshl_b32 {s(S_XM0)}, {s(S_WAVE)}, 12
        s_mul_i32 {s(S_WOFF)}, {s(S_FS)}, 192
        s_mul_i32 {s(S_WM0)}, {s(S_WAVE)}, 3072
        s_add_u32 {s(S_WM0)}, {s(S_WM0)}, {self.WST}
        s_mul_i32 {s(S_T0)}, {s(S_WAVE)}, 192
        s_mov_b32 {s(S_T1)}, 0x15555556
        """)
        for i in range(3):
            L += I(f"""
            v_add_u32 {v(T)}, {s(S_T0)}, v1
            v_add_u32 {v(T)}, {64*i}, {v(T)}
            v_mul_hi_u32 {v(T+1)}, {v(T)}, {s(S_T1)}
            v_mul_u32_u24 {v(T+2)}, 12, {v(T+1)}
            v_sub_u32 {v(T+2)}, {v(T)}, {v(T+2)}
            v_mul_u32_u24 {v(T+1)}, 3072, {v(T+1)}
            v_lshl_add_u32 {v(T+1)}, {v(T+2)}, 4, {v(T+1)}
            v_subrev_u32 {v(WD+i)}, {1024*i}, {v(T+1)}
            """)
        return L
    def g1_setup2(self, T):
        XA, XB, WA, WC = self.G_XA, self.G_XB, self.G_WA, self.G_WC
        L = I(f"""
        v_and_b32 {v(T)}, 31, v1
        v_lshrrev_b32 {v(T+1)}, 5, v1
        v_bfe_u32 {v(T+2)}, v1, 1, 3
        v_lshlrev_b32 {v(T)}, 7, {v(T)}
        v_add_u32 {v(T)}, {s(S_XM0)}, {v(T)}
        """)
        for ks in range(4):
            L += I(f"""
            v_add_u32 {v(T+3)}, {2*ks}, {v(T+1)}
            v_xor_b32 {v(T+3)}, {v(T+3)}, {v(T+2)}
            v_lshl_add_u32 {v(XA+ks)}, {v(T+3)}, 4, {v(T)}
            """)
        L += I(f"""
        v_lshrrev_b32 {v(T)}, 5, v1
        v_lshlrev_b32 {v(T)}, 3, {v(T)}
        v_bfe_u32 {v(T+1)}, v1, 2, 2
        v_add_u32 {v(T)}, {v(T)}, {v(T+1)}
        v_mul_u32_u24 {v(T)}, 192, {v(T)}
        v_bfe_u32 {v(T+1)}, v1, 4, 1
        v_lshl_add_u32 {v(T)}, {v(T+1)}, 5, {v(T)}
        v_and_b32 {v(T+1)}, 3, v1
        v_lshl_add_u32 {v(T)}, {v(T+1)}, 3, {v(T)}
        v_add_u32 {v(WA)}, {self.WST}, {v(T)}
        s_mul_i32 {s(S_T0)}, {s(S_WAVE)}, 3072
        v_add_u32 {v(WC)}, {s(S_T0)}, {v(WA)}
        """)
        return L
    def g1_dma(self, c):
        XD, WD = self.G_XD, self.G_WD
        stg = c % self.NST
        L = [f's_add_u32 m0, {s(S_XM0)}, {self.XST + stg*16384}']
        for i in range(4): L.append(f'buffer_load_dwordx4 {v(XD+i)}, {s(SRD_Q,4)}, {s(S_XOFF)} offen offset:{1024*i} lds')
        L.append(f's_add_u32 {s(S_XOFF)}, {s(S_XOFF)}, 128')
        L.append(f's_add_u32 m0, {s(S_WM0)}, {stg*12288}')
        for i in range(3): L.append(f'buffer_load_dwordx4 {v(WD+i)}, {s(SRD_W1,4)}, {s(S_WOFF)} offen offset:{1024*i} lds')
        L.append(f's_add_u32 {s(S_WOFF)}, {s(S_WOFF)}, {64*3072}')
        return [Ins(t, tag='g1c%d' % c) for t in L]
    def g1_reads(self, n):
        c, ks = n >> 2, n & 3
        stg = c % self.NST; b = n & 1
        XF, WF = self.G_XF + 4 * b, self.G_WF + 12 * b
        L = [f'ds_read_b128 {v(XF,4)}, {v(self.G_XA+ks)} offset:{stg*16384}']
        for ft in range(3):
            for al in range(2):
                L.append(f'ds_read_b64_tr_b16 {v(WF+4*ft+2*al,2)}, {v(self.G_WA)} offset:{stg*12288 + (16*ks+4*al)*192 + ft*64}')
        return [Ins(t) for t in L]
    def g1_cs_reads(self, c):
        stg = c % self.NST
        return [Ins(f'ds_read_b64_tr_b16 {v(self.G_CSF+4*ft+2*al,2)}, {v(self.G_WC)} offset:{stg*12288 + (4*al)*192 + ft*64}') for ft in range(3) for al in range(2)]
    def g1_cs_mfma(self, first):
        return [Ins(f'v_mfma_f32_32x32x16_bf16 {a_(208+16*ft,16)}, {v(self.G_ONE,4)}, {v(self.G_CSF+4*ft,4)}, ' + ('0' if first else a_(208+16*ft,16))) for ft in range(3)]
    def g1_init(self):
        L = []
        for i in range(48): L += I(f'v_mov_b32 {v(self.G_ACC+i)}, 0')
        for i in range(4): L += I(f'v_mov_b32 {v(self.G_ONE+i)}, {s(S_ONES)}')
        return L
    def g1_main(self, bg, bgv):
        ACC = self.G_ACC
        out = [waitvm('g1c0'), waitlds()] + I('s_barrier') + self.g1_reads(0)
        for c in range(10):
            main = []
            for ks in range(4):
                n = 4 * c + ks
                b = n & 1
                M = [Ins(f'v_mfma_f32_32x32x16_bf16 {v(ACC+16*ft,16)}, {v(self.G_WF+12*b+4*ft,4)}, {v(self.G_XF+4*b,4)}, {v(ACC+16*ft,16)}') for ft in range(3)]
                pre = []; R = []
                if n + 1 < 40:
                    if ks == 3: pre = [waitvm('g1c%d' % (c + 1)), waitlds()] + I('s_barrier')
                    R = self.g1_reads(n + 1)
                X = []
                if ks == 0: X = self.g1_cs_reads(c)
                if ks == 2: X = self.g1_cs_mfma(c == 0)
                main += [M[0]] + pre + R[:4] + [M[1]] + R[4:] + X[:3] + [M[2]] + X[3:]
            B = list(bg.get(c, []))
            out += self.ts('g1 c%d' % c)
            m1 = merge(main, B, 0.0, 0.8)
            bar = [k for k, i in enumerate(m1) if i.op == 's_barrier']
            if bar:
                cut = bar[-1]
                while m1[cut - 1].kind in ('waitvm', 'waitlds'): cut -= 1
                out += merge_time(m1[:cut], bgv.get(c, []), 0.02, 0.98) + m1[cut:]
            else:
                out += merge_time(m1, bgv.get(c, []), 0.02, 0.98)
        return out
    def g1_epilogue(self, bg, ldsbg=None):
        ACC = self.G_ACC
        ST_, B1, AX, BX, RS, AD = 116, 118, 76, 88, 92, 94
        CS = self.G_CS
        L = I(f"""
        v_and_b32 {v(AD)}, 31, v1
        v_lshlrev_b32 {v(AD)}, 2, {v(AD)}
        v_add_u32 {v(AD)}, {self.CSA}, {v(AD)}
        s_mul_i32 {s(S_T0)}, {s(S_WAVE)}, 384
        v_add_u32 {v(AD+1)}, {s(S_T0)}, {v(AD)}
        """)
        for ft in range(3): L += I(f'v_accvgpr_read_b32 {v(CS+ft)}, {a_(208+16*ft)}')
        for ft in range(3): L += I(f'ds_write_b32 {v(AD+1)}, {v(CS+ft)} offset:{128*ft}')
        L += [waitlds()] + I('s_barrier') + self.ts('ep: barrier')
        for w in range(4):
            for ft in range(3): L += I(f'ds_read_b32 {v(100+3*w+ft)}, {v(AD)} offset:{384*w + 128*ft}')
        L += I(f"""
        v_cmp_gt_u32 vcc, 32, v1
        v_rcp_f32 {v(RS)}, {v(ST_+1)}
        v_xor_b32 {v(BX)}, 0x80000000, {v(ST_)}
        v_lshrrev_b32 {v(BX+1)}, 16, {v(BX)}
        v_or_b32 {v(BX)}, {v(BX)}, {v(BX+1)}
        v_lshrrev_b32 {v(BX+1)}, 16, {v(ST_+1)}
        v_mov_b32 {v(BX+2)}, 0
        v_mov_b32 {v(BX+3)}, 0
        """)
        for ft in range(3):
            a = AX + 4 * ft; cs = CS + ft
            L += I(f"""
            v_add_f32 {v(cs)}, {v(100+ft)}, {v(103+ft)}
            v_add_f32 {v(a)}, {v(106+ft)}, {v(109+ft)}
            v_add_f32 {v(cs)}, {v(cs)}, {v(a)}
            v_cvt_pk_bf16_f32 {v(a)}, {v(cs)}, {v(cs)}
            v_lshlrev_b32 {v(a+1)}, 16, {v(a)}
            v_sub_f32 {v(a+1)}, {v(cs)}, {v(a+1)}
            v_cvt_pk_bf16_f32 {v(a)}, {v(cs)}, {v(a+1)}
            v_cndmask_b32 {v(a)}, 0, {v(a)}, vcc
            v_cndmask_b32 {v(a+1)}, 0, {v(B1+ft)}, vcc
            v_mov_b32 {v(a+2)}, 0
            v_mov_b32 {v(a+3)}, 0
            v_mfma_f32_32x32x16_bf16 {v(ACC+16*ft,16)}, {v(a,4)}, {v(BX,4)}, {v(ACC+16*ft,16)}
            """)
        L += I(f"""
        s_lshl_b32 {s(S_T0)}, {s(S_T)}, 3
        s_lshl_b32 {s(S_T1)}, {s(S_WAVE)}, 1
        s_add_u32 {s(S_T0)}, {s(S_T0)}, {s(S_T1)}
        s_mul_i32 {s(S_T0)}, {s(S_T0)}, {48*1024}
        s_mul_i32 {s(S_T1)}, {s(S_FS)}, 3072
        s_add_u32 {s(S_T0)}, {s(S_T0)}, {s(S_T1)}
        s_add_u32 {s(S_T4)}, {s(S_T0)}, {WS_H}
        v_bfe_u32 {v(AD)}, v1, 4, 1
        v_mul_u32_u24 {v(AD)}, {48*1024}, {v(AD)}
        v_lshrrev_b32 {v(AD+1)}, 5, v1
        v_lshl_add_u32 {v(AD)}, {v(AD+1)}, 8, {v(AD)}
        v_and_b32 {v(AD+1)}, 15, v1
        v_lshl_add_u32 {v(AD)}, {v(AD+1)}, 4, {v(AD)}
        """)
        E = []
        for ft in range(3):
            A = ACC + 16 * ft
            for cc in range(2):
                for p in range(4 * cc, 4 * cc + 4):
                    r = A + 2 * p
                    E += I(f"""
                    v_max_f32 {v(r)}, 0, {v(r)}
                    v_max_f32 {v(r+1)}, 0, {v(r+1)}
                    v_pk_mul_f32 {v(r,2)}, {v(r,2)}, {v(RS,2)} op_sel_hi:[1,0]
                    v_pk_mul_f32 {v(r,2)}, {v(r,2)}, {v(r,2)}
                    """)
                for d in range(4):
                    r = A + 8 * cc + 2 * d
                    E += I(f'v_cvt_pk_bf16_f32 {v(A+8*cc+d)}, {v(r)}, {v(r+1)}')
                E += I(f'buffer_store_dwordx4 {v(A+8*cc,4)}, {v(AD)}, {s(SRD_WS,4)}, {s(S_T4)} offen offset:{1024*ft + 512*cc} sc1', tag='hstore')
        if ldsbg: E = merge(E, ldsbg)
        return L + self.ts('ep: xmfma') + merge_time(E, bg)

    def w2_setup(self, vaddr):
        return I(f"""
        s_mul_i32 {s(S_W2OFF)}, {s(S_CS)}, {48*5120}
        s_mul_i32 {s(S_T0)}, {s(S_WAVE)}, {12*5120}
        s_add_u32 {s(S_W2OFF)}, {s(S_W2OFF)}, {s(S_T0)}
        s_add_u32 {s(S_W2OFF)}, {s(S_W2OFF)}, {WS_W2T}
        v_lshlrev_b32 {v(vaddr)}, 4, v1
        """)
    def w2_load(self, n, vaddr):
        L = I(f'buffer_load_dwordx4 {a_(4*n,4)}, {v(vaddr)}, {s(SRD_WS,4)}, {s(S_W2OFF)} offen offset:{1024*(n%4)} sc1', tag='w2')
        if n % 4 == 3: L += I(f's_add_u32 {s(S_W2OFF)}, {s(S_W2OFF)}, 4096')
        return L

    CWS = 21248
    C_S0, C_S1, C_S2 = 208, 224, 240
    C_ACC, C_XF, C_HF, C_HD, C_XB, C_HB = 20, 52, 116, 132, 136, 137
    def c_hload(self):
        A = 200
        L = I(f"""
        s_lshl_b32 {s(S_T0)}, {s(S_ID)}, 2
        s_add_u32 {s(S_T0)}, {s(S_T0)}, {s(S_WAVE)}
        s_lshl_b32 {s(S_T1)}, {s(S_T0)}, 1
        s_and_b32 {s(S_T1)}, {s(S_T1)}, -4
        s_load_dword {s(S_DVAL)}, {s(P_SSMD,2)}, {s(S_T1)}
        s_lshl_b32 {s(S_T0)}, {s(S_T0)}, 12
        v_lshlrev_b32 {v(A)}, 4, v1
        """)
        for i in range(4):
            L += I(f'buffer_load_dwordx4 {v(self.C_S0+4*i,4)}, {v(A)}, {s(SRD_H,4)}, {s(S_T0)} offen offset:{1024*i}')
        return L
    def c_prep_regs(self):
        S0, S1, S2 = self.C_S0, self.C_S1, self.C_S2
        L = []
        DP = 'row_mask:0xf bank_mask:0xf'
        for i in range(4):
            s0, q2, q3, q1, p2 = S0 + 4*i, S1 + 4*i, S2 + 4*i, 160 + 4*i, 201
            if i == 0:
                L += I(f'v_mov_b32 {v(q2)}, 0\nv_mov_b32 {v(p2)}, 0')
            else:
                L += I(f'v_mov_b32_dpp {v(q2)}, {v(s0-1)} wave_ror:1 {DP}\nv_mov_b32_dpp {v(p2)}, {v(s0-2)} wave_ror:1 {DP}')
            L += I(f"""
            v_mov_b32 {v(q2+1)}, {v(s0)}
            v_mov_b32 {v(q2+2)}, {v(s0+1)}
            v_mov_b32_dpp {v(q2)}, {v(s0+3)} wave_shr:1 {DP}
            v_mov_b32_dpp {v(p2)}, {v(s0+2)} wave_shr:1 {DP}
            v_mov_b32 {v(q2+3)}, {v(s0+2)}
            v_alignbit_b32 {v(q1+1)}, {v(s0+1)}, {v(s0)}, 16
            v_alignbit_b32 {v(q1+2)}, {v(s0+2)}, {v(s0+1)}, 16
            v_alignbit_b32 {v(q1+3)}, {v(s0+3)}, {v(s0+2)}, 16
            v_alignbit_b32 {v(q1)}, {v(s0)}, {v(q2)}, 16
            v_alignbit_b32 {v(q3)}, {v(q2)}, {v(p2)}, 16
            v_mov_b32 {v(q3+2)}, {v(q1+1)}
            v_mov_b32 {v(q3+3)}, {v(q1+2)}
            v_mov_b32 {v(q3+1)}, {v(q1)}
            """)
        return L
    def c_prep_addr(self):
        L = []
        L += I(f"""
        s_mul_i32 {s(S_T0)}, {s(S_WAVE)}, {self.CWS}
        s_add_u32 {s(S_T0)}, {s(S_T0)}, 90112
        s_cmp_eq_u32 {s(S_WAVE)}, 3
        s_cselect_b32 {s(S_T0)}, 32768, {s(S_T0)}
        v_lshlrev_b32 v176, 4, v1
        v_add_u32 v176, {s(S_T0)}, v176
        v_bfe_u32 v177, v1, 1, 2
        v_mul_u32_u24 v177, 4160, v177
        v_and_b32 v178, 1, v1
        v_lshl_add_u32 v177, v178, 4, v177
        v_add_u32 v177, {s(S_T0)}, v177
        v_min_u32 v179, 29, v1
        v_lshlrev_b32 v179, 4, v179
        s_add_u32 {s(S_T0)}, {s(S_T0)}, 16640
        v_add_u32 v179, {s(S_T0)}, v179
        v_mov_b32 v180, 0
        v_mov_b32 v181, 0
        v_mov_b32 v182, 0
        v_mov_b32 v183, 0
        """)
        XB, HB, HD = self.C_XB, self.C_HB, self.C_HD
        L += I(f"""
        v_and_b32 v184, 15, v1
        v_lshrrev_b32 v185, 4, v1
        v_lshlrev_b32 {v(XB)}, 5, v184
        v_lshlrev_b32 v186, 4, v185
        v_sub_u32 {v(XB)}, {v(XB)}, v186
        v_add_u32 {v(XB)}, 48, {v(XB)}
        v_add_u32 {v(XB)}, {s(S_T0)}, {v(XB)}
        v_bfe_u32 v187, v1, 2, 2
        v_mul_u32_u24 {v(HB)}, 4160, v187
        v_add_u32 {v(HB)}, {v(HB)}, v186
        v_and_b32 v187, 3, v1
        v_lshl_add_u32 {v(HB)}, v187, 3, {v(HB)}
        s_sub_u32 {s(S_T0)}, {s(S_T0)}, {16640 - 8}
        v_add_u32 {v(HB)}, {s(S_T0)}, {v(HB)}
        s_and_b32 {s(S_T1)}, {s(S_WAVE)}, 1
        s_lshl_b32 {s(S_T1)}, {s(S_T1)}, 4
        s_lshr_b32 {s(S_DVAL)}, {s(S_DVAL)}, {s(S_T1)}
        s_and_b32 {s(S_DVAL)}, {s(S_DVAL)}, 0xffff
        v_lshrrev_b32 v186, 3, v184
        v_add_u32 v186, v186, v185
        v_and_b32 v187, 1, v184
        v_lshlrev_b32 v187, 4, v187
        v_lshlrev_b32 v187, v187, {s(S_DVAL)}
        v_bfe_u32 v188, v184, 1, 2
        v_mov_b32 v189, 99
        v_cmp_eq_u32 vcc, 1, v186
        v_cndmask_b32 v188, v189, v188, vcc
        """)
        for w in range(4): L += I(f'v_cmp_eq_u32 vcc, {w}, v188\nv_cndmask_b32 {v(HD+w)}, 0, v187, vcc')
        return L
    def c_write_copies(self):
        S0, S1, S2 = self.C_S0, self.C_S1, self.C_S2
        L = I('ds_write_b128 v177, v[180:183]\nds_write_b128 v179, v[180:183]')
        for i in range(4):
            L += I(f'ds_write_b128 v176, {v(S0+4*i,4)} offset:{32 + 1024*i}')
            L += I(f'ds_write_b128 v176, {v(160+4*i,4)} offset:{32 + 4160 + 1024*i}')
            L += I(f'ds_write_b128 v176, {v(S1+4*i,4)} offset:{32 + 2*4160 + 1024*i}')
            L += I(f'ds_write_b128 v176, {v(S2+4*i,4)} offset:{32 + 3*4160 + 1024*i}')
        return L
    C_XL = 140
    def c_xload(self):
        L = I(f"""
        s_lshl_b32 {s(S_T0)}, {s(S_ID)}, 2
        s_add_u32 {s(S_T0)}, {s(S_T0)}, {s(S_WAVE)}
        s_lshl_b32 {s(S_T0)}, {s(S_T0)}, 12
        s_add_u32 {s(S_T0)}, {s(S_T0)}, {WS_KVT}
        v_lshlrev_b32 v138, 4, v1
        """)
        for i in range(4): L += I(f'buffer_load_dwordx4 {v(self.C_XL+4*i,4)}, v138, {s(SRD_WS,4)}, {s(S_T0)} offen offset:{1024*i} sc1')
        return L
    def c_xwrite(self):
        return [Ins(f'ds_write_b128 v176, {v(self.C_XL+4*i,4)} offset:{16640 + 480 + 1024*i}') for i in range(4)]
    def c_xread(self, q, b):
        return Ins(f'ds_read_b128 {v(self.C_XF + 32*(q&1) + 4*b, 4)}, {v(self.C_XB)} offset:{512*b + 64*(7-q)}')
    def c_hread(self, idx):
        q, a = idx // 8, idx % 8
        r = self.C_HF + 4 * (idx % 4)
        return [Ins(f'ds_read_b64_tr_b16 {v(r+2*al,2)}, {v(self.C_HB)} offset:{512*a + 64*q + 8*(1-al)}') for al in range(2)]
    def c_main(self, bg):
        ACC = self.C_ACC
        out = [self.c_xread(0, b) for b in range(8)]
        for idx in range(3): out += self.c_hread(idx)
        for b in range(8): out += I(f'v_mfma_f32_16x16x32_bf16 {v(ACC+4*b,4)}, {v(self.C_HD,4)}, {v(self.C_XF+4*b,4)}, 0')
        for q in range(8):
            main = []
            for a in range(8):
                idx = 8 * q + a
                hr = self.C_HF + 4 * (idx % 4)
                first = True
                for b in range(7 - a, -1, -1):
                    main.append(Ins(f'v_mfma_f32_16x16x32_bf16 {v(ACC+4*(a+b),4)}, {v(hr,4)}, {v(self.C_XF+32*(q&1)+4*b,4)}, {v(ACC+4*(a+b),4)}'))
                    if first and idx + 3 < 64: main += self.c_hread(idx + 3)
                    first = False
            xr = [self.c_xread(q + 1, b) for b in range(8)] if q < 7 else []
            if q in (0, 2, 4, 6, 7): out += self.ts('conv q%d' % q)
            m1 = merge(main, xr, 0.0, 0.7)
            out += merge(m1, bg.get(q, []), 0.0, 1.0)
        return out
    def c_post(self):
        ACC = self.C_ACC
        L = I(f"""
        s_lshl_b32 {s(S_T0)}, {s(S_ID)}, 2
        s_add_u32 {s(S_T0)}, {s(S_T0)}, {s(S_WAVE)}
        s_lshl_b32 {s(S_T0)}, {s(S_T0)}, 12
        s_add_u32 {s(S_T0)}, {s(S_T0)}, {WS_YT}
        v_and_b32 v52, 15, v1
        v_lshlrev_b32 v52, 5, v52
        v_bfe_u32 v53, v1, 4, 1
        v_lshl_add_u32 v52, v53, 9, v52
        v_bfe_u32 v53, v1, 5, 1
        v_lshl_add_u32 v52, v53, 4, v52
        """)
        for p in range(4):
            Q = 56 + 4 * p
            a0, a1 = ACC + 8 * p, ACC + 8 * p + 4
            L += I(f"""
            v_cvt_pk_bf16_f32 {v(Q)}, {v(a0)}, {v(a0+1)}
            v_cvt_pk_bf16_f32 {v(Q+1)}, {v(a0+2)}, {v(a0+3)}
            v_cvt_pk_bf16_f32 {v(Q+2)}, {v(a1)}, {v(a1+1)}
            v_cvt_pk_bf16_f32 {v(Q+3)}, {v(a1+2)}, {v(a1+3)}
            v_permlane16_swap_b32 {v(Q)}, {v(Q+2)}
            v_permlane16_swap_b32 {v(Q+1)}, {v(Q+3)}
            """)
            L += I(f'buffer_store_dwordx4 {v(Q,4)}, v52, {s(SRD_WS,4)}, {s(S_T0)} offen offset:{1024*p} sc1', tag='ystore')
        return L

    G2_ACC = (20, 40)
    G2_HR, G2_NR, G2_OFF = 104, 38, 11
    G2_HV = 2
    G2_RA = 5
    F_X, F_B, F_ST, F_Y = 60, 70, 80, 82
    F_PP, F_XU, F_T = 188, 104, 124
    def hreg(self, n): return self.G2_HR + 4 * ((n + self.G2_OFF) % self.G2_NR)
    def g2_setup(self):
        L = I(f"""
        v_lshlrev_b32 v2, 4, v1
        v_add_u32 v3, 4096, v2
        v_add_u32 v4, 8192, v2
        s_mul_i32 {s(S_T0)}, {s(S_WAVE)}, {12*1024}
        s_add_u32 {s(S_T0)}, {s(S_T0)}, {WS_H}
        s_lshl_b32 {s(S_T1)}, {s(S_T64)}, 2
        """)
        for sg in range(4):
            L += I(f"""
            s_add_u32 {s(S_T2)}, {s(S_WAVE)}, {1+sg}
            s_and_b32 {s(S_T2)}, {s(S_T2)}, 3
            s_add_u32 {s(S_T3)}, {s(S_T1)}, {s(S_T2)}
            s_mul_i32 {s(S_T3)}, {s(S_T3)}, {48*1024}
            s_add_u32 {s(S_HOFF+sg)}, {s(S_T3)}, {s(S_T0)}
            """)
            if sg < 3:
                L += I(f"""
                s_mul_i32 {s(S_T2)}, {s(S_T2)}, 15360
                s_add_u32 {s(S_T2)}, {s(S_T2)}, {5120*sg}
                v_add_u32 {v(self.G2_RA+sg)}, {s(S_T2)}, v2
                """)
        L += I(f's_mul_i32 {s(S_T2)}, {s(S_WAVE)}, 15360\nv_add_u32 v8, {s(S_T2)}, v2')
        return L
    def g2_hload(self, n):
        sg, kk = n // 12, n % 12
        return Ins(f'buffer_load_dwordx4 {v(self.hreg(n),4)}, {v(self.G2_HV + kk//4)}, {s(SRD_WS,4)}, {s(S_HOFF+sg)} offen offset:{1024*(kk%4)} sc1')
    def f_loads(self):
        L = I(f"""
        s_lshl_b32 {s(S_T0)}, {s(S_T64)}, 6
        s_lshl_b32 {s(S_T1)}, {s(S_WAVE)}, 4
        s_add_u32 {s(S_T0)}, {s(S_T0)}, {s(S_T1)}
        v_and_b32 v9, 15, v1
        v_add_u32 v9, {s(S_T0)}, v9
        v_lshrrev_b32 v10, 4, v1
        s_mul_i32 {s(S_T2)}, {s(S_CS)}, 160
        v_lshl_add_u32 v10, v10, 3, {s(S_T2)}
        v_mul_u32_u24 v11, 1280, v9
        v_add_u32 v11, v11, v10
        """)
        for ct in range(5): L += I(f'buffer_load_dwordx2 {v(self.F_X+2*ct,2)}, v11, {s(SRD_Q,4)}, 0 offen offset:{32*ct}')
        for ct in range(5): L += I(f'global_load_dwordx2 {v(self.F_B+2*ct,2)}, v10, {s(P_B2,2)} offset:{32*ct}')
        L += I(f"""
        v_lshlrev_b32 v12, 3, v9
        v_add_u32 v12, {WS_STATS}, v12
        buffer_load_dwordx2 {v(self.F_ST,2)}, v12, {s(SRD_WS,4)}, 0 offen sc1
        """)
        return L
    def f_yloads(self):
        L = I(f"""
        v_lshlrev_b32 v12, 11, v10
        v_lshl_add_u32 v12, v9, 1, v12
        v_add_u32 v12, {WS_YT}, v12
        """)
        for ct in range(5):
            for r in range(4):
                L += I(f's_mov_b32 {s(S_T0)}, {(16*ct + r)*4096}')
                L += I(f'buffer_load_ushort {v(self.F_Y+4*ct+r)}, v12, {s(SRD_WS,4)}, {s(S_T0)} offen sc1')
        return L
    def f_pre(self):
        XU, SU, T, PP = self.F_XU, self.F_Y, self.F_T, self.F_PP
        X, B, ST_ = self.F_X, self.F_B, self.F_ST
        L = I(f"""
        v_rcp_f32 {v(T)}, {v(ST_+1)}
        v_mul_f32 {v(T+1)}, {v(ST_)}, {v(T)}
        v_xor_b32 {v(T+1)}, 0x80000000, {v(T+1)}
        """)
        for p in range(10):
            L += I(f"""
            v_lshlrev_b32 {v(XU+2*p)}, 16, {v(X+p)}
            v_and_b32 {v(XU+2*p+1)}, 0xffff0000, {v(X+p)}
            v_lshlrev_b32 {v(SU+2*p)}, 16, {v(SU+2*p)}
            v_lshlrev_b32 {v(SU+2*p+1)}, 16, {v(SU+2*p+1)}
            v_fma_f32 {v(T+2)}, {v(XU+2*p)}, {v(T)}, {v(T+1)}
            v_fma_f32 {v(T+3)}, {v(XU+2*p+1)}, {v(T)}, {v(T+1)}
            v_mul_f32 {v(SU+2*p)}, {v(SU+2*p)}, {v(T+2)}
            v_mul_f32 {v(SU+2*p+1)}, {v(SU+2*p+1)}, {v(T+3)}
            """)
        P2 = []
        for p in range(10):
            P2 += I(f"""
            v_lshlrev_b32 {v(T+4)}, 16, {v(B+p)}
            v_and_b32 {v(T+5)}, 0xffff0000, {v(B+p)}
            v_add_f32 {v(PP+2*p)}, {v(PP+2*p)}, {v(PP+20+2*p)}
            v_add_f32 {v(PP+2*p+1)}, {v(PP+2*p+1)}, {v(PP+21+2*p)}
            v_add_f32 {v(T+4)}, {v(T+4)}, {v(PP+40+2*p)}
            v_add_f32 {v(T+5)}, {v(T+5)}, {v(PP+41+2*p)}
            v_add_f32 {v(PP+2*p)}, {v(PP+2*p)}, {v(T+4)}
            v_add_f32 {v(PP+2*p+1)}, {v(PP+2*p+1)}, {v(T+5)}
            """)
        return L, P2
    def f_final(self):
        ACC = self.G2_ACC[1]; PP = self.F_PP
        XU, SU, T, X = self.F_XU, self.F_Y, self.F_T, self.F_X
        L = I(f's_mov_b32 {s(S_T0)}, {f2h(-1.4426950408889634)}')
        for ct in range(5):
            for h in range(2):
                p = 2 * ct + h
                U = T + 2 + 2 * (p & 1) + 4
                L += I(f"""
                v_pk_add_f32 {v(ACC+2*p,2)}, {v(ACC+2*p,2)}, {v(PP+2*p,2)}
                v_mul_f32 {v(U)}, {s(S_T0)}, {v(ACC+2*p)}
                v_mul_f32 {v(U+1)}, {s(S_T0)}, {v(ACC+2*p+1)}
                v_exp_f32 {v(U)}, {v(U)}
                v_exp_f32 {v(U+1)}, {v(U+1)}
                v_add_f32 {v(U)}, 1.0, {v(U)}
                v_add_f32 {v(U+1)}, 1.0, {v(U+1)}
                v_rcp_f32 {v(U)}, {v(U)}
                v_rcp_f32 {v(U+1)}, {v(U+1)}
                v_pk_mul_f32 {v(U,2)}, {v(U,2)}, {v(ACC+2*p,2)}
                v_pk_fma_f32 {v(U,2)}, {v(U,2)}, {v(SU+2*p,2)}, {v(XU+2*p,2)}
                v_cvt_pk_bf16_f32 {v(X+p)}, {v(U)}, {v(U+1)}
                """)
            L += I(f'buffer_store_dwordx2 {v(X+2*ct,2)}, v11, {s(SRD_OUT,4)}, 0 offen offset:{32*ct}')
        return L
    def g2_main(self, first_unloaded, mid):
        out = []
        nxt = first_unloaded
        pre1, pre2 = self.f_pre()
        for sg in range(4):
            ACC = self.G2_ACC[sg & 1]
            for kk in range(12):
                n = sg * 12 + kk
                M = []
                for ct in range(5):
                    c = '0' if kk == 0 else v(ACC + 4 * ct, 4)
                    M.append(Ins(f'v_mfma_f32_16x16x32_bf16 {v(ACC+4*ct,4)}, {a_(20*kk+4*ct,4)}, {v(self.hreg(n),4)}, {c}'))
                B = []
                cnt = 0
                while nxt < 48 and nxt - self.G2_NR <= n - 1 and cnt < 1 and (nxt - first_unloaded) <= n:
                    B.append(self.g2_hload(nxt)); nxt += 1; cnt += 1
                B += mid.get(n, [])
                if sg >= 1 and kk == 1:
                    P = self.G2_ACC[(sg - 1) & 1]
                    B += [Ins(f'ds_write_b128 {v(self.G2_RA+sg-1)}, {v(P+4*ct,4)} offset:{1024*ct}') for ct in range(5)]
                if sg == 3 and kk == 3:
                    B += [waitlds()] + I('s_barrier')
                    for sp in range(3):
                        for ct in range(5):
                            B.append(Ins(f'ds_read_b128 {v(self.F_PP + 4*(5*sp+ct), 4)}, v8 offset:{5120*sp + 1024*ct}'))
                if sg == 3 and 4 <= kk < 8:
                    k = kk - 4; m = (len(pre2) + 3) // 4
                    B += pre2[k*m:(k+1)*m]
                if sg == 3 and 8 <= kk < 12:
                    k = kk - 8; m = (len(pre1) + 3) // 4
                    B += pre1[k*m:(k+1)*m]
                if kk == 0 or n in (1, 4): out += self.ts('g2 n%d' % n)
                out += merge(M, B)
        assert nxt == 48
        return out

TSNAMES = {}
def build_role(role, o):
    g = Gen(role, o)
    L = []
    def ts(name): return g.ts(name)
    L += ts('entry')
    if o.get('ts'): L += I('s_memrealtime s[6:7]\ns_waitcnt lgkmcnt(0)\nv_writelane_b32 v19, s6, 62')
    L += g.prologue()
    first = [(SRD_Q, P_Q, S*D*2), (SRD_K, P_K, S*D*2), (SRD_V, P_V, S*D*2), (SRD_WS, P_WS, WS_BYTES), (SRD_W1, P_W1, D*F*2)]
    if role == 'A': first += [(SRD_W2, P_W2, D*F*2)]
    rest = [(SRD_OUT, P_OUT, S*D*2)] + ([(SRD_H, P_SSMK, S*D*2)] if role == 'A' else [])
    L += g.srds(first)
    L += I(f's_load_dword {s(S_EPOCH)}, {s(P_WS,2)}, {WS_EPOCH}')
    L += ts('prologue')
    L += g.p_kv_load()
    L += g.g1_setup(20)
    L += g.g1_dma(0)
    if role == 'A': L += g.p_w2_load(240)
    L += ts('P loads')
    pk1, pk2 = g.p_kv_compute()
    L += merge_time(g.srds(rest) + g.g1_setup2(20) + g.g1_init() + pk1, g.g1_dma(1) + g.g1_dma(2), 0.05, 1.0)
    L += ts('pk1 done')
    L += g.p_stat_load(228)
    L += [waitlds()] + I('s_barrier') + pk2 + g.make_tag()
    L += ts('P done')
    bg = {c: [] for c in range(10)}
    bgv = {c: [] for c in range(10)}
    for c in range(0, 7): bgv[c] += g.g1_dma(c + 3)
    bg[0] += I(f"""
        s_mul_i32 {s(S_T0)}, {s(S_FS)}, 192
        v_and_b32 v121, 31, v1
        v_lshl_add_u32 v121, v121, 1, {s(S_T0)}
        global_load_ushort v118, v121, {s(P_B1,2)}
        global_load_ushort v119, v121, {s(P_B1,2)} offset:64
        global_load_ushort v120, v121, {s(P_B1,2)} offset:128
        """)
    if role == 'A': bg[0] += g.p_w2_store(240, [144, 148, 152, 156, 160])
    bg[1] += g.p_stat_compute(228)
    bg[3] += [waitvm('wstore'), waitvm('pstore')]
    bg[4] = g.set_flag(WS_FLAG_P, f's_mov_b32 {s(S_T0)}, {s(S_ID)}', 124, 125) + bg[4]
    comb = I(f"""
        s_mul_i32 {s(S_T0)}, {s(S_CS)}, 12
        s_mul_i32 {s(S_T1)}, {s(S_WAVE)}, 3
        s_add_u32 {s(S_T0)}, {s(S_T0)}, {s(S_T1)}
        v_min_u32 v126, 2, v1
        v_add_u32 v126, {s(S_T0)}, v126
        s_lshl_b32 {s(S_T0)}, {s(S_T)}, 7
        s_lshl_b32 {s(S_T1)}, {s(S_WAVE)}, 5
        s_add_u32 {s(S_T0)}, {s(S_T0)}, {s(S_T1)}
        s_and_b32 {s(S_T1)}, {s(S_T0)}, 0xf8
        s_lshr_b32 {s(S_T0)}, {s(S_T0)}, 8
        s_add_u32 {s(S_T0)}, {s(S_T0)}, {s(S_T1)}
        v_and_b32 v127, 3, v1
        v_lshlrev_b32 v127, 3, v127
        v_add_u32 v127, {s(S_T0)}, v127
        v_lshrrev_b32 v125, 2, v1
        v_cmp_eq_u32 vcc, 1, v125
        v_cndmask_b32 v126, v126, v127, vcc
        """)
    if role == 'A':
        comb += I(f"""
        s_mul_i32 {s(S_T0)}, {s(S_ID)}, 3277
        s_lshr_b32 {s(S_T0)}, {s(S_T0)}, 16
        s_lshl_b32 {s(S_T0)}, {s(S_T0)}, 3
        v_and_b32 v127, 3, v1
        v_lshlrev_b32 v127, 6, v127
        v_bfe_u32 v125, v1, 2, 3
        v_add_u32 v127, v127, v125
        v_add_u32 v127, {s(S_T0)}, v127
        v_cmp_lt_u32 vcc, 31, v1
        v_cndmask_b32 v126, v126, v127, vcc
        """)
    comb += I(f"""
        v_lshlrev_b32 v126, 6, v126
        v_add_u32 v126, {WS_FLAG_P}, v126
        buffer_load_dword v127, v126, {s(SRD_WS,4)}, 0 offen sc1
        """)
    bg[6] += comb
    w2l = [g.w2_load(n, 139) for n in range(60)]
    k = 0
    stat_ld = I(f"""
        s_lshl_b32 {s(S_T0)}, {s(S_T)}, 7
        s_lshl_b32 {s(S_T1)}, {s(S_WAVE)}, 5
        s_add_u32 {s(S_T0)}, {s(S_T0)}, {s(S_T1)}
        v_and_b32 v126, 31, v1
        v_add_u32 v126, {s(S_T0)}, v126
        v_lshlrev_b32 v126, 3, v126
        v_add_u32 v126, {WS_STATS}, v126
        buffer_load_dwordx2 v[116:117], v126, {s(SRD_WS,4)}, 0 offen sc1
        """)
    if role == 'A':
        bg[2] += g.c_hload()
        pa = g.c_prep_addr()
        bg[3] = pa + bg[3]
        bg[5] += g.c_prep_regs()
    bg[8] += g.poll(127, 126, 'p') + g.w2_setup(139) + stat_ld
    if role == 'A':
        bg[8] += g.c_xload()
        bg[7] += g.g2_setup()
        cw = g.c_write_copies()
        bg[8] = cw[:9] + bg[8]
        bg[9] += cw[9:]
        per = {9: 6}
    else:
        per = {9: 7}
    for c in sorted(per):
        for _ in range(per[c]): bgv[c] += w2l[k]; k += 1
    if o.get('x_nobg'):
        for c in range(10): bg[c] = []
    if o.get('x_nopk'):
        for c in (2, 3, 4): bg[c] = [i for i in bg[c] if i.kind in ('waitvm',) or i.tag == 'flag']
    if o.get('x_stop'):
        L += g.g1_main(bg, bgv) + ts('G1 main done') + [waitvmall()] + ts('end')
        L += I(f"""
        s_lshl_b32 {s(S_T0)}, {s(S_ID)}, 10
        s_lshl_b32 {s(S_T1)}, {s(S_WAVE)}, 8
        s_add_u32 {s(S_T0)}, {s(S_T0)}, {s(S_T1)}
        s_add_u32 {s(S_T0)}, {s(S_T0)}, {WS_TS}
        v_lshlrev_b32 v2, 2, v1
        buffer_store_dword v19, v2, {s(SRD_WS,4)}, {s(S_T0)} offen
        s_endpgm
        """)
        TSNAMES[role] = g.tsnames
        st = Stream(); st.ins = L
        return render(finalize(st)) + ''.join(g.tail)
    L += g.g1_main(bg, bgv)
    L += ts('G1 main done')
    gflag = g.set_flag(WS_FLAG_G, f's_lshl_b32 {s(S_T0)}, {s(S_T)}, 4\ns_add_u32 {s(S_T0)}, {s(S_T0)}, {s(S_FS)}', 16, 17)
    hflag_idx = f's_lshr_b32 {s(S_T0)}, {s(S_T64)}, 1\ns_lshl_b32 {s(S_T0)}, {s(S_T0)}, 4\ns_lshl_b32 {s(S_T1)}, {s(S_WAVE)}, 2\ns_add_u32 {s(S_T0)}, {s(S_T0)}, {s(S_T1)}'
    if role == 'A':
        e_bg = []
        for _ in range(7): e_bg += w2l[k]; k += 1
        L += g.g1_epilogue(e_bg, g.c_xwrite())
        L += ts('G1 epilogue')
        cb = {q: [] for q in range(8)}
        cb[1] += [waitvm('hstore')] + I('s_barrier') + gflag
        rem = 60 - k
        qi = 0
        for j in range(rem):
            cb[j * 6 // rem] += w2l[k]; k += 1
        cb[4] += g.flag_load(WS_FLAG_G, hflag_idx, 'v_and_b32 v13, 3, v1', 13, 14)
        cb[6] += g.poll(14, 13, 'g1')
        NPRE = 12
        hp = [g.g2_hload(n) for n in range(NPRE)]
        cb[6] += hp[:6]; cb[7] += hp[6:]
        L += g.c_main(cb)
        L += ts('conv main')
        L += g.c_post()
        cflag = [waitvm('ystore')] + I('s_barrier') + g.set_flag(WS_FLAG_C, f's_mov_b32 {s(S_T0)}, {s(S_ID)}', 16, 17)
        first_unl = NPRE
    else:
        e_bg = []
        for _ in range(6): e_bg += w2l[k]; k += 1
        L += g.g1_epilogue(e_bg)
        L += ts('G1 epilogue')
        L += g.g2_setup()
        L += [waitvm('hstore')] + I('s_barrier') + gflag
        while k < 60: L += w2l[k]; k += 1
        L += g.flag_load(WS_FLAG_G, hflag_idx, 'v_and_b32 v13, 3, v1', 13, 14)
        L += g.poll(14, 13, 'g1')
        L += ts('G1 flags')
        L += [g.g2_hload(n) for n in range(38)]
        cflag = I('s_barrier')
        first_unl = 38
    L += ts('G2 start')
    mid = {}
    fl = g.f_loads()
    mid[3] = fl[:11]
    for j in range(4): mid[5 + 2*j] = [fl[11 + j]]
    for j in range(5): mid[13 + 2*j] = [fl[15 + j]]
    mid[23] = fl[20:]
    mid[10] = cflag
    mid[16] = I(f"""
        s_cmp_eq_u32 {s(S_ID)}, 0
        s_cselect_b32 {s(S_T4)}, {s(S_TAG)}, 0
        s_cselect_b32 {s(S_T5)}, 0, {OOB}
        s_lshl_b32 {s(S_T0)}, {s(S_WAVE)}, 6
        v_add_u32 v15, {s(S_T0)}, v1
        v_lshlrev_b32 v15, 6, v15
        v_add_u32 v15, {WS_FLAG_P}, v15
        v_or_b32 v15, {s(S_T5)}, v15
        buffer_load_dword v18, v15, {s(SRD_WS,4)}, 0 offen sc1
        """)
    mid[24] = g.poll(18, 15, 'tk', exp=S_T4)
    epoch_store = I(f"""
        v_mov_b32 v18, {OOB}
        v_mov_b32 v15, {s(S_T5)}
        v_cmp_eq_u32 vcc, 0, v0
        v_cndmask_b32 v15, v18, v15, vcc
        v_mov_b32 v18, {s(S_TAG)}
        buffer_store_dword v18, v15, {s(SRD_WS,4)}, 0 offen sc1
        """)
    mid[44] = epoch_store
    mid[26] = g.flag_load(WS_FLAG_C, f's_mul_i32 {s(S_T0)}, {s(S_CS)}, 20', 'v_min_u32 v13, 19, v1', 13, 14)
    yl = g.f_yloads()
    mid[31] = g.poll(14, 13, 'y') + yl[:9]
    for j, n in enumerate(range(32, 37)): mid[n] = yl[9 + 7*j: 9 + 7*(j+1)]
    mid[36] += yl[9 + 35:]
    L += g.g2_main(first_unl, mid)
    L += ts('G2 main done')
    L += g.f_final()
    L += ts('F done')
    if o.get('ts'):
        L += [waitvmall()] + ts('end')
        L += I('s_memrealtime s[6:7]\ns_waitcnt lgkmcnt(0)\nv_writelane_b32 v19, s6, 63')
        L += I(f"""
        s_lshl_b32 {s(S_T0)}, {s(S_ID)}, 10
        s_lshl_b32 {s(S_T1)}, {s(S_WAVE)}, 8
        s_add_u32 {s(S_T0)}, {s(S_T0)}, {s(S_T1)}
        s_add_u32 {s(S_T0)}, {s(S_T0)}, {WS_TS}
        v_lshlrev_b32 v2, 2, v1
        buffer_store_dword v19, v2, {s(SRD_WS,4)}, {s(S_T0)} offen
        """)
        TSNAMES[role] = g.tsnames
    L += I('s_endpgm')
    st = Stream(); st.ins = L
    return render(finalize(st)) + ''.join(g.tail)

HEADER = """; Kernarg layout (112 bytes, ptrs only): q k v shift_k ssm_k ssm_D B_x w1 b1 w2 b2 out debug ws
; @launch grid=(256,1,1) block=(256,1,1) lds=163840
.amdgcn_target "amdgcn-amd-amdhsa--gfx950"
.text
.globl {n}_kernel
.p2align 8
.type {n}_kernel,@function
{n}_kernel:
"""
FOOTER = """
.section .rodata,"a"
.p2align 6
.amdhsa_kernel {n}_kernel
  .amdhsa_next_free_vgpr 512
  .amdhsa_next_free_sgpr 102
  .amdhsa_accum_offset 256
  .amdhsa_group_segment_fixed_size 0
  .amdhsa_kernarg_size 112
  .amdhsa_user_sgpr_count 2
  .amdhsa_user_sgpr_kernarg_segment_ptr 1
  .amdhsa_system_sgpr_workgroup_id_x 1
.end_amdhsa_kernel
"""
def build(o):
    txt = HEADER.format(n=NAME)
    txt += f"""    s_cmp_ge_u32 s2, 256
    s_cbranch_scc1 L_exit
    s_cmp_ge_u32 s2, {NA}
    s_cbranch_scc1 L_roleB
"""
    txt += build_role('A', o)
    txt += "L_exit:\n    s_endpgm\n.p2align 6\nL_roleB:\n"
    txt += build_role('B', o)
    txt += FOOTER.format(n=NAME)
    return txt

if __name__ == '__main__':
    o = {k: True for k in sys.argv[2:]}
    out = sys.argv[1] if len(sys.argv) > 1 else 'k.s'
    open(out, 'w').write(build(o))
    if o.get('ts'): json.dump(TSNAMES, open(out + '.ts.json', 'w'))
    print("wrote", out)
```

```python
import sys, struct, json
from asmlib import *

NAME = "recurrent_scan__ssm_conv_h3__dense_activation_squared_relu__prompt"
S, D, F = 2048, 640, 1536
def f2h(x): return '0x%08x' % struct.unpack('<I', struct.pack('<f', x))[0]

WS_EPOCH = 0
WS_FLAG_P = 0x1000
WS_FLAG_G = 0x5000
WS_FLAG_C = 0x9000
WS_FLAG_W = 0xC000
WS_STATS = 0x10000
WS_KVT = 0x100000
WS_YT = 0x400000
WS_H = 0x800000
WS_W2T = 0x1000000
WS_TS = 0x1300000
WS_BYTES = 0x1400000
NA = 160

def v(a, n=1): return 'v%d' % a if n == 1 else 'v[%d:%d]' % (a, a + n - 1)
def a_(a, n=1): return 'a%d' % a if n == 1 else 'a[%d:%d]' % (a, a + n - 1)
def s(a, n=1): return 's%d' % a if n == 1 else 's[%d:%d]' % (a, a + n - 1)

S_ID, S_WAVE, S_TAG = 2, 4, 5
SRD_Q, SRD_K, SRD_V, SRD_W1, SRD_W2, SRD_H, SRD_OUT, SRD_WS = 8, 12, 16, 20, 24, 28, 32, 36
P_Q, P_K, P_V, P_SHK, P_SSMK, P_SSMD, P_BX, P_W1, P_B1, P_W2, P_B2, P_OUT, P_DBG, P_WS = [40 + 2 * i for i in range(14)]
S_T, S_FS, S_T64, S_CS = 68, 69, 70, 71
S_PK, S_DIS = 72, 77
S_XOFF, S_WOFF, S_XM0, S_WM0 = 73, 74, 75, 76
S_W2OFF = 78
S_SPIN = 79
S_T0, S_T1, S_T2, S_T3, S_T4, S_T5 = 80, 81, 82, 83, 84, 85
S_ONES, S_EPOCH = 86, 87
S_MASK = 88
S_DVAL = 90
S_CB = 91
S_HOFF = 92
SRD_DBG = 96
OOB = 0x80000000

def I(text, tag=None): return [Ins(l.strip(), tag=tag) for l in text.strip('\n').split('\n') if l.split(';')[0].strip()]
def waitvm(tag):
    w = Ins('; waitvm'); w.kind = 'waitvm'; w.tag = tag; return w
def waitlds():
    w = Ins('; waitlds'); w.kind = 'waitlds'; return w
def waitvmall():
    w = Ins('; waitvmall'); w.kind = 'waitvmall'; return w

def weight(i):
    if i.kind in ('vmem', 'vmem_st'):
        return 12 if ('x4' in i.op) else 4
    if i.kind in ('waitvm', 'waitlds', 'waitvmall', 'label'): return 0
    return 1

def merge(main, bg, lo=0.0, hi=1.0):
    if not bg: return list(main)
    pos = [k for k, i in enumerate(main) if i.is_mfma()]
    if not pos: pos = list(range(len(main)))
    n = len(pos)
    a, b = int(lo * n), max(int(hi * n), int(lo * n) + 1)
    slots = pos[a:b]
    tot = sum(weight(i) for i in bg) or 1
    after = {}
    cum = 0
    for i in bg:
        k = min(int(cum * len(slots) / tot), len(slots) - 1)
        after.setdefault(slots[k], []).append(i)
        cum += weight(i)
    out = []
    for k, i in enumerate(main):
        out.append(i)
        out += after.get(k, [])
    return out

def est_times(stream):
    t = 0; pipe = 0; out = []
    for i in stream:
        if i.is_mfma():
            t = max(t, pipe); out.append(t)
            pipe = t + (32 if i.kind == 'mfma32' else 16); t += 8
        elif i.kind in ('waitvm', 'waitlds', 'waitvmall', 'label'):
            out.append(t)
        else:
            out.append(t); t += 8 if i.kind == 'trans' else 4
    return out, max(t, pipe)

def merge_time(stream, vm, lo=0.0, hi=1.0):
    if not vm: return list(stream)
    groups = []; cur = []
    for i in vm:
        cur.append(i)
        if i.kind in ('vmem', 'vmem_st'):
            groups.append(cur); cur = []
    if cur:
        if groups: groups[-1] += cur
        else: groups.append(cur)
    times, total = est_times(stream)
    n = len(groups)
    tgt = [total * (lo + (hi - lo) * (k + 0.0) / n) for k in range(n)]
    out = []; k = 0
    for i, t in zip(stream, times):
        while k < n and t >= tgt[k]:
            out += groups[k]; k += 1
        out.append(i)
    while k < n:
        out += groups[k]; k += 1
    return out

class Gen:
    def __init__(self, role, o):
        self.role = role; self.o = o; self.lab = 0; self.tail = []; self.tsnames = []
    def label(self, base):
        self.lab += 1
        return 'L%s_%s%d' % (self.role, base, self.lab)
    def ts(self, name):
        if not self.o.get('ts') or len(self.tsnames) >= 62: return []
        k = len(self.tsnames); self.tsnames.append(name)
        return I(f's_memtime s[6:7]\ns_waitcnt lgkmcnt(0)\nv_writelane_b32 v19, s6, {k}')

    def flag_load(self, base, sidx_code, lane_code, vaddr, vflag):
        return I(sidx_code) + I(lane_code) + I(f"""
        v_add_u32 {v(vaddr)}, {s(S_T0)}, {v(vaddr)}
        v_lshlrev_b32 {v(vaddr)}, 6, {v(vaddr)}
        v_add_u32 {v(vaddr)}, {base}, {v(vaddr)}
        buffer_load_dword {v(vflag)}, {v(vaddr)}, {s(SRD_WS,4)}, 0 offen sc1
        """)
    def poll(self, vflag, vaddr, nm, exp=None, srd=None):
        exp = S_TAG if exp is None else exp
        srd = SRD_WS if srd is None else srd
        L = self.label('slow' + nm); Lb = self.label('back' + nm)
        br = Ins('s_cbranch_vccnz %s' % L); br.text += '\n%s:' % Lb
        self.tail.append(f"""{L}:
    s_mov_b32 {s(S_SPIN)}, 0
{L}_l:
    s_sleep 1
    buffer_load_dword {v(vflag)}, {v(vaddr)}, {s(srd,4)}, 0 offen sc1
    s_add_u32 {s(S_SPIN)}, {s(S_SPIN)}, 1
    s_cmp_gt_u32 {s(S_SPIN)}, 0x8000
    s_cbranch_scc1 {L}_x
    s_waitcnt vmcnt(0)
    v_cmp_ne_u32 vcc, {s(exp)}, {v(vflag)}
    s_nop 4
    s_cbranch_vccnz {L}_l
{L}_x:
    s_waitcnt vmcnt(0)
    s_nop 7
    s_branch {Lb}
""")
        return I('v_cmp_ne_u32 vcc, %s, %s' % (s(exp), v(vflag))) + [br]
    def set_flag(self, base, idx_code, t1, t2):
        return I(idx_code) + I(f"""
        s_lshl_b32 {s(S_T0)}, {s(S_T0)}, 6
        s_add_u32 {s(S_T0)}, {s(S_T0)}, {base}
        v_mov_b32 {v(t1)}, {s(S_T0)}
        v_mov_b32 {v(t2)}, {OOB}
        v_cmp_eq_u32 vcc, 0, v0
        v_cndmask_b32 {v(t1)}, {v(t2)}, {v(t1)}, vcc
        v_mov_b32 {v(t2)}, {s(S_TAG)}
        buffer_store_dword {v(t2)}, {v(t1)}, {s(SRD_WS,4)}, 0 offen sc1
        """, tag='flag')

    def prologue(self):
        L = I(f"""
        s_load_dwordx16 s[40:55], s[0:1], 0
        s_load_dwordx8 s[56:63], s[0:1], 64
        s_load_dwordx4 s[64:67], s[0:1], 96
        v_and_b32 v1, 63, v0
        v_lshrrev_b32 v2, 6, v0
        s_and_b32 {s(S_T0)}, {s(S_ID)}, 7
        s_lshr_b32 {s(S_T1)}, {s(S_ID)}, 3
        v_readfirstlane_b32 {s(S_WAVE)}, v2
        s_lshr_b32 {s(S_T2)}, {s(S_T0)}, 1
        s_lshl_b32 {s(S_T2)}, {s(S_T2)}, 2
        s_lshr_b32 {s(S_T3)}, {s(S_T1)}, 3
        s_add_u32 {s(S_T)}, {s(S_T2)}, {s(S_T3)}
        s_and_b32 {s(S_T2)}, {s(S_T0)}, 1
        s_lshl_b32 {s(S_T2)}, {s(S_T2)}, 3
        s_and_b32 {s(S_CS)}, {s(S_T1)}, 7
        s_add_u32 {s(S_FS)}, {s(S_T2)}, {s(S_CS)}
        s_lshl_b32 {s(S_T64)}, {s(S_T0)}, 2
        s_add_u32 {s(S_T64)}, {s(S_T64)}, {s(S_T3)}
        s_mov_b32 {s(S_ONES)}, 0x3f803f80
        """)
        return L
    def srds(self, lst):
        L = []
        for srd, p, n in lst:
            L += I(f"""
            s_mov_b32 {s(srd)}, {s(p)}
            s_mov_b32 {s(srd+1)}, {s(p+1)}
            s_mov_b32 {s(srd+2)}, {n}
            s_mov_b32 {s(srd+3)}, 0x20000
            """)
        return L
    def make_tag(self):
        return I(f"""
        s_mul_i32 {s(S_TAG)}, {s(S_EPOCH)}, 0x9e3779b1
        s_add_u32 {s(S_TAG)}, {s(S_TAG)}, 0x7f4a7c15
        """)

    def p_stat_load(self, R):
        return I(f"""
        s_and_b32 {s(S_T0)}, {s(S_ID)}, 7
        s_lshl_b32 {s(S_T0)}, {s(S_T0)}, 8
        s_and_b32 {s(S_T1)}, {s(S_ID)}, -8
        s_add_u32 {s(S_T0)}, {s(S_T0)}, {s(S_T1)}
        s_lshl_b32 {s(S_T1)}, {s(S_WAVE)}, 1
        s_add_u32 {s(S_T0)}, {s(S_T0)}, {s(S_T1)}
        v_lshrrev_b32 {v(R+12)}, 5, v1
        v_add_u32 {v(R+12)}, {s(S_T0)}, {v(R+12)}
        v_and_b32 {v(R+13)}, 31, v1
        v_mul_u32_u24 {v(R+10)}, 1280, {v(R+12)}
        v_lshl_add_u32 {v(R+11)}, {v(R+13)}, 3, {v(R+10)}
        v_lshl_add_u32 {v(R+10)}, {v(R+13)}, 4, {v(R+10)}
        buffer_load_dwordx4 {v(R,4)}, {v(R+10)}, {s(SRD_Q,4)}, 0 offen
        buffer_load_dwordx4 {v(R+4,4)}, {v(R+10)}, {s(SRD_Q,4)}, 0 offen offset:512
        buffer_load_dwordx2 {v(R+8,2)}, {v(R+11)}, {s(SRD_Q,4)}, 0 offen offset:1024
        """)
    def p_stat_compute(self, R):
        A, B, T, U = R + 14, R + 15, R + 16, R + 17
        assert A % 2 == 0
        L = I(f'v_mov_b32 {v(A)}, 0\nv_mov_b32 {v(B)}, 0')
        for i in range(10):
            L += I(f'v_dot2c_f32_bf16 {v(A)}, {s(S_ONES)}, {v(R+i)}\nv_dot2c_f32_bf16 {v(B)}, {v(R+i)}, {v(R+i)}')
        for rot in (8, 4, 2, 1):
            L += I(f'v_add_f32_dpp {v(A)}, {v(A)}, {v(A)} row_ror:{rot} row_mask:0xf bank_mask:0xf')
            L += I(f'v_add_f32_dpp {v(B)}, {v(B)}, {v(B)} row_ror:{rot} row_mask:0xf bank_mask:0xf')
        L += I(f"""
        v_mov_b32 {v(T)}, {v(A)}
        v_mov_b32 {v(U)}, {v(B)}
        v_permlane16_swap_b32 {v(A)}, {v(T)}
        v_permlane16_swap_b32 {v(B)}, {v(U)}
        v_add_f32 {v(A)}, {v(A)}, {v(T)}
        v_add_f32 {v(B)}, {v(B)}, {v(U)}
        v_mul_f32 {v(A)}, {f2h(1.0/640)}, {v(A)}
        v_mul_f32 {v(B)}, {f2h(1.0/640)}, {v(B)}
        v_fma_f32 {v(B)}, -{v(A)}, {v(A)}, {v(B)}
        v_max_f32 {v(B)}, 0, {v(B)}
        v_cvt_pk_bf16_f32 {v(A)}, {v(A)}, {v(B)}
        v_and_b32 {v(B)}, 0xffff0000, {v(A)}
        v_lshlrev_b32 {v(A)}, 16, {v(A)}
        v_add_f32 {v(B)}, {f2h(1e-5)}, {v(B)}
        v_cvt_pk_bf16_f32 {v(B)}, {v(B)}, {v(B)}
        v_lshlrev_b32 {v(B)}, 16, {v(B)}
        v_sqrt_f32 {v(B)}, {v(B)}
        v_cvt_pk_bf16_f32 {v(B)}, {v(B)}, {v(B)}
        v_lshlrev_b32 {v(B)}, 16, {v(B)}
        v_lshlrev_b32 {v(T)}, 3, {v(R+12)}
        v_add_u32 {v(T)}, {WS_STATS}, {v(T)}
        v_mov_b32 {v(U)}, {OOB}
        v_cmp_eq_u32 vcc, 0, {v(R+13)}
        v_cndmask_b32 {v(T)}, {v(U)}, {v(T)}, vcc
        """)
        L += I(f'buffer_store_dwordx2 {v(A,2)}, {v(T)}, {s(SRD_WS,4)}, 0 offen sc1', tag='wstore')
        return L

    PK_K, PK_V, PK_W, PK_A, PK_T, PK_OUT = 144, 172, 188, 204, 214, 128
    PT = 114688
    def p_kv_load(self):
        K, V_, W, A = self.PK_K, self.PK_V, self.PK_W, self.PK_A
        L = I(f"""
        v_mul_u32_u24 {v(A+9)}, 6554, v0
        v_lshrrev_b32 {v(A+9)}, 16, {v(A+9)}
        v_mul_u32_u24 {v(A+8)}, 10, {v(A+9)}
        v_sub_u32 {v(A+8)}, v0, {v(A+8)}
        s_lshl_b32 {s(S_T0)}, {s(S_T64)}, 6
        s_sub_u32 {s(S_T0)}, {s(S_T0)}, 3
        s_mul_i32 {s(S_T1)}, {s(S_CS)}, 160
        v_lshlrev_b32 {v(A)}, 2, {v(A+9)}
        v_add_u32 {v(A)}, {s(S_T0)}, {v(A)}
        v_mul_i32_i24 {v(A)}, 1280, {v(A)}
        v_lshl_add_u32 {v(A+1)}, {v(A+8)}, 4, {s(S_T1)}
        v_add_u32 {v(A)}, {v(A)}, {v(A+1)}
        v_mov_b32 {v(A+1)}, {OOB}
        v_cmp_gt_u32 vcc, 160, v0
        v_cndmask_b32 {v(A)}, {v(A+1)}, {v(A)}, vcc
        """)
        for i in range(1, 7): L += I(f'v_add_u32 {v(A+i)}, {1280*i}, {v(A)}')
        for i in range(7): L += I(f'buffer_load_dwordx4 {v(K+4*i,4)}, {v(A+i)}, {s(SRD_K,4)}, 0 offen')
        for i in range(4): L += I(f'buffer_load_dwordx4 {v(V_+4*i,4)}, {v(A+3+i)}, {s(SRD_V,4)}, 0 offen')
        L += I(f"""
        s_mul_i32 {s(S_T1)}, {s(S_CS)}, 640
        v_lshl_add_u32 {v(A+7)}, {v(A+8)}, 6, {s(S_T1)}
        """)
        for i in range(4): L += I(f'global_load_dwordx4 {v(W+4*i,4)}, {v(A+7)}, {s(P_SHK,2)} offset:{16*i}')
        return L
    def p_kv_compute(self, packed=True):
        K, V_, W, A, T = self.PK_K, self.PK_V, self.PK_W, self.PK_A, self.PK_T
        KU, VU, WU, AC, OUT = T, T + 14, T + 22, T + 30, self.PK_OUT
        L = []
        for dd in range(4):
            for r in range(7):
                L += I(f'v_lshlrev_b32 {v(KU+2*r)}, 16, {v(K+4*r+dd)}\nv_and_b32 {v(KU+2*r+1)}, 0xffff0000, {v(K+4*r+dd)}')
            for j in range(4):
                for h in range(2):
                    src = W + 4 * dd + 2 * h + (j >> 1)
                    L += I(f'v_and_b32 {v(WU+2*j+h)}, 0xffff0000, {v(src)}' if j & 1 else f'v_lshlrev_b32 {v(WU+2*j+h)}, 16, {v(src)}')
            for r in range(4):
                L += I(f'v_lshlrev_b32 {v(VU+2*r)}, 16, {v(V_+4*r+dd)}\nv_and_b32 {v(VU+2*r+1)}, 0xffff0000, {v(V_+4*r+dd)}')
            for t in range(4): L += I(f'v_pk_mul_f32 {v(AC+2*t,2)}, {v(KU+2*t,2)}, {v(WU+6,2)}')
            for j in (2, 1, 0):
                for t in range(4): L += I(f'v_pk_fma_f32 {v(AC+2*t,2)}, {v(KU+2*(t+3-j),2)}, {v(WU+2*j,2)}, {v(AC+2*t,2)}')
            for t in range(4): L += I(f'v_pk_mul_f32 {v(AC+2*t,2)}, {v(AC+2*t,2)}, {v(VU+2*t,2)}')
            for h in range(2):
                ch = 2 * dd + h
                L += I(f'v_cvt_pk_bf16_f32 {v(OUT+2*ch)}, {v(AC+h)}, {v(AC+2+h)}\nv_cvt_pk_bf16_f32 {v(OUT+2*ch+1)}, {v(AC+4+h)}, {v(AC+6+h)}')
        L += I(f"""
        v_and_b32 {v(T)}, 14, {v(A+8)}
        v_xor_b32 {v(T)}, {v(T)}, {v(A+9)}
        v_lshlrev_b32 {v(T)}, 3, {v(T)}
        v_lshl_add_u32 {v(T)}, {v(A+8)}, 10, {v(T)}
        v_mov_b32 {v(T+1)}, 12288
        v_cmp_gt_u32 vcc, 160, v0
        v_cndmask_b32 {v(T)}, {v(T+1)}, {v(T)}, vcc
        v_add_u32 {v(T)}, {self.PT}, {v(T)}
        """)
        for i in range(8): L += I(f'ds_write_b64 {v(T)}, {v(OUT+2*i,2)} offset:{128*i}')
        L1 = L
        L = I(f"""
        v_lshrrev_b32 {v(T)}, 3, v0
        v_and_b32 {v(T+1)}, 7, v0
        v_lshrrev_b32 {v(T+2)}, 6, v0
        v_lshlrev_b32 {v(T+4)}, 1, {v(T+1)}
        v_lshlrev_b32 {v(T+5)}, 7, {v(T)}
        v_add_u32 {v(T+5)}, {self.PT}, {v(T+5)}
        """)
        for i in range(3):
            L += I(f"""
            v_add_u32 {v(T+3)}, {4*i}, {v(T+2)}
            v_and_b32 {v(T+3)}, 14, {v(T+3)}
            v_xor_b32 {v(T+3)}, {v(T+3)}, {v(T+4)}
            v_lshl_add_u32 {v(T+3)}, {v(T+3)}, 3, {v(T+5)}
            ds_read_b128 {v(OUT+4*i,4)}, {v(T+3)} offset:{4096*i}
            """)
        L += I(f"""
        s_mul_i32 {s(S_T0)}, {s(S_CS)}, {80*4096}
        s_lshl_b32 {s(S_T1)}, {s(S_T64)}, 7
        s_add_u32 {s(S_T0)}, {s(S_T0)}, {s(S_T1)}
        s_add_u32 {s(S_T0)}, {s(S_T0)}, {WS_KVT}
        v_lshlrev_b32 {v(T+6)}, 12, {v(T)}
        v_lshl_add_u32 {v(T+6)}, {v(T+1)}, 4, {v(T+6)}
        v_add_u32 {v(T+7)}, {32*4096}, {v(T+6)}
        v_add_u32 {v(T+8)}, {64*4096}, {v(T+6)}
        v_mov_b32 {v(T+9)}, {OOB}
        v_cmp_gt_u32 vcc, 128, v0
        v_cndmask_b32 {v(T+8)}, {v(T+9)}, {v(T+8)}, vcc
        """)
        for i in range(3):
            L += I(f'buffer_store_dwordx4 {v(OUT+4*i,4)}, {v(T+6+i)}, {s(SRD_WS,4)}, {s(S_T0)} offen sc1', tag='pstore')
        return L1, L

    W2STG = 131072
    def p_w2_load(self, T):
        L = I(f"""
        s_cmp_lt_u32 {s(S_ID)}, 96
        s_cselect_b32 {s(S_DIS)}, 0, {OOB}
        s_min_u32 {s(S_T0)}, {s(S_ID)}, 95
        s_lshl_b32 {s(S_T0)}, {s(S_T0)}, 2
        s_add_u32 {s(S_T0)}, {s(S_T0)}, {s(S_WAVE)}
        s_mul_i32 {s(S_T1)}, {s(S_T0)}, 1366
        s_lshr_b32 {s(S_T1)}, {s(S_T1)}, 16
        s_mul_i32 {s(S_T2)}, {s(S_T1)}, 48
        s_sub_u32 {s(S_T2)}, {s(S_T0)}, {s(S_T2)}
        s_mul_i32 {s(S_T2)}, {s(S_T2)}, {32*1280}
        s_mul_i32 {s(S_T1)}, {s(S_T1)}, 160
        s_add_u32 {s(S_T2)}, {s(S_T2)}, {s(S_T1)}
        s_mul_i32 {s(S_W2OFF)}, {s(S_T0)}, 5120
        s_add_u32 {s(S_W2OFF)}, {s(S_W2OFF)}, {WS_W2T}
        s_mul_i32 {s(S_T3)}, {s(S_WAVE)}, 5120
        s_add_u32 {s(S_T3)}, {s(S_T3)}, {self.W2STG}
        s_mov_b32 {s(S_T1)}, 0x1999999a
        """)
        for n in range(5):
            comp = 1024 * n if n < 4 else 0
            L += I(f"""
            v_add_u32 {v(T)}, {64*n}, v1
            v_mul_hi_u32 {v(T+1)}, {v(T)}, {s(S_T1)}
            v_mul_u32_u24 {v(T+2)}, 10, {v(T+1)}
            v_sub_u32 {v(T+2)}, {v(T)}, {v(T+2)}
            v_mul_u32_u24 {v(T+1)}, 1280, {v(T+1)}
            v_lshl_add_u32 {v(T+1)}, {v(T+2)}, 4, {v(T+1)}
            v_subrev_u32 {v(T+8+n)}, {comp}, {v(T+1)}
            v_or_b32 {v(T+8+n)}, {s(S_DIS)}, {v(T+8+n)}
            """)
        L += I(f's_mov_b32 m0, {s(S_T3)}')
        for n in range(4): L += I(f'buffer_load_dwordx4 {v(T+8+n)}, {s(SRD_W2,4)}, {s(S_T2)} offen offset:{1024*n} lds', tag='w2slab')
        L += I(f's_add_u32 m0, {s(S_T3)}, 4096')
        L += I(f'buffer_load_dwordx4 {v(T+12)}, {s(SRD_W2,4)}, {s(S_T2)} offen lds', tag='w2slab')
        L += I(f"""
        v_bfe_u32 {v(T)}, v1, 5, 1
        v_lshlrev_b32 {v(T)}, 4, {v(T)}
        v_bfe_u32 {v(T+1)}, v1, 4, 1
        v_lshl_add_u32 {v(T)}, {v(T+1)}, 2, {v(T)}
        v_bfe_u32 {v(T+1)}, v1, 2, 2
        v_add_u32 {v(T)}, {v(T)}, {v(T+1)}
        v_mul_u32_u24 {v(T)}, 160, {v(T)}
        v_and_b32 {v(T+1)}, 3, v1
        v_lshl_add_u32 {v(T)}, {v(T+1)}, 3, {v(T)}
        v_add_u32 {v(T+13)}, {s(S_T3)}, {v(T)}
        v_lshlrev_b32 {v(T+14)}, 4, v1
        v_or_b32 {v(T+14)}, {s(S_DIS)}, {v(T+14)}
        """)
        return L
    def p_w2_store(self, T, R):
        L = [waitvm('w2slab')]
        for ct in range(5):
            for al in range(2): L += I(f'ds_read_b64_tr_b16 {v(R[ct]+2*al,2)}, {v(T+13)} offset:{al*1280 + ct*32}')
        for ct in range(5):
            if ct == 4:
                L += I(f's_add_u32 {s(S_W2OFF)}, {s(S_W2OFF)}, 4096')
                L += I(f'buffer_store_dwordx4 {v(R[ct],4)}, {v(T+14)}, {s(SRD_WS,4)}, {s(S_W2OFF)} offen sc1', tag='wstore')
            else:
                L += I(f'buffer_store_dwordx4 {v(R[ct],4)}, {v(T+14)}, {s(SRD_WS,4)}, {s(S_W2OFF)} offen offset:{1024*ct} sc1', tag='wstore')
        return L

    XST, WST, CSA = 0, 65536, 155648
    NST = 4
    G_XD, G_WD, G_XA, G_XB, G_WA, G_WC = 2, 6, 9, 13, 17, 18
    G_ACC, G_XF, G_WF, G_CSF, G_CS = 20, 68, 76, 100, 112
    G_ONE = 112
    def g1_setup(self, T):
        XD, WD, XA, XB, WA, WC = self.G_XD, self.G_WD, self.G_XA, self.G_XB, self.G_WA, self.G_WC
        L = I(f"""
        v_lshrrev_b32 {v(T)}, 3, v1
        v_and_b32 {v(T+1)}, 7, v1
        v_lshrrev_b32 {v(T+2)}, 4, v1
        s_lshl_b32 {s(S_T0)}, {s(S_WAVE)}, 5
        v_add_u32 {v(T)}, {s(S_T0)}, {v(T)}
        v_mul_u32_u24 {v(T)}, 1280, {v(T)}
        v_xor_b32 {v(T+3)}, {v(T+1)}, {v(T+2)}
        v_add_u32 {v(T+4)}, 4, {v(T+2)}
        v_xor_b32 {v(T+4)}, {v(T+1)}, {v(T+4)}
        v_lshl_add_u32 {v(XD)}, {v(T+3)}, 4, {v(T)}
        v_lshl_add_u32 {v(T+4)}, {v(T+4)}, 4, {v(T)}
        v_add_u32 {v(XD+1)}, {10240-1024}, {v(T+4)}
        v_add_u32 {v(XD+2)}, {20480-2048}, {v(XD)}
        v_add_u32 {v(XD+3)}, {30720-3072}, {v(T+4)}
        s_mul_i32 {s(S_XOFF)}, {s(S_T)}, 163840
        s_lshl_b32 {s(S_XM0)}, {s(S_WAVE)}, 12
        s_mul_i32 {s(S_WOFF)}, {s(S_FS)}, 192
        s_mul_i32 {s(S_WM0)}, {s(S_WAVE)}, 3072
        s_add_u32 {s(S_WM0)}, {s(S_WM0)}, {self.WST}
        s_mul_i32 {s(S_T0)}, {s(S_WAVE)}, 192
        s_mov_b32 {s(S_T1)}, 0x15555556
        """)
        for i in range(3):
            L += I(f"""
            v_add_u32 {v(T)}, {s(S_T0)}, v1
            v_add_u32 {v(T)}, {64*i}, {v(T)}
            v_mul_hi_u32 {v(T+1)}, {v(T)}, {s(S_T1)}
            v_mul_u32_u24 {v(T+2)}, 12, {v(T+1)}
            v_sub_u32 {v(T+2)}, {v(T)}, {v(T+2)}
            v_mul_u32_u24 {v(T+1)}, 3072, {v(T+1)}
            v_lshl_add_u32 {v(T+1)}, {v(T+2)}, 4, {v(T+1)}
            v_subrev_u32 {v(WD+i)}, {1024*i}, {v(T+1)}
            """)
        return L
    def g1_setup2(self, T):
        XA, XB, WA, WC = self.G_XA, self.G_XB, self.G_WA, self.G_WC
        L = I(f"""
        v_and_b32 {v(T)}, 31, v1
        v_lshrrev_b32 {v(T+1)}, 5, v1
        v_bfe_u32 {v(T+2)}, v1, 1, 3
        v_lshlrev_b32 {v(T)}, 7, {v(T)}
        v_add_u32 {v(T)}, {s(S_XM0)}, {v(T)}
        """)
        for ks in range(4):
            L += I(f"""
            v_add_u32 {v(T+3)}, {2*ks}, {v(T+1)}
            v_xor_b32 {v(T+3)}, {v(T+3)}, {v(T+2)}
            v_lshl_add_u32 {v(XA+ks)}, {v(T+3)}, 4, {v(T)}
            """)
        L += I(f"""
        v_lshrrev_b32 {v(T)}, 5, v1
        v_lshlrev_b32 {v(T)}, 3, {v(T)}
        v_bfe_u32 {v(T+1)}, v1, 2, 2
        v_add_u32 {v(T)}, {v(T)}, {v(T+1)}
        v_mul_u32_u24 {v(T)}, 192, {v(T)}
        v_bfe_u32 {v(T+1)}, v1, 4, 1
        v_lshl_add_u32 {v(T)}, {v(T+1)}, 5, {v(T)}
        v_and_b32 {v(T+1)}, 3, v1
        v_lshl_add_u32 {v(T)}, {v(T+1)}, 3, {v(T)}
        v_add_u32 {v(WA)}, {self.WST}, {v(T)}
        s_mul_i32 {s(S_T0)}, {s(S_WAVE)}, 3072
        v_add_u32 {v(WC)}, {s(S_T0)}, {v(WA)}
        """)
        return L
    def g1_dma(self, c):
        XD, WD = self.G_XD, self.G_WD
        stg = c % self.NST
        L = [f's_add_u32 m0, {s(S_XM0)}, {self.XST + stg*16384}']
        for i in range(4): L.append(f'buffer_load_dwordx4 {v(XD+i)}, {s(SRD_Q,4)}, {s(S_XOFF)} offen offset:{1024*i} lds')
        L.append(f's_add_u32 {s(S_XOFF)}, {s(S_XOFF)}, 128')
        L.append(f's_add_u32 m0, {s(S_WM0)}, {stg*12288}')
        for i in range(3): L.append(f'buffer_load_dwordx4 {v(WD+i)}, {s(SRD_W1,4)}, {s(S_WOFF)} offen offset:{1024*i} lds')
        L.append(f's_add_u32 {s(S_WOFF)}, {s(S_WOFF)}, {64*3072}')
        return [Ins(t, tag='g1c%d' % c) for t in L]
    def g1_reads(self, n):
        c, ks = n >> 2, n & 3
        stg = c % self.NST; b = n & 1
        XF, WF = self.G_XF + 4 * b, self.G_WF + 12 * b
        L = [f'ds_read_b128 {v(XF,4)}, {v(self.G_XA+ks)} offset:{stg*16384}']
        for ft in range(3):
            for al in range(2):
                L.append(f'ds_read_b64_tr_b16 {v(WF+4*ft+2*al,2)}, {v(self.G_WA)} offset:{stg*12288 + (16*ks+4*al)*192 + ft*64}')
        return [Ins(t) for t in L]
    def g1_cs_reads(self, c):
        stg = c % self.NST
        return [Ins(f'ds_read_b64_tr_b16 {v(self.G_CSF+4*ft+2*al,2)}, {v(self.G_WC)} offset:{stg*12288 + (4*al)*192 + ft*64}') for ft in range(3) for al in range(2)]
    def g1_cs_mfma(self, first):
        return [Ins(f'v_mfma_f32_32x32x16_bf16 {a_(208+16*ft,16)}, {v(self.G_ONE,4)}, {v(self.G_CSF+4*ft,4)}, ' + ('0' if first else a_(208+16*ft,16))) for ft in range(3)]
    def g1_init(self):
        L = []
        for i in range(48): L += I(f'v_mov_b32 {v(self.G_ACC+i)}, 0')
        for i in range(4): L += I(f'v_mov_b32 {v(self.G_ONE+i)}, {s(S_ONES)}')
        return L
    def g1_main(self, bg, bgv):
        ACC = self.G_ACC
        out = [waitvm('g1c0'), waitlds()] + I('s_barrier') + self.g1_reads(0)
        for c in range(10):
            main = []
            for ks in range(4):
                n = 4 * c + ks
                b = n & 1
                M = [Ins(f'v_mfma_f32_32x32x16_bf16 {v(ACC+16*ft,16)}, {v(self.G_WF+12*b+4*ft,4)}, {v(self.G_XF+4*b,4)}, {v(ACC+16*ft,16)}') for ft in range(3)]
                pre = []; R = []
                if n + 1 < 40:
                    if ks == 3: pre = [waitvm('g1c%d' % (c + 1)), waitlds()] + I('s_barrier')
                    R = self.g1_reads(n + 1)
                X = []
                if ks == 0: X = self.g1_cs_reads(c)
                if ks == 2: X = self.g1_cs_mfma(c == 0)
                main += [M[0]] + pre + R[:4] + [M[1]] + R[4:] + X[:3] + [M[2]] + X[3:]
            B = list(bg.get(c, []))
            out += self.ts('g1 c%d' % c)
            m1 = merge(main, B, 0.0, 0.8)
            bar = [k for k, i in enumerate(m1) if i.op == 's_barrier']
            if bar:
                cut = bar[-1]
                while m1[cut - 1].kind in ('waitvm', 'waitlds'): cut -= 1
                out += merge_time(m1[:cut], bgv.get(c, []), 0.02, 0.98) + m1[cut:]
            else:
                out += merge_time(m1, bgv.get(c, []), 0.02, 0.98)
        return out
    def g1_epilogue(self, bg, ldsbg=None):
        ACC = self.G_ACC
        ST_, B1, AX, BX, RS, AD = 116, 118, 76, 88, 92, 94
        CS = self.G_CS
        L = I(f"""
        v_and_b32 {v(AD)}, 31, v1
        v_lshlrev_b32 {v(AD)}, 2, {v(AD)}
        v_add_u32 {v(AD)}, {self.CSA}, {v(AD)}
        s_mul_i32 {s(S_T0)}, {s(S_WAVE)}, 384
        v_add_u32 {v(AD+1)}, {s(S_T0)}, {v(AD)}
        """)
        for ft in range(3): L += I(f'v_accvgpr_read_b32 {v(CS+ft)}, {a_(208+16*ft)}')
        for ft in range(3): L += I(f'ds_write_b32 {v(AD+1)}, {v(CS+ft)} offset:{128*ft}')
        L += [waitlds()] + I('s_barrier') + self.ts('ep: barrier')
        for w in range(4):
            for ft in range(3): L += I(f'ds_read_b32 {v(100+3*w+ft)}, {v(AD)} offset:{384*w + 128*ft}')
        L += I(f"""
        v_cmp_gt_u32 vcc, 32, v1
        v_rcp_f32 {v(RS)}, {v(ST_+1)}
        v_xor_b32 {v(BX)}, 0x80000000, {v(ST_)}
        v_lshrrev_b32 {v(BX+1)}, 16, {v(BX)}
        v_or_b32 {v(BX)}, {v(BX)}, {v(BX+1)}
        v_lshrrev_b32 {v(BX+1)}, 16, {v(ST_+1)}
        v_mov_b32 {v(BX+2)}, 0
        v_mov_b32 {v(BX+3)}, 0
        """)
        for ft in range(3):
            a = AX + 4 * ft; cs = CS + ft
            L += I(f"""
            v_add_f32 {v(cs)}, {v(100+ft)}, {v(103+ft)}
            v_add_f32 {v(a)}, {v(106+ft)}, {v(109+ft)}
            v_add_f32 {v(cs)}, {v(cs)}, {v(a)}
            v_cvt_pk_bf16_f32 {v(a)}, {v(cs)}, {v(cs)}
            v_lshlrev_b32 {v(a+1)}, 16, {v(a)}
            v_sub_f32 {v(a+1)}, {v(cs)}, {v(a+1)}
            v_cvt_pk_bf16_f32 {v(a)}, {v(cs)}, {v(a+1)}
            v_cndmask_b32 {v(a)}, 0, {v(a)}, vcc
            v_cndmask_b32 {v(a+1)}, 0, {v(B1+ft)}, vcc
            v_mov_b32 {v(a+2)}, 0
            v_mov_b32 {v(a+3)}, 0
            v_mfma_f32_32x32x16_bf16 {v(ACC+16*ft,16)}, {v(a,4)}, {v(BX,4)}, {v(ACC+16*ft,16)}
            """)
        L += I(f"""
        s_lshl_b32 {s(S_T0)}, {s(S_T)}, 3
        s_lshl_b32 {s(S_T1)}, {s(S_WAVE)}, 1
        s_add_u32 {s(S_T0)}, {s(S_T0)}, {s(S_T1)}
        s_mul_i32 {s(S_T0)}, {s(S_T0)}, {48*1024}
        s_mul_i32 {s(S_T1)}, {s(S_FS)}, 3072
        s_add_u32 {s(S_T0)}, {s(S_T0)}, {s(S_T1)}
        s_add_u32 {s(S_T4)}, {s(S_T0)}, {WS_H}
        v_bfe_u32 {v(AD)}, v1, 4, 1
        v_mul_u32_u24 {v(AD)}, {48*1024}, {v(AD)}
        v_lshrrev_b32 {v(AD+1)}, 5, v1
        v_lshl_add_u32 {v(AD)}, {v(AD+1)}, 8, {v(AD)}
        v_and_b32 {v(AD+1)}, 15, v1
        v_lshl_add_u32 {v(AD)}, {v(AD+1)}, 4, {v(AD)}
        """)
        E = []
        for ft in range(3):
            A = ACC + 16 * ft
            for cc in range(2):
                for p in range(4 * cc, 4 * cc + 4):
                    r = A + 2 * p
                    E += I(f"""
                    v_max_f32 {v(r)}, 0, {v(r)}
                    v_max_f32 {v(r+1)}, 0, {v(r+1)}
                    v_pk_mul_f32 {v(r,2)}, {v(r,2)}, {v(RS,2)} op_sel_hi:[1,0]
                    v_pk_mul_f32 {v(r,2)}, {v(r,2)}, {v(r,2)}
                    """)
                for d in range(4):
                    r = A + 8 * cc + 2 * d
                    E += I(f'v_cvt_pk_bf16_f32 {v(A+8*cc+d)}, {v(r)}, {v(r+1)}')
                E += I(f'buffer_store_dwordx4 {v(A+8*cc,4)}, {v(AD)}, {s(SRD_WS,4)}, {s(S_T4)} offen offset:{1024*ft + 512*cc} sc1', tag='hstore')
        if ldsbg: E = merge(E, ldsbg)
        return L + self.ts('ep: xmfma') + merge_time(E, bg)

    def w2_setup(self, vaddr):
        return I(f"""
        s_mul_i32 {s(S_W2OFF)}, {s(S_CS)}, {48*5120}
        s_mul_i32 {s(S_T0)}, {s(S_WAVE)}, {12*5120}
        s_add_u32 {s(S_W2OFF)}, {s(S_W2OFF)}, {s(S_T0)}
        s_add_u32 {s(S_W2OFF)}, {s(S_W2OFF)}, {WS_W2T}
        v_lshlrev_b32 {v(vaddr)}, 4, v1
        """)
    def w2_load(self, n, vaddr):
        L = I(f'buffer_load_dwordx4 {a_(4*n,4)}, {v(vaddr)}, {s(SRD_WS,4)}, {s(S_W2OFF)} offen offset:{1024*(n%4)} sc1', tag='w2')
        if n % 4 == 3: L += I(f's_add_u32 {s(S_W2OFF)}, {s(S_W2OFF)}, 4096')
        return L

    CWS = 21248
    C_S0, C_S1, C_S2 = 208, 224, 240
    C_ACC, C_XF, C_HF, C_HD, C_XB, C_HB = 20, 52, 116, 132, 136, 137
    def c_hload(self):
        A = 200
        L = I(f"""
        s_lshl_b32 {s(S_T0)}, {s(S_ID)}, 2
        s_add_u32 {s(S_T0)}, {s(S_T0)}, {s(S_WAVE)}
        s_lshl_b32 {s(S_T1)}, {s(S_T0)}, 1
        s_and_b32 {s(S_T1)}, {s(S_T1)}, -4
        s_load_dword {s(S_DVAL)}, {s(P_SSMD,2)}, {s(S_T1)}
        s_lshl_b32 {s(S_T0)}, {s(S_T0)}, 12
        v_lshlrev_b32 {v(A)}, 4, v1
        """)
        for i in range(4):
            L += I(f'buffer_load_dwordx4 {v(self.C_S0+4*i,4)}, {v(A)}, {s(SRD_H,4)}, {s(S_T0)} offen offset:{1024*i}')
        return L
    def c_prep_regs(self):
        S0, S1, S2 = self.C_S0, self.C_S1, self.C_S2
        L = []
        DP = 'row_mask:0xf bank_mask:0xf'
        for i in range(4):
            s0, q2, q3, q1, p2 = S0 + 4*i, S1 + 4*i, S2 + 4*i, 160 + 4*i, 201
            if i == 0:
                L += I(f'v_mov_b32 {v(q2)}, 0\nv_mov_b32 {v(p2)}, 0')
            else:
                L += I(f'v_mov_b32_dpp {v(q2)}, {v(s0-1)} wave_ror:1 {DP}\nv_mov_b32_dpp {v(p2)}, {v(s0-2)} wave_ror:1 {DP}')
            L += I(f"""
            v_mov_b32 {v(q2+1)}, {v(s0)}
            v_mov_b32 {v(q2+2)}, {v(s0+1)}
            v_mov_b32_dpp {v(q2)}, {v(s0+3)} wave_shr:1 {DP}
            v_mov_b32_dpp {v(p2)}, {v(s0+2)} wave_shr:1 {DP}
            v_mov_b32 {v(q2+3)}, {v(s0+2)}
            v_alignbit_b32 {v(q1+1)}, {v(s0+1)}, {v(s0)}, 16
            v_alignbit_b32 {v(q1+2)}, {v(s0+2)}, {v(s0+1)}, 16
            v_alignbit_b32 {v(q1+3)}, {v(s0+3)}, {v(s0+2)}, 16
            v_alignbit_b32 {v(q1)}, {v(s0)}, {v(q2)}, 16
            v_alignbit_b32 {v(q3)}, {v(q2)}, {v(p2)}, 16
            v_mov_b32 {v(q3+2)}, {v(q1+1)}
            v_mov_b32 {v(q3+3)}, {v(q1+2)}
            v_mov_b32 {v(q3+1)}, {v(q1)}
            """)
        return L
    def c_prep_addr(self):
        L = []
        L += I(f"""
        s_mul_i32 {s(S_T0)}, {s(S_WAVE)}, {self.CWS}
        s_add_u32 {s(S_T0)}, {s(S_T0)}, 90112
        s_cmp_eq_u32 {s(S_WAVE)}, 3
        s_cselect_b32 {s(S_T0)}, 32768, {s(S_T0)}
        v_lshlrev_b32 v176, 4, v1
        v_add_u32 v176, {s(S_T0)}, v176
        v_bfe_u32 v177, v1, 1, 2
        v_mul_u32_u24 v177, 4160, v177
        v_and_b32 v178, 1, v1
        v_lshl_add_u32 v177, v178, 4, v177
        v_add_u32 v177, {s(S_T0)}, v177
        v_min_u32 v179, 29, v1
        v_lshlrev_b32 v179, 4, v179
        s_add_u32 {s(S_T0)}, {s(S_T0)}, 16640
        v_add_u32 v179, {s(S_T0)}, v179
        v_mov_b32 v180, 0
        v_mov_b32 v181, 0
        v_mov_b32 v182, 0
        v_mov_b32 v183, 0
        """)
        XB, HB, HD = self.C_XB, self.C_HB, self.C_HD
        L += I(f"""
        v_and_b32 v184, 15, v1
        v_lshrrev_b32 v185, 4, v1
        v_lshlrev_b32 {v(XB)}, 5, v184
        v_lshlrev_b32 v186, 4, v185
        v_sub_u32 {v(XB)}, {v(XB)}, v186
        v_add_u32 {v(XB)}, 48, {v(XB)}
        v_add_u32 {v(XB)}, {s(S_T0)}, {v(XB)}
        v_bfe_u32 v187, v1, 2, 2
        v_mul_u32_u24 {v(HB)}, 4160, v187
        v_add_u32 {v(HB)}, {v(HB)}, v186
        v_and_b32 v187, 3, v1
        v_lshl_add_u32 {v(HB)}, v187, 3, {v(HB)}
        s_sub_u32 {s(S_T0)}, {s(S_T0)}, {16640 - 8}
        v_add_u32 {v(HB)}, {s(S_T0)}, {v(HB)}
        s_and_b32 {s(S_T1)}, {s(S_WAVE)}, 1
        s_lshl_b32 {s(S_T1)}, {s(S_T1)}, 4
        s_lshr_b32 {s(S_DVAL)}, {s(S_DVAL)}, {s(S_T1)}
        s_and_b32 {s(S_DVAL)}, {s(S_DVAL)}, 0xffff
        v_lshrrev_b32 v186, 3, v184
        v_add_u32 v186, v186, v185
        v_and_b32 v187, 1, v184
        v_lshlrev_b32 v187, 4, v187
        v_lshlrev_b32 v187, v187, {s(S_DVAL)}
        v_bfe_u32 v188, v184, 1, 2
        v_mov_b32 v189, 99
        v_cmp_eq_u32 vcc, 1, v186
        v_cndmask_b32 v188, v189, v188, vcc
        """)
        for w in range(4): L += I(f'v_cmp_eq_u32 vcc, {w}, v188\nv_cndmask_b32 {v(HD+w)}, 0, v187, vcc')
        return L
    def c_write_copies(self):
        S0, S1, S2 = self.C_S0, self.C_S1, self.C_S2
        L = I('ds_write_b128 v177, v[180:183]\nds_write_b128 v179, v[180:183]')
        for i in range(4):
            L += I(f'ds_write_b128 v176, {v(S0+4*i,4)} offset:{32 + 1024*i}')
            L += I(f'ds_write_b128 v176, {v(160+4*i,4)} offset:{32 + 4160 + 1024*i}')
            L += I(f'ds_write_b128 v176, {v(S1+4*i,4)} offset:{32 + 2*4160 + 1024*i}')
            L += I(f'ds_write_b128 v176, {v(S2+4*i,4)} offset:{32 + 3*4160 + 1024*i}')
        return L
    C_XL = 140
    def c_xload(self):
        L = I(f"""
        s_lshl_b32 {s(S_T0)}, {s(S_ID)}, 2
        s_add_u32 {s(S_T0)}, {s(S_T0)}, {s(S_WAVE)}
        s_lshl_b32 {s(S_T0)}, {s(S_T0)}, 12
        s_add_u32 {s(S_T0)}, {s(S_T0)}, {WS_KVT}
        v_lshlrev_b32 v138, 4, v1
        """)
        for i in range(4): L += I(f'buffer_load_dwordx4 {v(self.C_XL+4*i,4)}, v138, {s(SRD_WS,4)}, {s(S_T0)} offen offset:{1024*i} sc1')
        return L
    def c_xwrite(self):
        return [Ins(f'ds_write_b128 v176, {v(self.C_XL+4*i,4)} offset:{16640 + 480 + 1024*i}') for i in range(4)]
    def c_xread(self, q, b):
        return Ins(f'ds_read_b128 {v(self.C_XF + 32*(q&1) + 4*b, 4)}, {v(self.C_XB)} offset:{512*b + 64*(7-q)}')
    def c_hread(self, idx):
        q, a = idx // 8, idx % 8
        r = self.C_HF + 4 * (idx % 4)
        return [Ins(f'ds_read_b64_tr_b16 {v(r+2*al,2)}, {v(self.C_HB)} offset:{512*a + 64*q + 8*(1-al)}') for al in range(2)]
    def c_main(self, bg):
        ACC = self.C_ACC
        out = [self.c_xread(0, b) for b in range(8)]
        for idx in range(3): out += self.c_hread(idx)
        for b in range(8): out += I(f'v_mfma_f32_16x16x32_bf16 {v(ACC+4*b,4)}, {v(self.C_HD,4)}, {v(self.C_XF+4*b,4)}, 0')
        for q in range(8):
            main = []
            for a in range(8):
                idx = 8 * q + a
                hr = self.C_HF + 4 * (idx % 4)
                first = True
                for b in range(7 - a, -1, -1):
                    main.append(Ins(f'v_mfma_f32_16x16x32_bf16 {v(ACC+4*(a+b),4)}, {v(hr,4)}, {v(self.C_XF+32*(q&1)+4*b,4)}, {v(ACC+4*(a+b),4)}'))
                    if first and idx + 3 < 64: main += self.c_hread(idx + 3)
                    first = False
            xr = [self.c_xread(q + 1, b) for b in range(8)] if q < 7 else []
            if q in (0, 2, 4, 6, 7): out += self.ts('conv q%d' % q)
            m1 = merge(main, xr, 0.0, 0.7)
            out += merge(m1, bg.get(q, []), 0.0, 1.0)
        return out
    def c_post(self):
        ACC = self.C_ACC
        L = I(f"""
        s_lshl_b32 {s(S_T0)}, {s(S_ID)}, 2
        s_add_u32 {s(S_T0)}, {s(S_T0)}, {s(S_WAVE)}
        s_lshl_b32 {s(S_T0)}, {s(S_T0)}, 12
        s_add_u32 {s(S_T0)}, {s(S_T0)}, {WS_YT}
        v_and_b32 v52, 15, v1
        v_lshlrev_b32 v52, 5, v52
        v_bfe_u32 v53, v1, 4, 1
        v_lshl_add_u32 v52, v53, 9, v52
        v_bfe_u32 v53, v1, 5, 1
        v_lshl_add_u32 v52, v53, 4, v52
        """)
        for p in range(4):
            Q = 56 + 4 * p
            a0, a1 = ACC + 8 * p, ACC + 8 * p + 4
            L += I(f"""
            v_cvt_pk_bf16_f32 {v(Q)}, {v(a0)}, {v(a0+1)}
            v_cvt_pk_bf16_f32 {v(Q+1)}, {v(a0+2)}, {v(a0+3)}
            v_cvt_pk_bf16_f32 {v(Q+2)}, {v(a1)}, {v(a1+1)}
            v_cvt_pk_bf16_f32 {v(Q+3)}, {v(a1+2)}, {v(a1+3)}
            v_permlane16_swap_b32 {v(Q)}, {v(Q+2)}
            v_permlane16_swap_b32 {v(Q+1)}, {v(Q+3)}
            """)
            L += I(f'buffer_store_dwordx4 {v(Q,4)}, v52, {s(SRD_WS,4)}, {s(S_T0)} offen offset:{1024*p} sc1', tag='ystore')
        return L

    G2_ACC = (20, 40)
    G2_HR, G2_NR, G2_OFF = 104, 38, 11
    G2_HV = 2
    G2_RA = 5
    F_X, F_B, F_ST, F_Y = 60, 70, 80, 82
    F_PP, F_XU, F_T = 188, 104, 124
    def hreg(self, n): return self.G2_HR + 4 * ((n + self.G2_OFF) % self.G2_NR)
    def g2_setup(self):
        L = I(f"""
        v_lshlrev_b32 v2, 4, v1
        v_add_u32 v3, 4096, v2
        v_add_u32 v4, 8192, v2
        s_mul_i32 {s(S_T0)}, {s(S_WAVE)}, {12*1024}
        s_add_u32 {s(S_T0)}, {s(S_T0)}, {WS_H}
        s_lshl_b32 {s(S_T1)}, {s(S_T64)}, 2
        """)
        for sg in range(4):
            L += I(f"""
            s_add_u32 {s(S_T2)}, {s(S_WAVE)}, {1+sg}
            s_and_b32 {s(S_T2)}, {s(S_T2)}, 3
            s_add_u32 {s(S_T3)}, {s(S_T1)}, {s(S_T2)}
            s_mul_i32 {s(S_T3)}, {s(S_T3)}, {48*1024}
            s_add_u32 {s(S_HOFF+sg)}, {s(S_T3)}, {s(S_T0)}
            """)
            if sg < 3:
                L += I(f"""
                s_mul_i32 {s(S_T2)}, {s(S_T2)}, 15360
                s_add_u32 {s(S_T2)}, {s(S_T2)}, {5120*sg}
                v_add_u32 {v(self.G2_RA+sg)}, {s(S_T2)}, v2
                """)
        L += I(f's_mul_i32 {s(S_T2)}, {s(S_WAVE)}, 15360\nv_add_u32 v8, {s(S_T2)}, v2')
        return L
    def g2_hload(self, n):
        sg, kk = n // 12, n % 12
        return Ins(f'buffer_load_dwordx4 {v(self.hreg(n),4)}, {v(self.G2_HV + kk//4)}, {s(SRD_WS,4)}, {s(S_HOFF+sg)} offen offset:{1024*(kk%4)} sc1')
    def f_loads(self):
        L = I(f"""
        s_lshl_b32 {s(S_T0)}, {s(S_T64)}, 6
        s_lshl_b32 {s(S_T1)}, {s(S_WAVE)}, 4
        s_add_u32 {s(S_T0)}, {s(S_T0)}, {s(S_T1)}
        v_and_b32 v9, 15, v1
        v_add_u32 v9, {s(S_T0)}, v9
        v_lshrrev_b32 v10, 4, v1
        s_mul_i32 {s(S_T2)}, {s(S_CS)}, 160
        v_lshl_add_u32 v10, v10, 3, {s(S_T2)}
        v_mul_u32_u24 v11, 1280, v9
        v_add_u32 v11, v11, v10
        """)
        for ct in range(5): L += I(f'buffer_load_dwordx2 {v(self.F_X+2*ct,2)}, v11, {s(SRD_Q,4)}, 0 offen offset:{32*ct}')
        for ct in range(5): L += I(f'global_load_dwordx2 {v(self.F_B+2*ct,2)}, v10, {s(P_B2,2)} offset:{32*ct}')
        L += I(f"""
        v_lshlrev_b32 v12, 3, v9
        v_add_u32 v12, {WS_STATS}, v12
        buffer_load_dwordx2 {v(self.F_ST,2)}, v12, {s(SRD_WS,4)}, 0 offen sc1
        """)
        return L
    def f_yloads(self):
        L = I(f"""
        v_lshlrev_b32 v12, 11, v10
        v_lshl_add_u32 v12, v9, 1, v12
        v_add_u32 v12, {WS_YT}, v12
        """)
        for ct in range(5):
            for r in range(4):
                L += I(f's_mov_b32 {s(S_T0)}, {(16*ct + r)*4096}')
                L += I(f'buffer_load_ushort {v(self.F_Y+4*ct+r)}, v12, {s(SRD_WS,4)}, {s(S_T0)} offen sc1')
        return L
    def f_pre(self):
        XU, SU, T, PP = self.F_XU, self.F_Y, self.F_T, self.F_PP
        X, B, ST_ = self.F_X, self.F_B, self.F_ST
        L = I(f"""
        v_rcp_f32 {v(T)}, {v(ST_+1)}
        v_mul_f32 {v(T+1)}, {v(ST_)}, {v(T)}
        v_xor_b32 {v(T+1)}, 0x80000000, {v(T+1)}
        """)
        for p in range(10):
            L += I(f"""
            v_lshlrev_b32 {v(XU+2*p)}, 16, {v(X+p)}
            v_and_b32 {v(XU+2*p+1)}, 0xffff0000, {v(X+p)}
            v_lshlrev_b32 {v(SU+2*p)}, 16, {v(SU+2*p)}
            v_lshlrev_b32 {v(SU+2*p+1)}, 16, {v(SU+2*p+1)}
            v_fma_f32 {v(T+2)}, {v(XU+2*p)}, {v(T)}, {v(T+1)}
            v_fma_f32 {v(T+3)}, {v(XU+2*p+1)}, {v(T)}, {v(T+1)}
            v_mul_f32 {v(SU+2*p)}, {v(SU+2*p)}, {v(T+2)}
            v_mul_f32 {v(SU+2*p+1)}, {v(SU+2*p+1)}, {v(T+3)}
            """)
        P2 = []
        for p in range(10):
            P2 += I(f"""
            v_lshlrev_b32 {v(T+4)}, 16, {v(B+p)}
            v_and_b32 {v(T+5)}, 0xffff0000, {v(B+p)}
            v_add_f32 {v(PP+2*p)}, {v(PP+2*p)}, {v(PP+20+2*p)}
            v_add_f32 {v(PP+2*p+1)}, {v(PP+2*p+1)}, {v(PP+21+2*p)}
            v_add_f32 {v(T+4)}, {v(T+4)}, {v(PP+40+2*p)}
            v_add_f32 {v(T+5)}, {v(T+5)}, {v(PP+41+2*p)}
            v_add_f32 {v(PP+2*p)}, {v(PP+2*p)}, {v(T+4)}
            v_add_f32 {v(PP+2*p+1)}, {v(PP+2*p+1)}, {v(T+5)}
            """)
        return L, P2
    def f_final(self):
        ACC = self.G2_ACC[1]; PP = self.F_PP
        XU, SU, T, X = self.F_XU, self.F_Y, self.F_T, self.F_X
        L = I(f's_mov_b32 {s(S_T0)}, {f2h(-1.4426950408889634)}')
        for ct in range(5):
            for h in range(2):
                p = 2 * ct + h
                U = T + 2 + 2 * (p & 1) + 4
                L += I(f"""
                v_pk_add_f32 {v(ACC+2*p,2)}, {v(ACC+2*p,2)}, {v(PP+2*p,2)}
                v_mul_f32 {v(U)}, {s(S_T0)}, {v(ACC+2*p)}
                v_mul_f32 {v(U+1)}, {s(S_T0)}, {v(ACC+2*p+1)}
                v_exp_f32 {v(U)}, {v(U)}
                v_exp_f32 {v(U+1)}, {v(U+1)}
                v_add_f32 {v(U)}, 1.0, {v(U)}
                v_add_f32 {v(U+1)}, 1.0, {v(U+1)}
                v_rcp_f32 {v(U)}, {v(U)}
                v_rcp_f32 {v(U+1)}, {v(U+1)}
                v_pk_mul_f32 {v(U,2)}, {v(U,2)}, {v(ACC+2*p,2)}
                v_pk_fma_f32 {v(U,2)}, {v(U,2)}, {v(SU+2*p,2)}, {v(XU+2*p,2)}
                v_cvt_pk_bf16_f32 {v(X+p)}, {v(U)}, {v(U+1)}
                """)
            L += I(f'buffer_store_dwordx2 {v(X+2*ct,2)}, v11, {s(SRD_OUT,4)}, 0 offen offset:{32*ct}')
        return L
    def g2_main(self, first_unloaded, mid):
        out = []
        nxt = first_unloaded
        pre1, pre2 = self.f_pre()
        for sg in range(4):
            ACC = self.G2_ACC[sg & 1]
            for kk in range(12):
                n = sg * 12 + kk
                M = []
                for ct in range(5):
                    c = '0' if kk == 0 else v(ACC + 4 * ct, 4)
                    M.append(Ins(f'v_mfma_f32_16x16x32_bf16 {v(ACC+4*ct,4)}, {a_(20*kk+4*ct,4)}, {v(self.hreg(n),4)}, {c}'))
                B = []
                cnt = 0
                while nxt < 48 and nxt - self.G2_NR <= n - 1 and cnt < 1 and (nxt - first_unloaded) <= n:
                    B.append(self.g2_hload(nxt)); nxt += 1; cnt += 1
                B += mid.get(n, [])
                if sg >= 1 and kk == 1:
                    P = self.G2_ACC[(sg - 1) & 1]
                    B += [Ins(f'ds_write_b128 {v(self.G2_RA+sg-1)}, {v(P+4*ct,4)} offset:{1024*ct}') for ct in range(5)]
                if sg == 3 and kk == 3:
                    B += [waitlds()] + I('s_barrier')
                    for sp in range(3):
                        for ct in range(5):
                            B.append(Ins(f'ds_read_b128 {v(self.F_PP + 4*(5*sp+ct), 4)}, v8 offset:{5120*sp + 1024*ct}'))
                if sg == 3 and 4 <= kk < 8:
                    k = kk - 4; m = (len(pre2) + 3) // 4
                    B += pre2[k*m:(k+1)*m]
                if sg == 3 and 8 <= kk < 12:
                    k = kk - 8; m = (len(pre1) + 3) // 4
                    B += pre1[k*m:(k+1)*m]
                if kk == 0 or n in (1, 4): out += self.ts('g2 n%d' % n)
                out += merge(M, B)
        assert nxt == 48
        return out

TSNAMES = {}
def build_role(role, o):
    g = Gen(role, o)
    L = []
    def ts(name): return g.ts(name)
    L += ts('entry')
    if o.get('ts'): L += I('s_memrealtime s[6:7]\ns_waitcnt lgkmcnt(0)\nv_writelane_b32 v19, s6, 62')
    if o.get('pfcode'):
        L += I(f"""
        s_getpc_b64 s[6:7]
        """)
        L[-1].text += f'\nLpc_{role}:'
        L += I(f"""
        s_mov_b32 s8, Lend_{role}-Lpc_{role}-4
        v_and_b32 v3, 63, v0
        v_lshlrev_b32 v3, 7, v3
        v_lshrrev_b32 v4, 6, v0
        v_lshl_add_u32 v3, v4, 13, v3
        v_min_u32 v3, s8, v3
        global_load_dword v255, v3, s[6:7]
        """)
    L += g.prologue()
    first = [(SRD_Q, P_Q, S*D*2), (SRD_K, P_K, S*D*2), (SRD_V, P_V, S*D*2), (SRD_WS, P_WS, WS_BYTES), (SRD_W1, P_W1, D*F*2)]
    if role == 'A': first += [(SRD_W2, P_W2, D*F*2)]
    rest = [(SRD_OUT, P_OUT, S*D*2)] + ([(SRD_H, P_SSMK, S*D*2)] if role == 'A' else [])
    L += g.srds(first)
    L += I(f's_load_dword {s(S_EPOCH)}, {s(P_WS,2)}, {WS_EPOCH}')
    L += ts('prologue')
    L += g.p_kv_load()
    L += g.g1_setup(20)
    L += g.g1_dma(0)
    if role == 'A': L += g.p_w2_load(240)
    L += ts('P loads')
    pk1, pk2 = g.p_kv_compute()
    L += merge_time(g.srds(rest) + g.g1_setup2(20) + g.g1_init() + pk1, g.g1_dma(1) + g.g1_dma(2), 0.05, 1.0)
    L += ts('pk1 done')
    L += g.p_stat_load(228)
    L += [waitlds()] + I('s_barrier') + pk2 + g.make_tag()
    L += ts('P done')
    bg = {c: [] for c in range(10)}
    bgv = {c: [] for c in range(10)}
    for c in range(0, 7): bgv[c] += g.g1_dma(c + 3)
    bg[0] += I(f"""
        s_mul_i32 {s(S_T0)}, {s(S_FS)}, 192
        v_and_b32 v121, 31, v1
        v_lshl_add_u32 v121, v121, 1, {s(S_T0)}
        global_load_ushort v118, v121, {s(P_B1,2)}
        global_load_ushort v119, v121, {s(P_B1,2)} offset:64
        global_load_ushort v120, v121, {s(P_B1,2)} offset:128
        """)
    if role == 'A': bg[0] += g.p_w2_store(240, [144, 148, 152, 156, 160])
    bg[1] += g.p_stat_compute(228)
    bg[3] += [waitvm('wstore'), waitvm('pstore')]
    bg[4] = g.set_flag(WS_FLAG_P, f's_mov_b32 {s(S_T0)}, {s(S_ID)}', 124, 125) + bg[4]
    comb = I(f"""
        s_mul_i32 {s(S_T0)}, {s(S_CS)}, 12
        s_mul_i32 {s(S_T1)}, {s(S_WAVE)}, 3
        s_add_u32 {s(S_T0)}, {s(S_T0)}, {s(S_T1)}
        v_min_u32 v126, 2, v1
        v_add_u32 v126, {s(S_T0)}, v126
        s_lshl_b32 {s(S_T0)}, {s(S_T)}, 7
        s_lshl_b32 {s(S_T1)}, {s(S_WAVE)}, 5
        s_add_u32 {s(S_T0)}, {s(S_T0)}, {s(S_T1)}
        s_and_b32 {s(S_T1)}, {s(S_T0)}, 0xf8
        s_lshr_b32 {s(S_T0)}, {s(S_T0)}, 8
        s_add_u32 {s(S_T0)}, {s(S_T0)}, {s(S_T1)}
        v_and_b32 v127, 3, v1
        v_lshlrev_b32 v127, 3, v127
        v_add_u32 v127, {s(S_T0)}, v127
        v_lshrrev_b32 v125, 2, v1
        v_cmp_eq_u32 vcc, 1, v125
        v_cndmask_b32 v126, v126, v127, vcc
        """)
    if role == 'A':
        comb += I(f"""
        s_mul_i32 {s(S_T0)}, {s(S_ID)}, 3277
        s_lshr_b32 {s(S_T0)}, {s(S_T0)}, 16
        s_lshl_b32 {s(S_T0)}, {s(S_T0)}, 3
        v_and_b32 v127, 3, v1
        v_lshlrev_b32 v127, 6, v127
        v_bfe_u32 v125, v1, 2, 3
        v_add_u32 v127, v127, v125
        v_add_u32 v127, {s(S_T0)}, v127
        v_cmp_lt_u32 vcc, 31, v1
        v_cndmask_b32 v126, v126, v127, vcc
        """)
    comb += I(f"""
        v_lshlrev_b32 v126, 6, v126
        v_add_u32 v126, {WS_FLAG_P}, v126
        buffer_load_dword v127, v126, {s(SRD_WS,4)}, 0 offen sc1
        """)
    bg[6] += comb
    w2l = [g.w2_load(n, 139) for n in range(60)]
    k = 0
    stat_ld = I(f"""
        s_lshl_b32 {s(S_T0)}, {s(S_T)}, 7
        s_lshl_b32 {s(S_T1)}, {s(S_WAVE)}, 5
        s_add_u32 {s(S_T0)}, {s(S_T0)}, {s(S_T1)}
        v_and_b32 v126, 31, v1
        v_add_u32 v126, {s(S_T0)}, v126
        v_lshlrev_b32 v126, 3, v126
        v_add_u32 v126, {WS_STATS}, v126
        buffer_load_dwordx2 v[116:117], v126, {s(SRD_WS,4)}, 0 offen sc1
        """)
    if role == 'A':
        bg[2] += g.c_hload()
        pa = g.c_prep_addr()
        bg[3] = pa + bg[3]
        bg[5] += g.c_prep_regs()
    bg[8] += g.poll(127, 126, 'p') + g.w2_setup(139) + stat_ld
    if role == 'A':
        bg[8] += g.c_xload()
        bg[7] += g.g2_setup()
        cw = g.c_write_copies()
        bg[8] = cw[:9] + bg[8]
        bg[9] += cw[9:]
        per = {9: 6}
    else:
        per = {9: 7}
    for c in sorted(per):
        for _ in range(per[c]): bgv[c] += w2l[k]; k += 1
    if o.get('x_nobg'):
        for c in range(10): bg[c] = []
    if o.get('x_nopk'):
        for c in (2, 3, 4): bg[c] = [i for i in bg[c] if i.kind in ('waitvm',) or i.tag == 'flag']
    if o.get('x_stop'):
        L += g.g1_main(bg, bgv) + ts('G1 main done') + [waitvmall()] + ts('end')
        L += I(f"""
        s_lshl_b32 {s(S_T0)}, {s(S_ID)}, 10
        s_lshl_b32 {s(S_T1)}, {s(S_WAVE)}, 8
        s_add_u32 {s(S_T0)}, {s(S_T0)}, {s(S_T1)}
        s_add_u32 {s(S_T0)}, {s(S_T0)}, {WS_TS}
        v_lshlrev_b32 v2, 2, v1
        buffer_store_dword v19, v2, {s(SRD_WS,4)}, {s(S_T0)} offen
        s_endpgm
        """)
        TSNAMES[role] = g.tsnames
        st = Stream(); st.ins = L
        return render(finalize(st)) + ''.join(g.tail)
    L += g.g1_main(bg, bgv)
    L += ts('G1 main done')
    gflag = g.set_flag(WS_FLAG_G, f's_lshl_b32 {s(S_T0)}, {s(S_T)}, 4\ns_add_u32 {s(S_T0)}, {s(S_T0)}, {s(S_FS)}', 16, 17)
    hflag_idx = f's_lshr_b32 {s(S_T0)}, {s(S_T64)}, 1\ns_lshl_b32 {s(S_T0)}, {s(S_T0)}, 4\ns_lshl_b32 {s(S_T1)}, {s(S_WAVE)}, 2\ns_add_u32 {s(S_T0)}, {s(S_T0)}, {s(S_T1)}'
    if role == 'A':
        e_bg = []
        for _ in range(7): e_bg += w2l[k]; k += 1
        L += g.g1_epilogue(e_bg, g.c_xwrite())
        L += ts('G1 epilogue')
        cb = {q: [] for q in range(8)}
        cb[1] += [waitvm('hstore')] + I('s_barrier') + gflag
        rem = 60 - k
        qi = 0
        for j in range(rem):
            cb[j * 6 // rem] += w2l[k]; k += 1
        cb[4] += g.flag_load(WS_FLAG_G, hflag_idx, 'v_and_b32 v13, 3, v1', 13, 14)
        cb[6] += g.poll(14, 13, 'g1')
        NPRE = 12
        hp = [g.g2_hload(n) for n in range(NPRE)]
        cb[6] += hp[:6]; cb[7] += hp[6:]
        L += g.c_main(cb)
        L += ts('conv main')
        L += g.c_post()
        cflag = [waitvm('ystore')] + I('s_barrier') + g.set_flag(WS_FLAG_C, f's_mov_b32 {s(S_T0)}, {s(S_ID)}', 16, 17)
        first_unl = NPRE
    else:
        e_bg = []
        for _ in range(6): e_bg += w2l[k]; k += 1
        L += g.g1_epilogue(e_bg)
        L += ts('G1 epilogue')
        L += g.g2_setup()
        L += [waitvm('hstore')] + I('s_barrier') + gflag
        while k < 60: L += w2l[k]; k += 1
        L += g.flag_load(WS_FLAG_G, hflag_idx, 'v_and_b32 v13, 3, v1', 13, 14)
        L += g.poll(14, 13, 'g1')
        L += ts('G1 flags')
        L += [g.g2_hload(n) for n in range(38)]
        cflag = I('s_barrier')
        first_unl = 38
    L += ts('G2 start')
    mid = {}
    fl = g.f_loads()
    mid[3] = fl[:11]
    for j in range(4): mid[5 + 2*j] = [fl[11 + j]]
    for j in range(5): mid[13 + 2*j] = [fl[15 + j]]
    mid[23] = fl[20:]
    mid[10] = cflag
    mid[16] = I(f"""
        s_cmp_eq_u32 {s(S_ID)}, 0
        s_cselect_b32 {s(S_T4)}, {s(S_TAG)}, 0
        s_cselect_b32 {s(S_T5)}, 0, {OOB}
        s_lshl_b32 {s(S_T0)}, {s(S_WAVE)}, 6
        v_add_u32 v15, {s(S_T0)}, v1
        v_lshlrev_b32 v15, 6, v15
        v_add_u32 v15, {WS_FLAG_P}, v15
        v_or_b32 v15, {s(S_T5)}, v15
        buffer_load_dword v18, v15, {s(SRD_WS,4)}, 0 offen sc1
        """)
    mid[24] = g.poll(18, 15, 'tk', exp=S_T4)
    epoch_store = I(f"""
        v_mov_b32 v18, {OOB}
        v_mov_b32 v15, {s(S_T5)}
        v_cmp_eq_u32 vcc, 0, v0
        v_cndmask_b32 v15, v18, v15, vcc
        v_mov_b32 v18, {s(S_TAG)}
        buffer_store_dword v18, v15, {s(SRD_WS,4)}, 0 offen sc1
        """)
    mid[44] = epoch_store
    mid[26] = g.flag_load(WS_FLAG_C, f's_mul_i32 {s(S_T0)}, {s(S_CS)}, 20', 'v_min_u32 v13, 19, v1', 13, 14)
    yl = g.f_yloads()
    mid[31] = g.poll(14, 13, 'y') + yl[:9]
    for j, n in enumerate(range(32, 37)): mid[n] = yl[9 + 7*j: 9 + 7*(j+1)]
    mid[36] += yl[9 + 35:]
    L += g.g2_main(first_unl, mid)
    L += ts('G2 main done')
    L += g.f_final()
    L += ts('F done')
    if o.get('ts'):
        L += [waitvmall()] + ts('end')
        L += I('s_memrealtime s[6:7]\ns_waitcnt lgkmcnt(0)\nv_writelane_b32 v19, s6, 63')
        L += I(f"""
        s_lshl_b32 {s(S_T0)}, {s(S_ID)}, 10
        s_lshl_b32 {s(S_T1)}, {s(S_WAVE)}, 8
        s_add_u32 {s(S_T0)}, {s(S_T0)}, {s(S_T1)}
        s_add_u32 {s(S_T0)}, {s(S_T0)}, {WS_TS}
        v_lshlrev_b32 v2, 2, v1
        buffer_store_dword v19, v2, {s(SRD_WS,4)}, {s(S_T0)} offen
        """)
        TSNAMES[role] = g.tsnames
    L += I('s_endpgm')
    st = Stream(); st.ins = L
    return render(finalize(st)) + ''.join(g.tail) + f'Lend_{role}:\n    s_endpgm\n'

HEADER = """; Kernarg layout (112 bytes, ptrs only): q k v shift_k ssm_k ssm_D B_x w1 b1 w2 b2 out debug ws
; @launch grid=(256,1,1) block=(256,1,1) lds=163840
.amdgcn_target "amdgcn-amd-amdhsa--gfx950"
.text
.globl {n}_kernel
.p2align 8
.type {n}_kernel,@function
{n}_kernel:
"""
FOOTER = """
.section .rodata,"a"
.p2align 6
.amdhsa_kernel {n}_kernel
  .amdhsa_next_free_vgpr 512
  .amdhsa_next_free_sgpr 102
  .amdhsa_accum_offset 256
  .amdhsa_group_segment_fixed_size 0
  .amdhsa_kernarg_size 112
  .amdhsa_user_sgpr_count 2
  .amdhsa_user_sgpr_kernarg_segment_ptr 1
  .amdhsa_system_sgpr_workgroup_id_x 1
.end_amdhsa_kernel
"""
def build(o):
    txt = HEADER.format(n=NAME)
    txt += f"""    s_cmp_ge_u32 s2, 256
    s_cbranch_scc1 L_exit
    s_cmp_ge_u32 s2, {NA}
    s_cbranch_scc1 L_roleB
"""
    txt += build_role('A', o)
    txt += "L_exit:\n    s_endpgm\n.p2align 6\nL_roleB:\n"
    txt += build_role('B', o)
    txt += FOOTER.format(n=NAME)
    return txt

if __name__ == '__main__':
    o = {k: True for k in sys.argv[2:]}
    out = sys.argv[1] if len(sys.argv) > 1 else 'k.s'
    open(out, 'w').write(build(o))
    if o.get('ts'): json.dump(TSNAMES, open(out + '.ts.json', 'w'))
    print("wrote", out)
```

```python
import sys, struct, json
from asmlib import *

NAME = "recurrent_scan__ssm_conv_h3__dense_activation_squared_relu__prompt"
S, D, F = 2048, 640, 1536
def f2h(x): return '0x%08x' % struct.unpack('<I', struct.pack('<f', x))[0]

WS_EPOCH = 0
WS_FLAG_P = 0x1000
WS_FLAG_G = 0x5000
WS_FLAG_C = 0x9000
WS_FLAG_W = 0xC000
WS_STATS = 0x10000
WS_KVT = 0x100000
WS_YT = 0x400000
WS_H = 0x800000
WS_W2T = 0x1000000
WS_TS = 0x1300000
WS_BYTES = 0x1400000
NA = 160

def v(a, n=1): return 'v%d' % a if n == 1 else 'v[%d:%d]' % (a, a + n - 1)
def a_(a, n=1): return 'a%d' % a if n == 1 else 'a[%d:%d]' % (a, a + n - 1)
def s(a, n=1): return 's%d' % a if n == 1 else 's[%d:%d]' % (a, a + n - 1)

S_ID, S_WAVE, S_TAG = 2, 4, 5
SRD_Q, SRD_K, SRD_V, SRD_W1, SRD_W2, SRD_H, SRD_OUT, SRD_WS = 8, 12, 16, 20, 24, 28, 32, 36
P_Q, P_K, P_V, P_SHK, P_SSMK, P_SSMD, P_BX, P_W1, P_B1, P_W2, P_B2, P_OUT, P_DBG, P_WS = [40 + 2 * i for i in range(14)]
S_T, S_FS, S_T64, S_CS = 68, 69, 70, 71
S_PK, S_DIS = 72, 77
S_XOFF, S_WOFF, S_XM0, S_WM0 = 73, 74, 75, 76
S_W2OFF = 78
S_SPIN = 79
S_T0, S_T1, S_T2, S_T3, S_T4, S_T5 = 80, 81, 82, 83, 84, 85
S_ONES, S_EPOCH = 86, 87
S_MASK = 88
S_DVAL = 90
S_CB = 91
S_HOFF = 92
SRD_DBG = 96
OOB = 0x80000000

def I(text, tag=None): return [Ins(l.strip(), tag=tag) for l in text.strip('\n').split('\n') if l.split(';')[0].strip()]
def waitvm(tag):
    w = Ins('; waitvm'); w.kind = 'waitvm'; w.tag = tag; return w
def waitlds():
    w = Ins('; waitlds'); w.kind = 'waitlds'; return w
def waitvmall():
    w = Ins('; waitvmall'); w.kind = 'waitvmall'; return w

def weight(i):
    if i.kind in ('vmem', 'vmem_st'):
        return 12 if ('x4' in i.op) else 4
    if i.kind in ('waitvm', 'waitlds', 'waitvmall', 'label'): return 0
    return 1

def merge(main, bg, lo=0.0, hi=1.0):
    if not bg: return list(main)
    pos = [k for k, i in enumerate(main) if i.is_mfma()]
    if not pos: pos = list(range(len(main)))
    n = len(pos)
    a, b = int(lo * n), max(int(hi * n), int(lo * n) + 1)
    slots = pos[a:b]
    tot = sum(weight(i) for i in bg) or 1
    after = {}
    cum = 0
    for i in bg:
        k = min(int(cum * len(slots) / tot), len(slots) - 1)
        after.setdefault(slots[k], []).append(i)
        cum += weight(i)
    out = []
    for k, i in enumerate(main):
        out.append(i)
        out += after.get(k, [])
    return out

def est_times(stream):
    t = 0; pipe = 0; out = []
    for i in stream:
        if i.is_mfma():
            t = max(t, pipe); out.append(t)
            pipe = t + (32 if i.kind == 'mfma32' else 16); t += 8
        elif i.kind in ('waitvm', 'waitlds', 'waitvmall', 'label'):
            out.append(t)
        else:
            out.append(t); t += 8 if i.kind == 'trans' else 4
    return out, max(t, pipe)

def merge_time(stream, vm, lo=0.0, hi=1.0):
    if not vm: return list(stream)
    groups = []; cur = []
    for i in vm:
        cur.append(i)
        if i.kind in ('vmem', 'vmem_st'):
            groups.append(cur); cur = []
    if cur:
        if groups: groups[-1] += cur
        else: groups.append(cur)
    times, total = est_times(stream)
    n = len(groups)
    tgt = [total * (lo + (hi - lo) * (k + 0.0) / n) for k in range(n)]
    out = []; k = 0
    for i, t in zip(stream, times):
        while k < n and t >= tgt[k]:
            out += groups[k]; k += 1
        out.append(i)
    while k < n:
        out += groups[k]; k += 1
    return out

class Gen:
    def __init__(self, role, o):
        self.role = role; self.o = o; self.lab = 0; self.tail = []; self.tsnames = []
    def label(self, base):
        self.lab += 1
        return 'L%s_%s%d' % (self.role, base, self.lab)
    def ts(self, name):
        if not self.o.get('ts') or len(self.tsnames) >= 62: return []
        k = len(self.tsnames); self.tsnames.append(name)
        return I(f's_memtime s[6:7]\ns_waitcnt lgkmcnt(0)\nv_writelane_b32 v19, s6, {k}')

    def flag_load(self, base, sidx_code, lane_code, vaddr, vflag):
        return I(sidx_code) + I(lane_code) + I(f"""
        v_add_u32 {v(vaddr)}, {s(S_T0)}, {v(vaddr)}
        v_lshlrev_b32 {v(vaddr)}, 6, {v(vaddr)}
        v_add_u32 {v(vaddr)}, {base}, {v(vaddr)}
        buffer_load_dword {v(vflag)}, {v(vaddr)}, {s(SRD_WS,4)}, 0 offen sc1
        """)
    def poll(self, vflag, vaddr, nm, exp=None, srd=None):
        exp = S_TAG if exp is None else exp
        srd = SRD_WS if srd is None else srd
        L = self.label('slow' + nm); Lb = self.label('back' + nm)
        br = Ins('s_cbranch_vccnz %s' % L); br.text += '\n%s:' % Lb
        self.tail.append(f"""{L}:
    s_mov_b32 {s(S_SPIN)}, 0
{L}_l:
    s_sleep 1
    buffer_load_dword {v(vflag)}, {v(vaddr)}, {s(srd,4)}, 0 offen sc1
    s_add_u32 {s(S_SPIN)}, {s(S_SPIN)}, 1
    s_cmp_gt_u32 {s(S_SPIN)}, 0x8000
    s_cbranch_scc1 {L}_x
    s_waitcnt vmcnt(0)
    v_cmp_ne_u32 vcc, {s(exp)}, {v(vflag)}
    s_nop 4
    s_cbranch_vccnz {L}_l
{L}_x:
    s_waitcnt vmcnt(0)
    s_nop 7
    s_branch {Lb}
""")
        return I('v_cmp_ne_u32 vcc, %s, %s' % (s(exp), v(vflag))) + [br]
    def set_flag(self, base, idx_code, t1, t2):
        return I(idx_code) + I(f"""
        s_lshl_b32 {s(S_T0)}, {s(S_T0)}, 6
        s_add_u32 {s(S_T0)}, {s(S_T0)}, {base}
        v_mov_b32 {v(t1)}, {s(S_T0)}
        v_mov_b32 {v(t2)}, {OOB}
        v_cmp_eq_u32 vcc, 0, v0
        v_cndmask_b32 {v(t1)}, {v(t2)}, {v(t1)}, vcc
        v_mov_b32 {v(t2)}, {s(S_TAG)}
        buffer_store_dword {v(t2)}, {v(t1)}, {s(SRD_WS,4)}, 0 offen sc1
        """, tag='flag')

    def prologue(self):
        L = I(f"""
        s_load_dwordx16 s[40:55], s[0:1], 0
        s_load_dwordx8 s[56:63], s[0:1], 64
        s_load_dwordx4 s[64:67], s[0:1], 96
        v_and_b32 v1, 63, v0
        v_lshrrev_b32 v2, 6, v0
        s_and_b32 {s(S_T0)}, {s(S_ID)}, 7
        s_lshr_b32 {s(S_T1)}, {s(S_ID)}, 3
        v_readfirstlane_b32 {s(S_WAVE)}, v2
        s_lshr_b32 {s(S_T2)}, {s(S_T0)}, 1
        s_lshl_b32 {s(S_T2)}, {s(S_T2)}, 2
        s_lshr_b32 {s(S_T3)}, {s(S_T1)}, 3
        s_add_u32 {s(S_T)}, {s(S_T2)}, {s(S_T3)}
        s_and_b32 {s(S_T2)}, {s(S_T0)}, 1
        s_lshl_b32 {s(S_T2)}, {s(S_T2)}, 3
        s_and_b32 {s(S_CS)}, {s(S_T1)}, 7
        s_add_u32 {s(S_FS)}, {s(S_T2)}, {s(S_CS)}
        s_lshl_b32 {s(S_T64)}, {s(S_T0)}, 2
        s_add_u32 {s(S_T64)}, {s(S_T64)}, {s(S_T3)}
        s_mov_b32 {s(S_ONES)}, 0x3f803f80
        """)
        return L
    def srds(self, lst):
        L = []
        for srd, p, n in lst:
            L += I(f"""
            s_mov_b32 {s(srd)}, {s(p)}
            s_mov_b32 {s(srd+1)}, {s(p+1)}
            s_mov_b32 {s(srd+2)}, {n}
            s_mov_b32 {s(srd+3)}, 0x20000
            """)
        return L
    def make_tag(self):
        return I(f"""
        s_mul_i32 {s(S_TAG)}, {s(S_EPOCH)}, 0x9e3779b1
        s_add_u32 {s(S_TAG)}, {s(S_TAG)}, 0x7f4a7c15
        """)

    def p_stat_load(self, R):
        return I(f"""
        s_and_b32 {s(S_T0)}, {s(S_ID)}, 7
        s_lshl_b32 {s(S_T0)}, {s(S_T0)}, 8
        s_and_b32 {s(S_T1)}, {s(S_ID)}, -8
        s_add_u32 {s(S_T0)}, {s(S_T0)}, {s(S_T1)}
        s_lshl_b32 {s(S_T1)}, {s(S_WAVE)}, 1
        s_add_u32 {s(S_T0)}, {s(S_T0)}, {s(S_T1)}
        v_lshrrev_b32 {v(R+12)}, 5, v1
        v_add_u32 {v(R+12)}, {s(S_T0)}, {v(R+12)}
        v_and_b32 {v(R+13)}, 31, v1
        v_mul_u32_u24 {v(R+10)}, 1280, {v(R+12)}
        v_lshl_add_u32 {v(R+11)}, {v(R+13)}, 3, {v(R+10)}
        v_lshl_add_u32 {v(R+10)}, {v(R+13)}, 4, {v(R+10)}
        buffer_load_dwordx4 {v(R,4)}, {v(R+10)}, {s(SRD_Q,4)}, 0 offen
        buffer_load_dwordx4 {v(R+4,4)}, {v(R+10)}, {s(SRD_Q,4)}, 0 offen offset:512
        buffer_load_dwordx2 {v(R+8,2)}, {v(R+11)}, {s(SRD_Q,4)}, 0 offen offset:1024
        """)
    def p_stat_compute(self, R):
        A, B, T, U = R + 14, R + 15, R + 16, R + 17
        assert A % 2 == 0
        L = I(f'v_mov_b32 {v(A)}, 0\nv_mov_b32 {v(B)}, 0')
        for i in range(10):
            L += I(f'v_dot2c_f32_bf16 {v(A)}, {s(S_ONES)}, {v(R+i)}\nv_dot2c_f32_bf16 {v(B)}, {v(R+i)}, {v(R+i)}')
        for rot in (8, 4, 2, 1):
            L += I(f'v_add_f32_dpp {v(A)}, {v(A)}, {v(A)} row_ror:{rot} row_mask:0xf bank_mask:0xf')
            L += I(f'v_add_f32_dpp {v(B)}, {v(B)}, {v(B)} row_ror:{rot} row_mask:0xf bank_mask:0xf')
        L += I(f"""
        v_mov_b32 {v(T)}, {v(A)}
        v_mov_b32 {v(U)}, {v(B)}
        v_permlane16_swap_b32 {v(A)}, {v(T)}
        v_permlane16_swap_b32 {v(B)}, {v(U)}
        v_add_f32 {v(A)}, {v(A)}, {v(T)}
        v_add_f32 {v(B)}, {v(B)}, {v(U)}
        v_mul_f32 {v(A)}, {f2h(1.0/640)}, {v(A)}
        v_mul_f32 {v(B)}, {f2h(1.0/640)}, {v(B)}
        v_fma_f32 {v(B)}, -{v(A)}, {v(A)}, {v(B)}
        v_max_f32 {v(B)}, 0, {v(B)}
        v_cvt_pk_bf16_f32 {v(A)}, {v(A)}, {v(B)}
        v_and_b32 {v(B)}, 0xffff0000, {v(A)}
        v_lshlrev_b32 {v(A)}, 16, {v(A)}
        v_add_f32 {v(B)}, {f2h(1e-5)}, {v(B)}
        v_cvt_pk_bf16_f32 {v(B)}, {v(B)}, {v(B)}
        v_lshlrev_b32 {v(B)}, 16, {v(B)}
        v_sqrt_f32 {v(B)}, {v(B)}
        v_cvt_pk_bf16_f32 {v(B)}, {v(B)}, {v(B)}
        v_lshlrev_b32 {v(B)}, 16, {v(B)}
        v_lshlrev_b32 {v(T)}, 3, {v(R+12)}
        v_add_u32 {v(T)}, {WS_STATS}, {v(T)}
        v_mov_b32 {v(U)}, {OOB}
        v_cmp_eq_u32 vcc, 0, {v(R+13)}
        v_cndmask_b32 {v(T)}, {v(U)}, {v(T)}, vcc
        """)
        L += I(f'buffer_store_dwordx2 {v(A,2)}, {v(T)}, {s(SRD_WS,4)}, 0 offen sc1', tag='wstore')
        return L

    PK_K, PK_V, PK_W, PK_A, PK_T, PK_OUT = 144, 172, 188, 204, 214, 128
    PT = 114688
    def p_kv_load(self):
        K, V_, W, A = self.PK_K, self.PK_V, self.PK_W, self.PK_A
        L = I(f"""
        v_mul_u32_u24 {v(A+9)}, 6554, v0
        v_lshrrev_b32 {v(A+9)}, 16, {v(A+9)}
        v_mul_u32_u24 {v(A+8)}, 10, {v(A+9)}
        v_sub_u32 {v(A+8)}, v0, {v(A+8)}
        s_lshl_b32 {s(S_T0)}, {s(S_T64)}, 6
        s_sub_u32 {s(S_T0)}, {s(S_T0)}, 3
        s_mul_i32 {s(S_T1)}, {s(S_CS)}, 160
        v_lshlrev_b32 {v(A)}, 2, {v(A+9)}
        v_add_u32 {v(A)}, {s(S_T0)}, {v(A)}
        v_mul_i32_i24 {v(A)}, 1280, {v(A)}
        v_lshl_add_u32 {v(A+1)}, {v(A+8)}, 4, {s(S_T1)}
        v_add_u32 {v(A)}, {v(A)}, {v(A+1)}
        v_mov_b32 {v(A+1)}, {OOB}
        v_cmp_gt_u32 vcc, 160, v0
        v_cndmask_b32 {v(A)}, {v(A+1)}, {v(A)}, vcc
        """)
        for i in range(1, 7): L += I(f'v_add_u32 {v(A+i)}, {1280*i}, {v(A)}')
        for i in range(7): L += I(f'buffer_load_dwordx4 {v(K+4*i,4)}, {v(A+i)}, {s(SRD_K,4)}, 0 offen')
        for i in range(4): L += I(f'buffer_load_dwordx4 {v(V_+4*i,4)}, {v(A+3+i)}, {s(SRD_V,4)}, 0 offen')
        L += I(f"""
        s_mul_i32 {s(S_T1)}, {s(S_CS)}, 640
        v_lshl_add_u32 {v(A+7)}, {v(A+8)}, 6, {s(S_T1)}
        """)
        for i in range(4): L += I(f'global_load_dwordx4 {v(W+4*i,4)}, {v(A+7)}, {s(P_SHK,2)} offset:{16*i}')
        return L
    def p_kv_compute(self, packed=True):
        K, V_, W, A, T = self.PK_K, self.PK_V, self.PK_W, self.PK_A, self.PK_T
        KU, VU, WU, AC, OUT = T, T + 14, T + 22, T + 30, self.PK_OUT
        L = []
        for dd in range(4):
            for r in range(7):
                L += I(f'v_lshlrev_b32 {v(KU+2*r)}, 16, {v(K+4*r+dd)}\nv_and_b32 {v(KU+2*r+1)}, 0xffff0000, {v(K+4*r+dd)}')
            for j in range(4):
                for h in range(2):
                    src = W + 4 * dd + 2 * h + (j >> 1)
                    L += I(f'v_and_b32 {v(WU+2*j+h)}, 0xffff0000, {v(src)}' if j & 1 else f'v_lshlrev_b32 {v(WU+2*j+h)}, 16, {v(src)}')
            for r in range(4):
                L += I(f'v_lshlrev_b32 {v(VU+2*r)}, 16, {v(V_+4*r+dd)}\nv_and_b32 {v(VU+2*r+1)}, 0xffff0000, {v(V_+4*r+dd)}')
            for t in range(4): L += I(f'v_pk_mul_f32 {v(AC+2*t,2)}, {v(KU+2*t,2)}, {v(WU+6,2)}')
            for j in (2, 1, 0):
                for t in range(4): L += I(f'v_pk_fma_f32 {v(AC+2*t,2)}, {v(KU+2*(t+3-j),2)}, {v(WU+2*j,2)}, {v(AC+2*t,2)}')
            for t in range(4): L += I(f'v_pk_mul_f32 {v(AC+2*t,2)}, {v(AC+2*t,2)}, {v(VU+2*t,2)}')
            for h in range(2):
                ch = 2 * dd + h
                L += I(f'v_cvt_pk_bf16_f32 {v(OUT+2*ch)}, {v(AC+h)}, {v(AC+2+h)}\nv_cvt_pk_bf16_f32 {v(OUT+2*ch+1)}, {v(AC+4+h)}, {v(AC+6+h)}')
        L += I(f"""
        v_and_b32 {v(T)}, 14, {v(A+8)}
        v_xor_b32 {v(T)}, {v(T)}, {v(A+9)}
        v_lshlrev_b32 {v(T)}, 3, {v(T)}
        v_lshl_add_u32 {v(T)}, {v(A+8)}, 10, {v(T)}
        v_mov_b32 {v(T+1)}, 12288
        v_cmp_gt_u32 vcc, 160, v0
        v_cndmask_b32 {v(T)}, {v(T+1)}, {v(T)}, vcc
        v_add_u32 {v(T)}, {self.PT}, {v(T)}
        """)
        for i in range(8): L += I(f'ds_write_b64 {v(T)}, {v(OUT+2*i,2)} offset:{128*i}')
        L1 = L
        L = I(f"""
        v_lshrrev_b32 {v(T)}, 3, v0
        v_and_b32 {v(T+1)}, 7, v0
        v_lshrrev_b32 {v(T+2)}, 6, v0
        v_lshlrev_b32 {v(T+4)}, 1, {v(T+1)}
        v_lshlrev_b32 {v(T+5)}, 7, {v(T)}
        v_add_u32 {v(T+5)}, {self.PT}, {v(T+5)}
        """)
        for i in range(3):
            L += I(f"""
            v_add_u32 {v(T+3)}, {4*i}, {v(T+2)}
            v_and_b32 {v(T+3)}, 14, {v(T+3)}
            v_xor_b32 {v(T+3)}, {v(T+3)}, {v(T+4)}
            v_lshl_add_u32 {v(T+3)}, {v(T+3)}, 3, {v(T+5)}
            ds_read_b128 {v(OUT+4*i,4)}, {v(T+3)} offset:{4096*i}
            """)
        L += I(f"""
        s_mul_i32 {s(S_T0)}, {s(S_CS)}, {80*4096}
        s_lshl_b32 {s(S_T1)}, {s(S_T64)}, 7
        s_add_u32 {s(S_T0)}, {s(S_T0)}, {s(S_T1)}
        s_add_u32 {s(S_T0)}, {s(S_T0)}, {WS_KVT}
        v_lshlrev_b32 {v(T+6)}, 12, {v(T)}
        v_lshl_add_u32 {v(T+6)}, {v(T+1)}, 4, {v(T+6)}
        v_add_u32 {v(T+7)}, {32*4096}, {v(T+6)}
        v_add_u32 {v(T+8)}, {64*4096}, {v(T+6)}
        v_mov_b32 {v(T+9)}, {OOB}
        v_cmp_gt_u32 vcc, 128, v0
        v_cndmask_b32 {v(T+8)}, {v(T+9)}, {v(T+8)}, vcc
        """)
        for i in range(3):
            L += I(f'buffer_store_dwordx4 {v(OUT+4*i,4)}, {v(T+6+i)}, {s(SRD_WS,4)}, {s(S_T0)} offen sc1', tag='pstore')
        return L1, L

    W2STG = 131072
    def p_w2_load(self, T):
        L = I(f"""
        s_cmp_lt_u32 {s(S_ID)}, 96
        s_cselect_b32 {s(S_DIS)}, 0, {OOB}
        s_min_u32 {s(S_T0)}, {s(S_ID)}, 95
        s_lshl_b32 {s(S_T0)}, {s(S_T0)}, 2
        s_add_u32 {s(S_T0)}, {s(S_T0)}, {s(S_WAVE)}
        s_mul_i32 {s(S_T1)}, {s(S_T0)}, 1366
        s_lshr_b32 {s(S_T1)}, {s(S_T1)}, 16
        s_mul_i32 {s(S_T2)}, {s(S_T1)}, 48
        s_sub_u32 {s(S_T2)}, {s(S_T0)}, {s(S_T2)}
        s_mul_i32 {s(S_T2)}, {s(S_T2)}, {32*1280}
        s_mul_i32 {s(S_T1)}, {s(S_T1)}, 160
        s_add_u32 {s(S_T2)}, {s(S_T2)}, {s(S_T1)}
        s_mul_i32 {s(S_W2OFF)}, {s(S_T0)}, 5120
        s_add_u32 {s(S_W2OFF)}, {s(S_W2OFF)}, {WS_W2T}
        s_mul_i32 {s(S_T3)}, {s(S_WAVE)}, 5120
        s_add_u32 {s(S_T3)}, {s(S_T3)}, {self.W2STG}
        s_mov_b32 {s(S_T1)}, 0x1999999a
        """)
        for n in range(5):
            comp = 1024 * n if n < 4 else 0
            L += I(f"""
            v_add_u32 {v(T)}, {64*n}, v1
            v_mul_hi_u32 {v(T+1)}, {v(T)}, {s(S_T1)}
            v_mul_u32_u24 {v(T+2)}, 10, {v(T+1)}
            v_sub_u32 {v(T+2)}, {v(T)}, {v(T+2)}
            v_mul_u32_u24 {v(T+1)}, 1280, {v(T+1)}
            v_lshl_add_u32 {v(T+1)}, {v(T+2)}, 4, {v(T+1)}
            v_subrev_u32 {v(T+8+n)}, {comp}, {v(T+1)}
            v_or_b32 {v(T+8+n)}, {s(S_DIS)}, {v(T+8+n)}
            """)
        L += I(f's_mov_b32 m0, {s(S_T3)}')
        for n in range(4): L += I(f'buffer_load_dwordx4 {v(T+8+n)}, {s(SRD_W2,4)}, {s(S_T2)} offen offset:{1024*n} lds', tag='w2slab')
        L += I(f's_add_u32 m0, {s(S_T3)}, 4096')
        L += I(f'buffer_load_dwordx4 {v(T+12)}, {s(SRD_W2,4)}, {s(S_T2)} offen lds', tag='w2slab')
        L += I(f"""
        v_bfe_u32 {v(T)}, v1, 5, 1
        v_lshlrev_b32 {v(T)}, 4, {v(T)}
        v_bfe_u32 {v(T+1)}, v1, 4, 1
        v_lshl_add_u32 {v(T)}, {v(T+1)}, 2, {v(T)}
        v_bfe_u32 {v(T+1)}, v1, 2, 2
        v_add_u32 {v(T)}, {v(T)}, {v(T+1)}
        v_mul_u32_u24 {v(T)}, 160, {v(T)}
        v_and_b32 {v(T+1)}, 3, v1
        v_lshl_add_u32 {v(T)}, {v(T+1)}, 3, {v(T)}
        v_add_u32 {v(T+13)}, {s(S_T3)}, {v(T)}
        v_lshlrev_b32 {v(T+14)}, 4, v1
        v_or_b32 {v(T+14)}, {s(S_DIS)}, {v(T+14)}
        """)
        return L
    def p_w2_store(self, T, R):
        L = [waitvm('w2slab')]
        for ct in range(5):
            for al in range(2): L += I(f'ds_read_b64_tr_b16 {v(R[ct]+2*al,2)}, {v(T+13)} offset:{al*1280 + ct*32}')
        for ct in range(5):
            if ct == 4:
                L += I(f's_add_u32 {s(S_W2OFF)}, {s(S_W2OFF)}, 4096')
                L += I(f'buffer_store_dwordx4 {v(R[ct],4)}, {v(T+14)}, {s(SRD_WS,4)}, {s(S_W2OFF)} offen sc1', tag='wstore')
            else:
                L += I(f'buffer_store_dwordx4 {v(R[ct],4)}, {v(T+14)}, {s(SRD_WS,4)}, {s(S_W2OFF)} offen offset:{1024*ct} sc1', tag='wstore')
        return L

    XST, WST, CSA = 0, 65536, 155648
    NST = 4
    G_XD, G_WD, G_XA, G_XB, G_WA, G_WC = 2, 6, 9, 13, 17, 18
    G_ACC, G_XF, G_WF, G_CSF, G_CS = 20, 68, 76, 100, 112
    G_ONE = 112
    def g1_setup(self, T):
        XD, WD, XA, XB, WA, WC = self.G_XD, self.G_WD, self.G_XA, self.G_XB, self.G_WA, self.G_WC
        L = I(f"""
        v_lshrrev_b32 {v(T)}, 3, v1
        v_and_b32 {v(T+1)}, 7, v1
        v_lshrrev_b32 {v(T+2)}, 4, v1
        s_lshl_b32 {s(S_T0)}, {s(S_WAVE)}, 5
        v_add_u32 {v(T)}, {s(S_T0)}, {v(T)}
        v_mul_u32_u24 {v(T)}, 1280, {v(T)}
        v_xor_b32 {v(T+3)}, {v(T+1)}, {v(T+2)}
        v_add_u32 {v(T+4)}, 4, {v(T+2)}
        v_xor_b32 {v(T+4)}, {v(T+1)}, {v(T+4)}
        v_lshl_add_u32 {v(XD)}, {v(T+3)}, 4, {v(T)}
        v_lshl_add_u32 {v(T+4)}, {v(T+4)}, 4, {v(T)}
        v_add_u32 {v(XD+1)}, {10240-1024}, {v(T+4)}
        v_add_u32 {v(XD+2)}, {20480-2048}, {v(XD)}
        v_add_u32 {v(XD+3)}, {30720-3072}, {v(T+4)}
        s_mul_i32 {s(S_XOFF)}, {s(S_T)}, 163840
        s_lshl_b32 {s(S_XM0)}, {s(S_WAVE)}, 12
        s_mul_i32 {s(S_WOFF)}, {s(S_FS)}, 192
        s_mul_i32 {s(S_WM0)}, {s(S_WAVE)}, 3072
        s_add_u32 {s(S_WM0)}, {s(S_WM0)}, {self.WST}
        s_mul_i32 {s(S_T0)}, {s(S_WAVE)}, 192
        s_mov_b32 {s(S_T1)}, 0x15555556
        """)
        for i in range(3):
            L += I(f"""
            v_add_u32 {v(T)}, {s(S_T0)}, v1
            v_add_u32 {v(T)}, {64*i}, {v(T)}
            v_mul_hi_u32 {v(T+1)}, {v(T)}, {s(S_T1)}
            v_mul_u32_u24 {v(T+2)}, 12, {v(T+1)}
            v_sub_u32 {v(T+2)}, {v(T)}, {v(T+2)}
            v_mul_u32_u24 {v(T+1)}, 3072, {v(T+1)}
            v_lshl_add_u32 {v(T+1)}, {v(T+2)}, 4, {v(T+1)}
            v_subrev_u32 {v(WD+i)}, {1024*i}, {v(T+1)}
            """)
        return L
    def g1_setup2(self, T):
        XA, XB, WA, WC = self.G_XA, self.G_XB, self.G_WA, self.G_WC
        L = I(f"""
        v_and_b32 {v(T)}, 31, v1
        v_lshrrev_b32 {v(T+1)}, 5, v1
        v_bfe_u32 {v(T+2)}, v1, 1, 3
        v_lshlrev_b32 {v(T)}, 7, {v(T)}
        v_add_u32 {v(T)}, {s(S_XM0)}, {v(T)}
        """)
        for ks in range(4):
            L += I(f"""
            v_add_u32 {v(T+3)}, {2*ks}, {v(T+1)}
            v_xor_b32 {v(T+3)}, {v(T+3)}, {v(T+2)}
            v_lshl_add_u32 {v(XA+ks)}, {v(T+3)}, 4, {v(T)}
            """)
        L += I(f"""
        v_lshrrev_b32 {v(T)}, 5, v1
        v_lshlrev_b32 {v(T)}, 3, {v(T)}
        v_bfe_u32 {v(T+1)}, v1, 2, 2
        v_add_u32 {v(T)}, {v(T)}, {v(T+1)}
        v_mul_u32_u24 {v(T)}, 192, {v(T)}
        v_bfe_u32 {v(T+1)}, v1, 4, 1
        v_lshl_add_u32 {v(T)}, {v(T+1)}, 5, {v(T)}
        v_and_b32 {v(T+1)}, 3, v1
        v_lshl_add_u32 {v(T)}, {v(T+1)}, 3, {v(T)}
        v_add_u32 {v(WA)}, {self.WST}, {v(T)}
        s_mul_i32 {s(S_T0)}, {s(S_WAVE)}, 3072
        v_add_u32 {v(WC)}, {s(S_T0)}, {v(WA)}
        """)
        return L
    def g1_dma(self, c):
        XD, WD = self.G_XD, self.G_WD
        stg = c % self.NST
        L = [f's_add_u32 m0, {s(S_XM0)}, {self.XST + stg*16384}']
        for i in range(4): L.append(f'buffer_load_dwordx4 {v(XD+i)}, {s(SRD_Q,4)}, {s(S_XOFF)} offen offset:{1024*i} lds')
        L.append(f's_add_u32 {s(S_XOFF)}, {s(S_XOFF)}, 128')
        L.append(f's_add_u32 m0, {s(S_WM0)}, {stg*12288}')
        for i in range(3): L.append(f'buffer_load_dwordx4 {v(WD+i)}, {s(SRD_W1,4)}, {s(S_WOFF)} offen offset:{1024*i} lds')
        L.append(f's_add_u32 {s(S_WOFF)}, {s(S_WOFF)}, {64*3072}')
        return [Ins(t, tag='g1c%d' % c) for t in L]
    def g1_reads(self, n):
        c, ks = n >> 2, n & 3
        stg = c % self.NST; b = n & 1
        XF, WF = self.G_XF + 4 * b, self.G_WF + 12 * b
        L = [f'ds_read_b128 {v(XF,4)}, {v(self.G_XA+ks)} offset:{stg*16384}']
        for ft in range(3):
            for al in range(2):
                L.append(f'ds_read_b64_tr_b16 {v(WF+4*ft+2*al,2)}, {v(self.G_WA)} offset:{stg*12288 + (16*ks+4*al)*192 + ft*64}')
        return [Ins(t) for t in L]
    def g1_cs_reads(self, c):
        stg = c % self.NST
        return [Ins(f'ds_read_b64_tr_b16 {v(self.G_CSF+4*ft+2*al,2)}, {v(self.G_WC)} offset:{stg*12288 + (4*al)*192 + ft*64}') for ft in range(3) for al in range(2)]
    def g1_cs_mfma(self, first):
        return [Ins(f'v_mfma_f32_32x32x16_bf16 {a_(208+16*ft,16)}, {v(self.G_ONE,4)}, {v(self.G_CSF+4*ft,4)}, ' + ('0' if first else a_(208+16*ft,16))) for ft in range(3)]
    def g1_init(self):
        L = []
        for i in range(48): L += I(f'v_mov_b32 {v(self.G_ACC+i)}, 0')
        for i in range(4): L += I(f'v_mov_b32 {v(self.G_ONE+i)}, {s(S_ONES)}')
        return L
    def g1_main(self, bg, bgv):
        ACC = self.G_ACC
        out = [waitvm('g1c0'), waitlds()] + I('s_barrier') + self.g1_reads(0)
        for c in range(10):
            main = []
            for ks in range(4):
                n = 4 * c + ks
                b = n & 1
                M = [Ins(f'v_mfma_f32_32x32x16_bf16 {v(ACC+16*ft,16)}, {v(self.G_WF+12*b+4*ft,4)}, {v(self.G_XF+4*b,4)}, {v(ACC+16*ft,16)}') for ft in range(3)]
                pre = []; R = []
                if n + 1 < 40:
                    if ks == 3: pre = [waitvm('g1c%d' % (c + 1)), waitlds()] + I('s_barrier')
                    R = self.g1_reads(n + 1)
                X = []
                if ks == 0: X = self.g1_cs_reads(c)
                if ks == 2: X = self.g1_cs_mfma(c == 0)
                main += [M[0]] + pre + R[:4] + [M[1]] + R[4:] + X[:3] + [M[2]] + X[3:]
            B = list(bg.get(c, []))
            out += self.ts('g1 c%d' % c)
            m1 = merge(main, B, 0.0, 0.8)
            bar = [k for k, i in enumerate(m1) if i.op == 's_barrier']
            if bar:
                cut = bar[-1]
                while m1[cut - 1].kind in ('waitvm', 'waitlds'): cut -= 1
                out += merge_time(m1[:cut], bgv.get(c, []), 0.02, 0.98) + m1[cut:]
            else:
                out += merge_time(m1, bgv.get(c, []), 0.02, 0.98)
        return out
    def g1_epilogue(self, bg, ldsbg=None):
        ACC = self.G_ACC
        ST_, B1, AX, BX, RS, AD = 116, 118, 76, 88, 92, 94
        CS = self.G_CS
        L = I(f"""
        v_and_b32 {v(AD)}, 31, v1
        v_lshlrev_b32 {v(AD)}, 2, {v(AD)}
        v_add_u32 {v(AD)}, {self.CSA}, {v(AD)}
        s_mul_i32 {s(S_T0)}, {s(S_WAVE)}, 384
        v_add_u32 {v(AD+1)}, {s(S_T0)}, {v(AD)}
        """)
        for ft in range(3): L += I(f'v_accvgpr_read_b32 {v(CS+ft)}, {a_(208+16*ft)}')
        for ft in range(3): L += I(f'ds_write_b32 {v(AD+1)}, {v(CS+ft)} offset:{128*ft}')
        L += [waitlds()] + I('s_barrier') + self.ts('ep: barrier')
        for w in range(4):
            for ft in range(3): L += I(f'ds_read_b32 {v(100+3*w+ft)}, {v(AD)} offset:{384*w + 128*ft}')
        L += I(f"""
        v_cmp_gt_u32 vcc, 32, v1
        v_rcp_f32 {v(RS)}, {v(ST_+1)}
        v_xor_b32 {v(BX)}, 0x80000000, {v(ST_)}
        v_lshrrev_b32 {v(BX+1)}, 16, {v(BX)}
        v_or_b32 {v(BX)}, {v(BX)}, {v(BX+1)}
        v_lshrrev_b32 {v(BX+1)}, 16, {v(ST_+1)}
        v_mov_b32 {v(BX+2)}, 0
        v_mov_b32 {v(BX+3)}, 0
        """)
        for ft in range(3):
            a = AX + 4 * ft; cs = CS + ft
            L += I(f"""
            v_add_f32 {v(cs)}, {v(100+ft)}, {v(103+ft)}
            v_add_f32 {v(a)}, {v(106+ft)}, {v(109+ft)}
            v_add_f32 {v(cs)}, {v(cs)}, {v(a)}
            v_cvt_pk_bf16_f32 {v(a)}, {v(cs)}, {v(cs)}
            v_lshlrev_b32 {v(a+1)}, 16, {v(a)}
            v_sub_f32 {v(a+1)}, {v(cs)}, {v(a+1)}
            v_cvt_pk_bf16_f32 {v(a)}, {v(cs)}, {v(a+1)}
            v_cndmask_b32 {v(a)}, 0, {v(a)}, vcc
            v_cndmask_b32 {v(a+1)}, 0, {v(B1+ft)}, vcc
            v_mov_b32 {v(a+2)}, 0
            v_mov_b32 {v(a+3)}, 0
            v_mfma_f32_32x32x16_bf16 {v(ACC+16*ft,16)}, {v(a,4)}, {v(BX,4)}, {v(ACC+16*ft,16)}
            """)
        L += I(f"""
        s_lshl_b32 {s(S_T0)}, {s(S_T)}, 3
        s_lshl_b32 {s(S_T1)}, {s(S_WAVE)}, 1
        s_add_u32 {s(S_T0)}, {s(S_T0)}, {s(S_T1)}
        s_mul_i32 {s(S_T0)}, {s(S_T0)}, {48*1024}
        s_mul_i32 {s(S_T1)}, {s(S_FS)}, 3072
        s_add_u32 {s(S_T0)}, {s(S_T0)}, {s(S_T1)}
        s_add_u32 {s(S_T4)}, {s(S_T0)}, {WS_H}
        v_bfe_u32 {v(AD)}, v1, 4, 1
        v_mul_u32_u24 {v(AD)}, {48*1024}, {v(AD)}
        v_lshrrev_b32 {v(AD+1)}, 5, v1
        v_lshl_add_u32 {v(AD)}, {v(AD+1)}, 8, {v(AD)}
        v_and_b32 {v(AD+1)}, 15, v1
        v_lshl_add_u32 {v(AD)}, {v(AD+1)}, 4, {v(AD)}
        """)
        E = []
        for ft in range(3):
            A = ACC + 16 * ft
            for cc in range(2):
                for p in range(4 * cc, 4 * cc + 4):
                    r = A + 2 * p
                    E += I(f"""
                    v_max_f32 {v(r)}, 0, {v(r)}
                    v_max_f32 {v(r+1)}, 0, {v(r+1)}
                    v_pk_mul_f32 {v(r,2)}, {v(r,2)}, {v(RS,2)} op_sel_hi:[1,0]
                    v_pk_mul_f32 {v(r,2)}, {v(r,2)}, {v(r,2)}
                    """)
                for d in range(4):
                    r = A + 8 * cc + 2 * d
                    E += I(f'v_cvt_pk_bf16_f32 {v(A+8*cc+d)}, {v(r)}, {v(r+1)}')
                E += I(f'buffer_store_dwordx4 {v(A+8*cc,4)}, {v(AD)}, {s(SRD_WS,4)}, {s(S_T4)} offen offset:{1024*ft + 512*cc} sc1', tag='hstore')
        if ldsbg: E = merge(E, ldsbg)
        return L + self.ts('ep: xmfma') + merge_time(E, bg)

    def w2_setup(self, vaddr):
        return I(f"""
        s_mul_i32 {s(S_W2OFF)}, {s(S_CS)}, {48*5120}
        s_mul_i32 {s(S_T0)}, {s(S_WAVE)}, {12*5120}
        s_add_u32 {s(S_W2OFF)}, {s(S_W2OFF)}, {s(S_T0)}
        s_add_u32 {s(S_W2OFF)}, {s(S_W2OFF)}, {WS_W2T}
        v_lshlrev_b32 {v(vaddr)}, 4, v1
        """)
    def w2_load(self, n, vaddr):
        L = I(f'buffer_load_dwordx4 {a_(4*n,4)}, {v(vaddr)}, {s(SRD_WS,4)}, {s(S_W2OFF)} offen offset:{1024*(n%4)} sc1', tag='w2')
        if n % 4 == 3: L += I(f's_add_u32 {s(S_W2OFF)}, {s(S_W2OFF)}, 4096')
        return L

    CWS = 21248
    C_S0, C_S1, C_S2 = 208, 224, 240
    C_ACC, C_XF, C_HF, C_HD, C_XB, C_HB = 20, 52, 116, 132, 136, 137
    def c_hload(self):
        A = 200
        L = I(f"""
        s_lshl_b32 {s(S_T0)}, {s(S_ID)}, 2
        s_add_u32 {s(S_T0)}, {s(S_T0)}, {s(S_WAVE)}
        s_lshl_b32 {s(S_T1)}, {s(S_T0)}, 1
        s_and_b32 {s(S_T1)}, {s(S_T1)}, -4
        s_load_dword {s(S_DVAL)}, {s(P_SSMD,2)}, {s(S_T1)}
        s_lshl_b32 {s(S_T0)}, {s(S_T0)}, 12
        v_lshlrev_b32 {v(A)}, 4, v1
        """)
        for i in range(4):
            L += I(f'buffer_load_dwordx4 {v(self.C_S0+4*i,4)}, {v(A)}, {s(SRD_H,4)}, {s(S_T0)} offen offset:{1024*i}')
        return L
    def c_prep_regs(self):
        S0, S1, S2 = self.C_S0, self.C_S1, self.C_S2
        L = []
        DP = 'row_mask:0xf bank_mask:0xf'
        for i in range(4):
            s0, q2, q3, q1, p2 = S0 + 4*i, S1 + 4*i, S2 + 4*i, 160 + 4*i, 201
            if i == 0:
                L += I(f'v_mov_b32 {v(q2)}, 0\nv_mov_b32 {v(p2)}, 0')
            else:
                L += I(f'v_mov_b32_dpp {v(q2)}, {v(s0-1)} wave_ror:1 {DP}\nv_mov_b32_dpp {v(p2)}, {v(s0-2)} wave_ror:1 {DP}')
            L += I(f"""
            v_mov_b32 {v(q2+1)}, {v(s0)}
            v_mov_b32 {v(q2+2)}, {v(s0+1)}
            v_mov_b32_dpp {v(q2)}, {v(s0+3)} wave_shr:1 {DP}
            v_mov_b32_dpp {v(p2)}, {v(s0+2)} wave_shr:1 {DP}
            v_mov_b32 {v(q2+3)}, {v(s0+2)}
            v_alignbit_b32 {v(q1+1)}, {v(s0+1)}, {v(s0)}, 16
            v_alignbit_b32 {v(q1+2)}, {v(s0+2)}, {v(s0+1)}, 16
            v_alignbit_b32 {v(q1+3)}, {v(s0+3)}, {v(s0+2)}, 16
            v_alignbit_b32 {v(q1)}, {v(s0)}, {v(q2)}, 16
            v_alignbit_b32 {v(q3)}, {v(q2)}, {v(p2)}, 16
            v_mov_b32 {v(q3+2)}, {v(q1+1)}
            v_mov_b32 {v(q3+3)}, {v(q1+2)}
            v_mov_b32 {v(q3+1)}, {v(q1)}
            """)
        return L
    def c_prep_addr(self):
        L = []
        L += I(f"""
        s_mul_i32 {s(S_T0)}, {s(S_WAVE)}, {self.CWS}
        s_add_u32 {s(S_T0)}, {s(S_T0)}, 90112
        s_cmp_eq_u32 {s(S_WAVE)}, 3
        s_cselect_b32 {s(S_T0)}, 32768, {s(S_T0)}
        v_lshlrev_b32 v176, 4, v1
        v_add_u32 v176, {s(S_T0)}, v176
        v_bfe_u32 v177, v1, 1, 2
        v_mul_u32_u24 v177, 4160, v177
        v_and_b32 v178, 1, v1
        v_lshl_add_u32 v177, v178, 4, v177
        v_add_u32 v177, {s(S_T0)}, v177
        v_min_u32 v179, 29, v1
        v_lshlrev_b32 v179, 4, v179
        s_add_u32 {s(S_T0)}, {s(S_T0)}, 16640
        v_add_u32 v179, {s(S_T0)}, v179
        v_mov_b32 v180, 0
        v_mov_b32 v181, 0
        v_mov_b32 v182, 0
        v_mov_b32 v183, 0
        """)
        XB, HB, HD = self.C_XB, self.C_HB, self.C_HD
        L += I(f"""
        v_and_b32 v184, 15, v1
        v_lshrrev_b32 v185, 4, v1
        v_lshlrev_b32 {v(XB)}, 5, v184
        v_lshlrev_b32 v186, 4, v185
        v_sub_u32 {v(XB)}, {v(XB)}, v186
        v_add_u32 {v(XB)}, 48, {v(XB)}
        v_add_u32 {v(XB)}, {s(S_T0)}, {v(XB)}
        v_bfe_u32 v187, v1, 2, 2
        v_mul_u32_u24 {v(HB)}, 4160, v187
        v_add_u32 {v(HB)}, {v(HB)}, v186
        v_and_b32 v187, 3, v1
        v_lshl_add_u32 {v(HB)}, v187, 3, {v(HB)}
        s_sub_u32 {s(S_T0)}, {s(S_T0)}, {16640 - 8}
        v_add_u32 {v(HB)}, {s(S_T0)}, {v(HB)}
        s_and_b32 {s(S_T1)}, {s(S_WAVE)}, 1
        s_lshl_b32 {s(S_T1)}, {s(S_T1)}, 4
        s_lshr_b32 {s(S_DVAL)}, {s(S_DVAL)}, {s(S_T1)}
        s_and_b32 {s(S_DVAL)}, {s(S_DVAL)}, 0xffff
        v_lshrrev_b32 v186, 3, v184
        v_add_u32 v186, v186, v185
        v_and_b32 v187, 1, v184
        v_lshlrev_b32 v187, 4, v187
        v_lshlrev_b32 v187, v187, {s(S_DVAL)}
        v_bfe_u32 v188, v184, 1, 2
        v_mov_b32 v189, 99
        v_cmp_eq_u32 vcc, 1, v186
        v_cndmask_b32 v188, v189, v188, vcc
        """)
        for w in range(4): L += I(f'v_cmp_eq_u32 vcc, {w}, v188\nv_cndmask_b32 {v(HD+w)}, 0, v187, vcc')
        return L
    def c_write_copies(self):
        S0, S1, S2 = self.C_S0, self.C_S1, self.C_S2
        L = I('ds_write_b128 v177, v[180:183]\nds_write_b128 v179, v[180:183]')
        for i in range(4):
            L += I(f'ds_write_b128 v176, {v(S0+4*i,4)} offset:{32 + 1024*i}')
            L += I(f'ds_write_b128 v176, {v(160+4*i,4)} offset:{32 + 4160 + 1024*i}')
            L += I(f'ds_write_b128 v176, {v(S1+4*i,4)} offset:{32 + 2*4160 + 1024*i}')
            L += I(f'ds_write_b128 v176, {v(S2+4*i,4)} offset:{32 + 3*4160 + 1024*i}')
        return L
    C_XL = 140
    def c_xload(self):
        L = I(f"""
        s_lshl_b32 {s(S_T0)}, {s(S_ID)}, 2
        s_add_u32 {s(S_T0)}, {s(S_T0)}, {s(S_WAVE)}
        s_lshl_b32 {s(S_T0)}, {s(S_T0)}, 12
        s_add_u32 {s(S_T0)}, {s(S_T0)}, {WS_KVT}
        v_lshlrev_b32 v138, 4, v1
        """)
        for i in range(4): L += I(f'buffer_load_dwordx4 {v(self.C_XL+4*i,4)}, v138, {s(SRD_WS,4)}, {s(S_T0)} offen offset:{1024*i} sc1')
        return L
    def c_xwrite(self):
        return [Ins(f'ds_write_b128 v176, {v(self.C_XL+4*i,4)} offset:{16640 + 480 + 1024*i}') for i in range(4)]
    def c_xread(self, q, b):
        return Ins(f'ds_read_b128 {v(self.C_XF + 32*(q&1) + 4*b, 4)}, {v(self.C_XB)} offset:{512*b + 64*(7-q)}')
    def c_hread(self, idx):
        q, a = idx // 8, idx % 8
        r = self.C_HF + 4 * (idx % 4)
        return [Ins(f'ds_read_b64_tr_b16 {v(r+2*al,2)}, {v(self.C_HB)} offset:{512*a + 64*q + 8*(1-al)}') for al in range(2)]
    def c_main(self, bg):
        ACC = self.C_ACC
        out = [self.c_xread(0, b) for b in range(8)]
        for idx in range(3): out += self.c_hread(idx)
        for b in range(8): out += I(f'v_mfma_f32_16x16x32_bf16 {v(ACC+4*b,4)}, {v(self.C_HD,4)}, {v(self.C_XF+4*b,4)}, 0')
        for q in range(8):
            main = []
            for a in range(8):
                idx = 8 * q + a
                hr = self.C_HF + 4 * (idx % 4)
                first = True
                for b in range(7 - a, -1, -1):
                    main.append(Ins(f'v_mfma_f32_16x16x32_bf16 {v(ACC+4*(a+b),4)}, {v(hr,4)}, {v(self.C_XF+32*(q&1)+4*b,4)}, {v(ACC+4*(a+b),4)}'))
                    if first and idx + 3 < 64: main += self.c_hread(idx + 3)
                    first = False
            xr = [self.c_xread(q + 1, b) for b in range(8)] if q < 7 else []
            if q in (0, 2, 4, 6, 7): out += self.ts('conv q%d' % q)
            m1 = merge(main, xr, 0.0, 0.7)
            out += merge(m1, bg.get(q, []), 0.0, 1.0)
        return out
    def c_post(self):
        ACC = self.C_ACC
        L = I(f"""
        s_lshl_b32 {s(S_T0)}, {s(S_ID)}, 2
        s_add_u32 {s(S_T0)}, {s(S_T0)}, {s(S_WAVE)}
        s_lshl_b32 {s(S_T0)}, {s(S_T0)}, 12
        s_add_u32 {s(S_T0)}, {s(S_T0)}, {WS_YT}
        v_and_b32 v52, 15, v1
        v_lshlrev_b32 v52, 5, v52
        v_bfe_u32 v53, v1, 4, 1
        v_lshl_add_u32 v52, v53, 9, v52
        v_bfe_u32 v53, v1, 5, 1
        v_lshl_add_u32 v52, v53, 4, v52
        """)
        for p in range(4):
            Q = 56 + 4 * p
            a0, a1 = ACC + 8 * p, ACC + 8 * p + 4
            L += I(f"""
            v_cvt_pk_bf16_f32 {v(Q)}, {v(a0)}, {v(a0+1)}
            v_cvt_pk_bf16_f32 {v(Q+1)}, {v(a0+2)}, {v(a0+3)}
            v_cvt_pk_bf16_f32 {v(Q+2)}, {v(a1)}, {v(a1+1)}
            v_cvt_pk_bf16_f32 {v(Q+3)}, {v(a1+2)}, {v(a1+3)}
            v_permlane16_swap_b32 {v(Q)}, {v(Q+2)}
            v_permlane16_swap_b32 {v(Q+1)}, {v(Q+3)}
            """)
            L += I(f'buffer_store_dwordx4 {v(Q,4)}, v52, {s(SRD_WS,4)}, {s(S_T0)} offen offset:{1024*p} sc1', tag='ystore')
        return L

    G2_ACC = (20, 40)
    G2_HR, G2_NR, G2_OFF = 104, 38, 11
    G2_HV = 2
    G2_RA = 5
    F_X, F_B, F_ST, F_Y = 60, 70, 80, 82
    F_PP, F_XU, F_T = 188, 104, 124
    def hreg(self, n): return self.G2_HR + 4 * ((n + self.G2_OFF) % self.G2_NR)
    def g2_setup(self):
        L = I(f"""
        v_lshlrev_b32 v2, 4, v1
        v_add_u32 v3, 4096, v2
        v_add_u32 v4, 8192, v2
        s_mul_i32 {s(S_T0)}, {s(S_WAVE)}, {12*1024}
        s_add_u32 {s(S_T0)}, {s(S_T0)}, {WS_H}
        s_lshl_b32 {s(S_T1)}, {s(S_T64)}, 2
        """)
        for sg in range(4):
            L += I(f"""
            s_add_u32 {s(S_T2)}, {s(S_WAVE)}, {1+sg}
            s_and_b32 {s(S_T2)}, {s(S_T2)}, 3
            s_add_u32 {s(S_T3)}, {s(S_T1)}, {s(S_T2)}
            s_mul_i32 {s(S_T3)}, {s(S_T3)}, {48*1024}
            s_add_u32 {s(S_HOFF+sg)}, {s(S_T3)}, {s(S_T0)}
            """)
            if sg < 3:
                L += I(f"""
                s_mul_i32 {s(S_T2)}, {s(S_T2)}, 15360
                s_add_u32 {s(S_T2)}, {s(S_T2)}, {5120*sg}
                v_add_u32 {v(self.G2_RA+sg)}, {s(S_T2)}, v2
                """)
        L += I(f's_mul_i32 {s(S_T2)}, {s(S_WAVE)}, 15360\nv_add_u32 v8, {s(S_T2)}, v2')
        return L
    def g2_hload(self, n):
        sg, kk = n // 12, n % 12
        return Ins(f'buffer_load_dwordx4 {v(self.hreg(n),4)}, {v(self.G2_HV + kk//4)}, {s(SRD_WS,4)}, {s(S_HOFF+sg)} offen offset:{1024*(kk%4)} sc1')
    def f_loads(self):
        L = I(f"""
        s_lshl_b32 {s(S_T0)}, {s(S_T64)}, 6
        s_lshl_b32 {s(S_T1)}, {s(S_WAVE)}, 4
        s_add_u32 {s(S_T0)}, {s(S_T0)}, {s(S_T1)}
        v_and_b32 v9, 15, v1
        v_add_u32 v9, {s(S_T0)}, v9
        v_lshrrev_b32 v10, 4, v1
        s_mul_i32 {s(S_T2)}, {s(S_CS)}, 160
        v_lshl_add_u32 v10, v10, 3, {s(S_T2)}
        v_mul_u32_u24 v11, 1280, v9
        v_add_u32 v11, v11, v10
        """)
        for ct in range(5): L += I(f'buffer_load_dwordx2 {v(self.F_X+2*ct,2)}, v11, {s(SRD_Q,4)}, 0 offen offset:{32*ct}')
        for ct in range(5): L += I(f'global_load_dwordx2 {v(self.F_B+2*ct,2)}, v10, {s(P_B2,2)} offset:{32*ct}')
        L += I(f"""
        v_lshlrev_b32 v12, 3, v9
        v_add_u32 v12, {WS_STATS}, v12
        buffer_load_dwordx2 {v(self.F_ST,2)}, v12, {s(SRD_WS,4)}, 0 offen sc1
        """)
        return L
    def f_yloads(self):
        L = I(f"""
        v_lshlrev_b32 v12, 11, v10
        v_lshl_add_u32 v12, v9, 1, v12
        v_add_u32 v12, {WS_YT}, v12
        """)
        for ct in range(5):
            for r in range(4):
                L += I(f's_mov_b32 {s(S_T0)}, {(16*ct + r)*4096}')
                L += I(f'buffer_load_ushort {v(self.F_Y+4*ct+r)}, v12, {s(SRD_WS,4)}, {s(S_T0)} offen sc1')
        return L
    def f_pre(self):
        XU, SU, T, PP = self.F_XU, self.F_Y, self.F_T, self.F_PP
        X, B, ST_ = self.F_X, self.F_B, self.F_ST
        L = I(f"""
        v_rcp_f32 {v(T)}, {v(ST_+1)}
        v_mul_f32 {v(T+1)}, {v(ST_)}, {v(T)}
        v_xor_b32 {v(T+1)}, 0x80000000, {v(T+1)}
        """)
        for p in range(10):
            L += I(f"""
            v_lshlrev_b32 {v(XU+2*p)}, 16, {v(X+p)}
            v_and_b32 {v(XU+2*p+1)}, 0xffff0000, {v(X+p)}
            v_lshlrev_b32 {v(SU+2*p)}, 16, {v(SU+2*p)}
            v_lshlrev_b32 {v(SU+2*p+1)}, 16, {v(SU+2*p+1)}
            v_fma_f32 {v(T+2)}, {v(XU+2*p)}, {v(T)}, {v(T+1)}
            v_fma_f32 {v(T+3)}, {v(XU+2*p+1)}, {v(T)}, {v(T+1)}
            v_mul_f32 {v(SU+2*p)}, {v(SU+2*p)}, {v(T+2)}
            v_mul_f32 {v(SU+2*p+1)}, {v(SU+2*p+1)}, {v(T+3)}
            """)
        P2 = []
        for p in range(10):
            P2 += I(f"""
            v_lshlrev_b32 {v(T+4)}, 16, {v(B+p)}
            v_and_b32 {v(T+5)}, 0xffff0000, {v(B+p)}
            v_add_f32 {v(PP+2*p)}, {v(PP+2*p)}, {v(PP+20+2*p)}
            v_add_f32 {v(PP+2*p+1)}, {v(PP+2*p+1)}, {v(PP+21+2*p)}
            v_add_f32 {v(T+4)}, {v(T+4)}, {v(PP+40+2*p)}
            v_add_f32 {v(T+5)}, {v(T+5)}, {v(PP+41+2*p)}
            v_add_f32 {v(PP+2*p)}, {v(PP+2*p)}, {v(T+4)}
            v_add_f32 {v(PP+2*p+1)}, {v(PP+2*p+1)}, {v(T+5)}
            """)
        return L, P2
    def f_final(self):
        ACC = self.G2_ACC[1]; PP = self.F_PP
        XU, SU, T, X = self.F_XU, self.F_Y, self.F_T, self.F_X
        L = I(f's_mov_b32 {s(S_T0)}, {f2h(-1.4426950408889634)}')
        for ct in range(5):
            for h in range(2):
                p = 2 * ct + h
                U = T + 2 + 2 * (p & 1) + 4
                L += I(f"""
                v_pk_add_f32 {v(ACC+2*p,2)}, {v(ACC+2*p,2)}, {v(PP+2*p,2)}
                v_mul_f32 {v(U)}, {s(S_T0)}, {v(ACC+2*p)}
                v_mul_f32 {v(U+1)}, {s(S_T0)}, {v(ACC+2*p+1)}
                v_exp_f32 {v(U)}, {v(U)}
                v_exp_f32 {v(U+1)}, {v(U+1)}
                v_add_f32 {v(U)}, 1.0, {v(U)}
                v_add_f32 {v(U+1)}, 1.0, {v(U+1)}
                v_rcp_f32 {v(U)}, {v(U)}
                v_rcp_f32 {v(U+1)}, {v(U+1)}
                v_pk_mul_f32 {v(U,2)}, {v(U,2)}, {v(ACC+2*p,2)}
                v_pk_fma_f32 {v(U,2)}, {v(U,2)}, {v(SU+2*p,2)}, {v(XU+2*p,2)}
                v_cvt_pk_bf16_f32 {v(X+p)}, {v(U)}, {v(U+1)}
                """)
            L += I(f'buffer_store_dwordx2 {v(X+2*ct,2)}, v11, {s(SRD_OUT,4)}, 0 offen offset:{32*ct}')
        return L
    def g2_main(self, first_unloaded, mid):
        out = []
        nxt = first_unloaded
        pre1, pre2 = self.f_pre()
        for sg in range(4):
            ACC = self.G2_ACC[sg & 1]
            for kk in range(12):
                n = sg * 12 + kk
                M = []
                for ct in range(5):
                    c = '0' if kk == 0 else v(ACC + 4 * ct, 4)
                    M.append(Ins(f'v_mfma_f32_16x16x32_bf16 {v(ACC+4*ct,4)}, {a_(20*kk+4*ct,4)}, {v(self.hreg(n),4)}, {c}'))
                B = []
                cnt = 0
                while nxt < 48 and nxt - self.G2_NR <= n - 1 and cnt < 1 and (nxt - first_unloaded) <= n:
                    B.append(self.g2_hload(nxt)); nxt += 1; cnt += 1
                B += mid.get(n, [])
                if sg >= 1 and kk == 1:
                    P = self.G2_ACC[(sg - 1) & 1]
                    B += [Ins(f'ds_write_b128 {v(self.G2_RA+sg-1)}, {v(P+4*ct,4)} offset:{1024*ct}') for ct in range(5)]
                if sg == 3 and kk == 3:
                    B += [waitlds()] + I('s_barrier')
                    for sp in range(3):
                        for ct in range(5):
                            B.append(Ins(f'ds_read_b128 {v(self.F_PP + 4*(5*sp+ct), 4)}, v8 offset:{5120*sp + 1024*ct}'))
                if sg == 3 and 4 <= kk < 8:
                    k = kk - 4; m = (len(pre2) + 3) // 4
                    B += pre2[k*m:(k+1)*m]
                if sg == 3 and 8 <= kk < 12:
                    k = kk - 8; m = (len(pre1) + 3) // 4
                    B += pre1[k*m:(k+1)*m]
                if kk == 0 or n in (1, 4): out += self.ts('g2 n%d' % n)
                out += merge(M, B)
        assert nxt == 48
        return out

TSNAMES = {}
def build_role(role, o):
    g = Gen(role, o)
    L = []
    def ts(name): return g.ts(name)
    L += ts('entry')
    if o.get('ts'): L += I('s_memrealtime s[6:7]\ns_waitcnt lgkmcnt(0)\nv_writelane_b32 v19, s6, 62')
    if o.get('pfcode'):
        L += I(f"""
        s_getpc_b64 s[6:7]
        """)
        L[-1].text += f'\nLpc_{role}:'
        L += I(f"""
        s_mov_b32 s8, Lend_{role}-Lpc_{role}-4
        v_and_b32 v3, 63, v0
        v_lshlrev_b32 v3, 7, v3
        v_lshrrev_b32 v4, 6, v0
        v_lshl_add_u32 v3, v4, 13, v3
        v_min_u32 v3, s8, v3
        global_load_dword a203, v3, s[6:7]
        """)
    L += g.prologue()
    first = [(SRD_Q, P_Q, S*D*2), (SRD_K, P_K, S*D*2), (SRD_V, P_V, S*D*2), (SRD_WS, P_WS, WS_BYTES), (SRD_W1, P_W1, D*F*2)]
    if role == 'A': first += [(SRD_W2, P_W2, D*F*2)]
    rest = [(SRD_OUT, P_OUT, S*D*2)] + ([(SRD_H, P_SSMK, S*D*2)] if role == 'A' else [])
    L += g.srds(first)
    L += I(f's_load_dword {s(S_EPOCH)}, {s(P_WS,2)}, {WS_EPOCH}')
    if o.get('pftlb'):
        stride = int(o.get('pftlb_stride', 20))
        L += I(f"""
        v_lshlrev_b32 v3, {stride}, v1
        buffer_load_dword a200, v3, {s(SRD_WS,4)}, 0 offen
        """)
        L += g.srds([(SRD_OUT, P_OUT, S*D*2)] + ([(SRD_H, P_SSMK, S*D*2)] if role == 'A' else [(SRD_W2, P_W2, D*F*2)]))
        L += I(f"""
        buffer_load_dword a201, v3, {s(SRD_OUT,4)}, 0 offen
        buffer_load_dword a202, v3, {s(SRD_H if role == 'A' else SRD_W2,4)}, 0 offen
        """)
    L += ts('prologue')
    L += g.p_kv_load()
    L += g.g1_setup(20)
    L += g.g1_dma(0)
    if role == 'A': L += g.p_w2_load(240)
    L += ts('P loads')
    pk1, pk2 = g.p_kv_compute()
    L += merge_time(g.srds(rest) + g.g1_setup2(20) + g.g1_init() + pk1, g.g1_dma(1) + g.g1_dma(2), 0.05, 1.0)
    L += ts('pk1 done')
    L += g.p_stat_load(228)
    L += [waitlds()] + I('s_barrier') + pk2 + g.make_tag()
    L += ts('P done')
    bg = {c: [] for c in range(10)}
    bgv = {c: [] for c in range(10)}
    for c in range(0, 7): bgv[c] += g.g1_dma(c + 3)
    bg[0] += I(f"""
        s_mul_i32 {s(S_T0)}, {s(S_FS)}, 192
        v_and_b32 v121, 31, v1
        v_lshl_add_u32 v121, v121, 1, {s(S_T0)}
        global_load_ushort v118, v121, {s(P_B1,2)}
        global_load_ushort v119, v121, {s(P_B1,2)} offset:64
        global_load_ushort v120, v121, {s(P_B1,2)} offset:128
        """)
    if role == 'A': bg[0] += g.p_w2_store(240, [144, 148, 152, 156, 160])
    bg[1] += g.p_stat_compute(228)
    bg[3] += [waitvm('wstore'), waitvm('pstore')]
    bg[4] = g.set_flag(WS_FLAG_P, f's_mov_b32 {s(S_T0)}, {s(S_ID)}', 124, 125) + bg[4]
    comb = I(f"""
        s_mul_i32 {s(S_T0)}, {s(S_CS)}, 12
        s_mul_i32 {s(S_T1)}, {s(S_WAVE)}, 3
        s_add_u32 {s(S_T0)}, {s(S_T0)}, {s(S_T1)}
        v_min_u32 v126, 2, v1
        v_add_u32 v126, {s(S_T0)}, v126
        s_lshl_b32 {s(S_T0)}, {s(S_T)}, 7
        s_lshl_b32 {s(S_T1)}, {s(S_WAVE)}, 5
        s_add_u32 {s(S_T0)}, {s(S_T0)}, {s(S_T1)}
        s_and_b32 {s(S_T1)}, {s(S_T0)}, 0xf8
        s_lshr_b32 {s(S_T0)}, {s(S_T0)}, 8
        s_add_u32 {s(S_T0)}, {s(S_T0)}, {s(S_T1)}
        v_and_b32 v127, 3, v1
        v_lshlrev_b32 v127, 3, v127
        v_add_u32 v127, {s(S_T0)}, v127
        v_lshrrev_b32 v125, 2, v1
        v_cmp_eq_u32 vcc, 1, v125
        v_cndmask_b32 v126, v126, v127, vcc
        """)
    if role == 'A':
        comb += I(f"""
        s_mul_i32 {s(S_T0)}, {s(S_ID)}, 3277
        s_lshr_b32 {s(S_T0)}, {s(S_T0)}, 16
        s_lshl_b32 {s(S_T0)}, {s(S_T0)}, 3
        v_and_b32 v127, 3, v1
        v_lshlrev_b32 v127, 6, v127
        v_bfe_u32 v125, v1, 2, 3
        v_add_u32 v127, v127, v125
        v_add_u32 v127, {s(S_T0)}, v127
        v_cmp_lt_u32 vcc, 31, v1
        v_cndmask_b32 v126, v126, v127, vcc
        """)
    comb += I(f"""
        v_lshlrev_b32 v126, 6, v126
        v_add_u32 v126, {WS_FLAG_P}, v126
        buffer_load_dword v127, v126, {s(SRD_WS,4)}, 0 offen sc1
        """)
    bg[6] += comb
    w2l = [g.w2_load(n, 139) for n in range(60)]
    k = 0
    stat_ld = I(f"""
        s_lshl_b32 {s(S_T0)}, {s(S_T)}, 7
        s_lshl_b32 {s(S_T1)}, {s(S_WAVE)}, 5
        s_add_u32 {s(S_T0)}, {s(S_T0)}, {s(S_T1)}
        v_and_b32 v126, 31, v1
        v_add_u32 v126, {s(S_T0)}, v126
        v_lshlrev_b32 v126, 3, v126
        v_add_u32 v126, {WS_STATS}, v126
        buffer_load_dwordx2 v[116:117], v126, {s(SRD_WS,4)}, 0 offen sc1
        """)
    if role == 'A':
        bg[2] += g.c_hload()
        pa = g.c_prep_addr()
        bg[3] = pa + bg[3]
        bg[5] += g.c_prep_regs()
    bg[8] += g.poll(127, 126, 'p') + g.w2_setup(139) + stat_ld
    if role == 'A':
        bg[8] += g.c_xload()
        bg[7] += g.g2_setup()
        cw = g.c_write_copies()
        bg[8] = cw[:9] + bg[8]
        bg[9] += cw[9:]
        per = {9: 6}
    else:
        per = {9: 7}
    for c in sorted(per):
        for _ in range(per[c]): bgv[c] += w2l[k]; k += 1
    if o.get('x_nobg'):
        for c in range(10): bg[c] = []
    if o.get('x_nopk'):
        for c in (2, 3, 4): bg[c] = [i for i in bg[c] if i.kind in ('waitvm',) or i.tag == 'flag']
    if o.get('x_stop'):
        L += g.g1_main(bg, bgv) + ts('G1 main done') + [waitvmall()] + ts('end')
        L += I(f"""
        s_lshl_b32 {s(S_T0)}, {s(S_ID)}, 10
        s_lshl_b32 {s(S_T1)}, {s(S_WAVE)}, 8
        s_add_u32 {s(S_T0)}, {s(S_T0)}, {s(S_T1)}
        s_add_u32 {s(S_T0)}, {s(S_T0)}, {WS_TS}
        v_lshlrev_b32 v2, 2, v1
        buffer_store_dword v19, v2, {s(SRD_WS,4)}, {s(S_T0)} offen
        s_endpgm
        """)
        TSNAMES[role] = g.tsnames
        st = Stream(); st.ins = L
        return render(finalize(st)) + ''.join(g.tail)
    L += g.g1_main(bg, bgv)
    L += ts('G1 main done')
    gflag = g.set_flag(WS_FLAG_G, f's_lshl_b32 {s(S_T0)}, {s(S_T)}, 4\ns_add_u32 {s(S_T0)}, {s(S_T0)}, {s(S_FS)}', 16, 17)
    hflag_idx = f's_lshr_b32 {s(S_T0)}, {s(S_T64)}, 1\ns_lshl_b32 {s(S_T0)}, {s(S_T0)}, 4\ns_lshl_b32 {s(S_T1)}, {s(S_WAVE)}, 2\ns_add_u32 {s(S_T0)}, {s(S_T0)}, {s(S_T1)}'
    if role == 'A':
        e_bg = []
        for _ in range(7): e_bg += w2l[k]; k += 1
        L += g.g1_epilogue(e_bg, g.c_xwrite())
        L += ts('G1 epilogue')
        cb = {q: [] for q in range(8)}
        cb[1] += [waitvm('hstore')] + I('s_barrier') + gflag
        rem = 60 - k
        qi = 0
        for j in range(rem):
            cb[j * 6 // rem] += w2l[k]; k += 1
        cb[4] += g.flag_load(WS_FLAG_G, hflag_idx, 'v_and_b32 v13, 3, v1', 13, 14)
        cb[6] += g.poll(14, 13, 'g1')
        NPRE = 12
        hp = [g.g2_hload(n) for n in range(NPRE)]
        cb[6] += hp[:6]; cb[7] += hp[6:]
        L += g.c_main(cb)
        L += ts('conv main')
        L += g.c_post()
        cflag = [waitvm('ystore')] + I('s_barrier') + g.set_flag(WS_FLAG_C, f's_mov_b32 {s(S_T0)}, {s(S_ID)}', 16, 17)
        first_unl = NPRE
    else:
        e_bg = []
        for _ in range(6): e_bg += w2l[k]; k += 1
        L += g.g1_epilogue(e_bg)
        L += ts('G1 epilogue')
        L += g.g2_setup()
        L += [waitvm('hstore')] + I('s_barrier') + gflag
        while k < 60: L += w2l[k]; k += 1
        L += g.flag_load(WS_FLAG_G, hflag_idx, 'v_and_b32 v13, 3, v1', 13, 14)
        L += g.poll(14, 13, 'g1')
        L += ts('G1 flags')
        L += [g.g2_hload(n) for n in range(38)]
        cflag = I('s_barrier')
        first_unl = 38
    L += ts('G2 start')
    mid = {}
    fl = g.f_loads()
    mid[3] = fl[:11]
    for j in range(4): mid[5 + 2*j] = [fl[11 + j]]
    for j in range(5): mid[13 + 2*j] = [fl[15 + j]]
    mid[23] = fl[20:]
    mid[10] = cflag
    mid[16] = I(f"""
        s_cmp_eq_u32 {s(S_ID)}, 0
        s_cselect_b32 {s(S_T4)}, {s(S_TAG)}, 0
        s_cselect_b32 {s(S_T5)}, 0, {OOB}
        s_lshl_b32 {s(S_T0)}, {s(S_WAVE)}, 6
        v_add_u32 v15, {s(S_T0)}, v1
        v_lshlrev_b32 v15, 6, v15
        v_add_u32 v15, {WS_FLAG_P}, v15
        v_or_b32 v15, {s(S_T5)}, v15
        buffer_load_dword v18, v15, {s(SRD_WS,4)}, 0 offen sc1
        """)
    mid[24] = g.poll(18, 15, 'tk', exp=S_T4)
    epoch_store = I(f"""
        v_mov_b32 v18, {OOB}
        v_mov_b32 v15, {s(S_T5)}
        v_cmp_eq_u32 vcc, 0, v0
        v_cndmask_b32 v15, v18, v15, vcc
        v_mov_b32 v18, {s(S_TAG)}
        buffer_store_dword v18, v15, {s(SRD_WS,4)}, 0 offen sc1
        """)
    mid[44] = epoch_store
    mid[26] = g.flag_load(WS_FLAG_C, f's_mul_i32 {s(S_T0)}, {s(S_CS)}, 20', 'v_min_u32 v13, 19, v1', 13, 14)
    yl = g.f_yloads()
    mid[31] = g.poll(14, 13, 'y') + yl[:9]
    for j, n in enumerate(range(32, 37)): mid[n] = yl[9 + 7*j: 9 + 7*(j+1)]
    mid[36] += yl[9 + 35:]
    L += g.g2_main(first_unl, mid)
    L += ts('G2 main done')
    L += g.f_final()
    L += ts('F done')
    if o.get('ts'):
        L += [waitvmall()] + ts('end')
        L += I('s_memrealtime s[6:7]\ns_waitcnt lgkmcnt(0)\nv_writelane_b32 v19, s6, 63')
        L += I(f"""
        s_lshl_b32 {s(S_T0)}, {s(S_ID)}, 10
        s_lshl_b32 {s(S_T1)}, {s(S_WAVE)}, 8
        s_add_u32 {s(S_T0)}, {s(S_T0)}, {s(S_T1)}
        s_add_u32 {s(S_T0)}, {s(S_T0)}, {WS_TS}
        v_lshlrev_b32 v2, 2, v1
        buffer_store_dword v19, v2, {s(SRD_WS,4)}, {s(S_T0)} offen
        """)
        TSNAMES[role] = g.tsnames
    L += I('s_endpgm')
    st = Stream(); st.ins = L
    return render(finalize(st)) + ''.join(g.tail) + f'Lend_{role}:\n    s_endpgm\n'

HEADER = """; Kernarg layout (112 bytes, ptrs only): q k v shift_k ssm_k ssm_D B_x w1 b1 w2 b2 out debug ws
; @launch grid=(256,1,1) block=(256,1,1) lds=163840
.amdgcn_target "amdgcn-amd-amdhsa--gfx950"
.text
.globl {n}_kernel
.p2align 8
.type {n}_kernel,@function
{n}_kernel:
"""
FOOTER = """
.section .rodata,"a"
.p2align 6
.amdhsa_kernel {n}_kernel
  .amdhsa_next_free_vgpr 512
  .amdhsa_next_free_sgpr 102
  .amdhsa_accum_offset 256
  .amdhsa_group_segment_fixed_size 0
  .amdhsa_kernarg_size 112
  .amdhsa_user_sgpr_count 2
  .amdhsa_user_sgpr_kernarg_segment_ptr 1
  .amdhsa_system_sgpr_workgroup_id_x 1
.end_amdhsa_kernel
"""
def build(o):
    txt = HEADER.format(n=NAME)
    txt += f"""    s_cmp_ge_u32 s2, 256
    s_cbranch_scc1 L_exit
    s_cmp_ge_u32 s2, {NA}
    s_cbranch_scc1 L_roleB
"""
    txt += build_role('A', o)
    txt += "L_exit:\n    s_endpgm\n.p2align 6\nL_roleB:\n"
    txt += build_role('B', o)
    txt += FOOTER.format(n=NAME)
    return txt

if __name__ == '__main__':
    o = {k: True for k in sys.argv[2:]}
    out = sys.argv[1] if len(sys.argv) > 1 else 'k.s'
    open(out, 'w').write(build(o))
    if o.get('ts'): json.dump(TSNAMES, open(out + '.ts.json', 'w'))
    print("wrote", out)
```

```python
import sys, struct, json
from asmlib import *

NAME = "recurrent_scan__ssm_conv_h3__dense_activation_squared_relu__prompt"
S, D, F = 2048, 640, 1536
def f2h(x): return '0x%08x' % struct.unpack('<I', struct.pack('<f', x))[0]

WS_EPOCH = 0
WS_FLAG_P = 0x1000
WS_FLAG_G = 0x5000
WS_FLAG_C = 0x9000
WS_FLAG_W = 0xC000
WS_STATS = 0x10000
WS_KVT = 0x100000
WS_YT = 0x400000
WS_H = 0x800000
WS_W2T = 0x1000000
WS_TS = 0x1300000
WS_BYTES = 0x1400000
NA = 160

def v(a, n=1): return 'v%d' % a if n == 1 else 'v[%d:%d]' % (a, a + n - 1)
def a_(a, n=1): return 'a%d' % a if n == 1 else 'a[%d:%d]' % (a, a + n - 1)
def s(a, n=1): return 's%d' % a if n == 1 else 's[%d:%d]' % (a, a + n - 1)

S_ID, S_WAVE, S_TAG = 2, 4, 5
SRD_Q, SRD_K, SRD_V, SRD_W1, SRD_W2, SRD_H, SRD_OUT, SRD_WS = 8, 12, 16, 20, 24, 28, 32, 36
P_Q, P_K, P_V, P_SHK, P_SSMK, P_SSMD, P_BX, P_W1, P_B1, P_W2, P_B2, P_OUT, P_DBG, P_WS = [40 + 2 * i for i in range(14)]
S_T, S_FS, S_T64, S_CS = 68, 69, 70, 71
S_PK, S_DIS = 72, 77
S_XOFF, S_WOFF, S_XM0, S_WM0 = 73, 74, 75, 76
S_W2OFF = 78
S_SPIN = 79
S_T0, S_T1, S_T2, S_T3, S_T4, S_T5 = 80, 81, 82, 83, 84, 85
S_ONES, S_EPOCH = 86, 87
S_MASK = 88
S_DVAL = 90
S_CB = 91
S_HOFF = 92
SRD_DBG = 96
OOB = 0x80000000

def I(text, tag=None): return [Ins(l.strip(), tag=tag) for l in text.strip('\n').split('\n') if l.split(';')[0].strip()]
def waitvm(tag):
    w = Ins('; waitvm'); w.kind = 'waitvm'; w.tag = tag; return w
def waitlds():
    w = Ins('; waitlds'); w.kind = 'waitlds'; return w
def waitvmall():
    w = Ins('; waitvmall'); w.kind = 'waitvmall'; return w

def weight(i):
    if i.kind in ('vmem', 'vmem_st'):
        return 12 if ('x4' in i.op) else 4
    if i.kind in ('waitvm', 'waitlds', 'waitvmall', 'label'): return 0
    return 1

def merge(main, bg, lo=0.0, hi=1.0):
    if not bg: return list(main)
    pos = [k for k, i in enumerate(main) if i.is_mfma()]
    if not pos: pos = list(range(len(main)))
    n = len(pos)
    a, b = int(lo * n), max(int(hi * n), int(lo * n) + 1)
    slots = pos[a:b]
    tot = sum(weight(i) for i in bg) or 1
    after = {}
    cum = 0
    for i in bg:
        k = min(int(cum * len(slots) / tot), len(slots) - 1)
        after.setdefault(slots[k], []).append(i)
        cum += weight(i)
    out = []
    for k, i in enumerate(main):
        out.append(i)
        out += after.get(k, [])
    return out

def est_times(stream):
    t = 0; pipe = 0; out = []
    for i in stream:
        if i.is_mfma():
            t = max(t, pipe); out.append(t)
            pipe = t + (32 if i.kind == 'mfma32' else 16); t += 8
        elif i.kind in ('waitvm', 'waitlds', 'waitvmall', 'label'):
            out.append(t)
        else:
            out.append(t); t += 8 if i.kind == 'trans' else 4
    return out, max(t, pipe)

def merge_time(stream, vm, lo=0.0, hi=1.0):
    if not vm: return list(stream)
    groups = []; cur = []
    for i in vm:
        cur.append(i)
        if i.kind in ('vmem', 'vmem_st'):
            groups.append(cur); cur = []
    if cur:
        if groups: groups[-1] += cur
        else: groups.append(cur)
    times, total = est_times(stream)
    n = len(groups)
    tgt = [total * (lo + (hi - lo) * (k + 0.0) / n) for k in range(n)]
    out = []; k = 0
    for i, t in zip(stream, times):
        while k < n and t >= tgt[k]:
            out += groups[k]; k += 1
        out.append(i)
    while k < n:
        out += groups[k]; k += 1
    return out

NT = ''
class Gen:
    def __init__(self, role, o):
        self.rot = (role == 'B' and bool(o.get('rot')))
        self.role = role; self.o = o; self.lab = 0; self.tail = []; self.tsnames = []
    def label(self, base):
        self.lab += 1
        return 'L%s_%s%d' % (self.role, base, self.lab)
    def ts(self, name):
        if not self.o.get('ts') or len(self.tsnames) >= 62: return []
        k = len(self.tsnames); self.tsnames.append(name)
        return I(f's_memtime s[6:7]\ns_waitcnt lgkmcnt(0)\nv_writelane_b32 v19, s6, {k}')

    def flag_load(self, base, sidx_code, lane_code, vaddr, vflag):
        return I(sidx_code) + I(lane_code) + I(f"""
        v_add_u32 {v(vaddr)}, {s(S_T0)}, {v(vaddr)}
        v_lshlrev_b32 {v(vaddr)}, 6, {v(vaddr)}
        v_add_u32 {v(vaddr)}, {base}, {v(vaddr)}
        buffer_load_dword {v(vflag)}, {v(vaddr)}, {s(SRD_WS,4)}, 0 offen sc1
        """)
    def poll(self, vflag, vaddr, nm, exp=None, srd=None):
        exp = S_TAG if exp is None else exp
        srd = SRD_WS if srd is None else srd
        L = self.label('slow' + nm); Lb = self.label('back' + nm)
        br = Ins('s_cbranch_vccnz %s' % L); br.text += '\n%s:' % Lb
        self.tail.append(f"""{L}:
    s_mov_b32 {s(S_SPIN)}, 0
{L}_l:
    s_sleep 1
    buffer_load_dword {v(vflag)}, {v(vaddr)}, {s(srd,4)}, 0 offen sc1
    s_add_u32 {s(S_SPIN)}, {s(S_SPIN)}, 1
    s_cmp_gt_u32 {s(S_SPIN)}, 0x8000
    s_cbranch_scc1 {L}_x
    s_waitcnt vmcnt(0)
    v_cmp_ne_u32 vcc, {s(exp)}, {v(vflag)}
    s_nop 4
    s_cbranch_vccnz {L}_l
{L}_x:
    s_waitcnt vmcnt(0)
    s_nop 7
    s_branch {Lb}
""")
        return I('v_cmp_ne_u32 vcc, %s, %s' % (s(exp), v(vflag))) + [br]
    def set_flag(self, base, idx_code, t1, t2):
        return I(idx_code) + I(f"""
        s_lshl_b32 {s(S_T0)}, {s(S_T0)}, 6
        s_add_u32 {s(S_T0)}, {s(S_T0)}, {base}
        v_mov_b32 {v(t1)}, {s(S_T0)}
        v_mov_b32 {v(t2)}, {OOB}
        v_cmp_eq_u32 vcc, 0, v0
        v_cndmask_b32 {v(t1)}, {v(t2)}, {v(t1)}, vcc
        v_mov_b32 {v(t2)}, {s(S_TAG)}
        buffer_store_dword {v(t2)}, {v(t1)}, {s(SRD_WS,4)}, 0 offen sc1
        """, tag='flag')

    def prologue(self):
        L = I(f"""
        s_load_dwordx16 s[40:55], s[0:1], 0
        s_load_dwordx8 s[56:63], s[0:1], 64
        s_load_dwordx4 s[64:67], s[0:1], 96
        v_and_b32 v1, 63, v0
        v_lshrrev_b32 v2, 6, v0
        s_and_b32 {s(S_T0)}, {s(S_ID)}, 7
        s_lshr_b32 {s(S_T1)}, {s(S_ID)}, 3
        v_readfirstlane_b32 {s(S_WAVE)}, v2
        s_lshr_b32 {s(S_T2)}, {s(S_T0)}, 1
        s_lshl_b32 {s(S_T2)}, {s(S_T2)}, 2
        s_lshr_b32 {s(S_T3)}, {s(S_T1)}, 3
        s_add_u32 {s(S_T)}, {s(S_T2)}, {s(S_T3)}
        s_and_b32 {s(S_T2)}, {s(S_T0)}, 1
        s_lshl_b32 {s(S_T2)}, {s(S_T2)}, 3
        s_and_b32 {s(S_CS)}, {s(S_T1)}, 7
        s_add_u32 {s(S_FS)}, {s(S_T2)}, {s(S_CS)}
        s_lshl_b32 {s(S_T64)}, {s(S_T0)}, 2
        s_add_u32 {s(S_T64)}, {s(S_T64)}, {s(S_T3)}
        s_mov_b32 {s(S_ONES)}, 0x3f803f80
        """)
        return L
    def srds(self, lst):
        L = []
        for srd, p, n in lst:
            L += I(f"""
            s_mov_b32 {s(srd)}, {s(p)}
            s_mov_b32 {s(srd+1)}, {s(p+1)}
            s_mov_b32 {s(srd+2)}, {n}
            s_mov_b32 {s(srd+3)}, 0x20000
            """)
        return L
    def make_tag(self):
        return I(f"""
        s_mul_i32 {s(S_TAG)}, {s(S_EPOCH)}, 0x9e3779b1
        s_add_u32 {s(S_TAG)}, {s(S_TAG)}, 0x7f4a7c15
        """)

    def p_stat_load(self, R):
        return I(f"""
        s_and_b32 {s(S_T0)}, {s(S_ID)}, 7
        s_lshl_b32 {s(S_T0)}, {s(S_T0)}, 8
        s_and_b32 {s(S_T1)}, {s(S_ID)}, -8
        s_add_u32 {s(S_T0)}, {s(S_T0)}, {s(S_T1)}
        s_lshl_b32 {s(S_T1)}, {s(S_WAVE)}, 1
        s_add_u32 {s(S_T0)}, {s(S_T0)}, {s(S_T1)}
        v_lshrrev_b32 {v(R+12)}, 5, v1
        v_add_u32 {v(R+12)}, {s(S_T0)}, {v(R+12)}
        v_and_b32 {v(R+13)}, 31, v1
        v_mul_u32_u24 {v(R+10)}, 1280, {v(R+12)}
        v_lshl_add_u32 {v(R+11)}, {v(R+13)}, 3, {v(R+10)}
        v_lshl_add_u32 {v(R+10)}, {v(R+13)}, 4, {v(R+10)}
        buffer_load_dwordx4 {v(R,4)}, {v(R+10)}, {s(SRD_Q,4)}, 0 offen
        buffer_load_dwordx4 {v(R+4,4)}, {v(R+10)}, {s(SRD_Q,4)}, 0 offen offset:512
        buffer_load_dwordx2 {v(R+8,2)}, {v(R+11)}, {s(SRD_Q,4)}, 0 offen offset:1024
        """)
    def p_stat_compute(self, R):
        A, B, T, U = R + 14, R + 15, R + 16, R + 17
        assert A % 2 == 0
        L = I(f'v_mov_b32 {v(A)}, 0\nv_mov_b32 {v(B)}, 0')
        for i in range(10):
            L += I(f'v_dot2c_f32_bf16 {v(A)}, {s(S_ONES)}, {v(R+i)}\nv_dot2c_f32_bf16 {v(B)}, {v(R+i)}, {v(R+i)}')
        for rot in (8, 4, 2, 1):
            L += I(f'v_add_f32_dpp {v(A)}, {v(A)}, {v(A)} row_ror:{rot} row_mask:0xf bank_mask:0xf')
            L += I(f'v_add_f32_dpp {v(B)}, {v(B)}, {v(B)} row_ror:{rot} row_mask:0xf bank_mask:0xf')
        L += I(f"""
        v_mov_b32 {v(T)}, {v(A)}
        v_mov_b32 {v(U)}, {v(B)}
        v_permlane16_swap_b32 {v(A)}, {v(T)}
        v_permlane16_swap_b32 {v(B)}, {v(U)}
        v_add_f32 {v(A)}, {v(A)}, {v(T)}
        v_add_f32 {v(B)}, {v(B)}, {v(U)}
        v_mul_f32 {v(A)}, {f2h(1.0/640)}, {v(A)}
        v_mul_f32 {v(B)}, {f2h(1.0/640)}, {v(B)}
        v_fma_f32 {v(B)}, -{v(A)}, {v(A)}, {v(B)}
        v_max_f32 {v(B)}, 0, {v(B)}
        v_cvt_pk_bf16_f32 {v(A)}, {v(A)}, {v(B)}
        v_and_b32 {v(B)}, 0xffff0000, {v(A)}
        v_lshlrev_b32 {v(A)}, 16, {v(A)}
        v_add_f32 {v(B)}, {f2h(1e-5)}, {v(B)}
        v_cvt_pk_bf16_f32 {v(B)}, {v(B)}, {v(B)}
        v_lshlrev_b32 {v(B)}, 16, {v(B)}
        v_sqrt_f32 {v(B)}, {v(B)}
        v_cvt_pk_bf16_f32 {v(B)}, {v(B)}, {v(B)}
        v_lshlrev_b32 {v(B)}, 16, {v(B)}
        v_lshlrev_b32 {v(T)}, 3, {v(R+12)}
        v_add_u32 {v(T)}, {WS_STATS}, {v(T)}
        v_mov_b32 {v(U)}, {OOB}
        v_cmp_eq_u32 vcc, 0, {v(R+13)}
        v_cndmask_b32 {v(T)}, {v(U)}, {v(T)}, vcc
        """)
        L += I(f'buffer_store_dwordx2 {v(A,2)}, {v(T)}, {s(SRD_WS,4)}, 0 offen sc1', tag='wstore')
        return L

    PK_K, PK_V, PK_W, PK_A, PK_T, PK_OUT = 144, 172, 188, 204, 214, 128
    PT = 114688
    def p_kv_load(self):
        K, V_, W, A = self.PK_K, self.PK_V, self.PK_W, self.PK_A
        L = I(f"""
        v_mul_u32_u24 {v(A+9)}, 6554, v0
        v_lshrrev_b32 {v(A+9)}, 16, {v(A+9)}
        v_mul_u32_u24 {v(A+8)}, 10, {v(A+9)}
        v_sub_u32 {v(A+8)}, v0, {v(A+8)}
        s_lshl_b32 {s(S_T0)}, {s(S_T64)}, 6
        s_sub_u32 {s(S_T0)}, {s(S_T0)}, 3
        s_mul_i32 {s(S_T1)}, {s(S_CS)}, 160
        v_lshlrev_b32 {v(A)}, 2, {v(A+9)}
        v_add_u32 {v(A)}, {s(S_T0)}, {v(A)}
        v_mul_i32_i24 {v(A)}, 1280, {v(A)}
        v_lshl_add_u32 {v(A+1)}, {v(A+8)}, 4, {s(S_T1)}
        v_add_u32 {v(A)}, {v(A)}, {v(A+1)}
        v_mov_b32 {v(A+1)}, {OOB}
        v_cmp_gt_u32 vcc, 160, v0
        v_cndmask_b32 {v(A)}, {v(A+1)}, {v(A)}, vcc
        """)
        for i in range(1, 7): L += I(f'v_add_u32 {v(A+i)}, {1280*i}, {v(A)}')
        for i in range(7): L += I(f'buffer_load_dwordx4 {v(K+4*i,4)}, {v(A+i)}, {s(SRD_K,4)}, 0 offen{NT}')
        for i in range(4): L += I(f'buffer_load_dwordx4 {v(V_+4*i,4)}, {v(A+3+i)}, {s(SRD_V,4)}, 0 offen{NT}')
        L += I(f"""
        s_mul_i32 {s(S_T1)}, {s(S_CS)}, 640
        v_lshl_add_u32 {v(A+7)}, {v(A+8)}, 6, {s(S_T1)}
        """)
        for i in range(4): L += I(f'global_load_dwordx4 {v(W+4*i,4)}, {v(A+7)}, {s(P_SHK,2)} offset:{16*i}')
        return L
    def p_kv_compute(self, packed=True):
        K, V_, W, A, T = self.PK_K, self.PK_V, self.PK_W, self.PK_A, self.PK_T
        KU, VU, WU, AC, OUT = T, T + 14, T + 22, T + 30, self.PK_OUT
        L = []
        for dd in range(4):
            for r in range(7):
                L += I(f'v_lshlrev_b32 {v(KU+2*r)}, 16, {v(K+4*r+dd)}\nv_and_b32 {v(KU+2*r+1)}, 0xffff0000, {v(K+4*r+dd)}')
            for j in range(4):
                for h in range(2):
                    src = W + 4 * dd + 2 * h + (j >> 1)
                    L += I(f'v_and_b32 {v(WU+2*j+h)}, 0xffff0000, {v(src)}' if j & 1 else f'v_lshlrev_b32 {v(WU+2*j+h)}, 16, {v(src)}')
            for r in range(4):
                L += I(f'v_lshlrev_b32 {v(VU+2*r)}, 16, {v(V_+4*r+dd)}\nv_and_b32 {v(VU+2*r+1)}, 0xffff0000, {v(V_+4*r+dd)}')
            for t in range(4): L += I(f'v_pk_mul_f32 {v(AC+2*t,2)}, {v(KU+2*t,2)}, {v(WU+6,2)}')
            for j in (2, 1, 0):
                for t in range(4): L += I(f'v_pk_fma_f32 {v(AC+2*t,2)}, {v(KU+2*(t+3-j),2)}, {v(WU+2*j,2)}, {v(AC+2*t,2)}')
            for t in range(4): L += I(f'v_pk_mul_f32 {v(AC+2*t,2)}, {v(AC+2*t,2)}, {v(VU+2*t,2)}')
            for h in range(2):
                ch = 2 * dd + h
                L += I(f'v_cvt_pk_bf16_f32 {v(OUT+2*ch)}, {v(AC+h)}, {v(AC+2+h)}\nv_cvt_pk_bf16_f32 {v(OUT+2*ch+1)}, {v(AC+4+h)}, {v(AC+6+h)}')
        L += I(f"""
        v_and_b32 {v(T)}, 14, {v(A+8)}
        v_xor_b32 {v(T)}, {v(T)}, {v(A+9)}
        v_lshlrev_b32 {v(T)}, 3, {v(T)}
        v_lshl_add_u32 {v(T)}, {v(A+8)}, 10, {v(T)}
        v_mov_b32 {v(T+1)}, 12288
        v_cmp_gt_u32 vcc, 160, v0
        v_cndmask_b32 {v(T)}, {v(T+1)}, {v(T)}, vcc
        v_add_u32 {v(T)}, {self.PT}, {v(T)}
        """)
        for i in range(8): L += I(f'ds_write_b64 {v(T)}, {v(OUT+2*i,2)} offset:{128*i}')
        L1 = L
        L = I(f"""
        v_lshrrev_b32 {v(T)}, 3, v0
        v_and_b32 {v(T+1)}, 7, v0
        v_lshrrev_b32 {v(T+2)}, 6, v0
        v_lshlrev_b32 {v(T+4)}, 1, {v(T+1)}
        v_lshlrev_b32 {v(T+5)}, 7, {v(T)}
        v_add_u32 {v(T+5)}, {self.PT}, {v(T+5)}
        """)
        for i in range(3):
            L += I(f"""
            v_add_u32 {v(T+3)}, {4*i}, {v(T+2)}
            v_and_b32 {v(T+3)}, 14, {v(T+3)}
            v_xor_b32 {v(T+3)}, {v(T+3)}, {v(T+4)}
            v_lshl_add_u32 {v(T+3)}, {v(T+3)}, 3, {v(T+5)}
            ds_read_b128 {v(OUT+4*i,4)}, {v(T+3)} offset:{4096*i}
            """)
        L += I(f"""
        s_mul_i32 {s(S_T0)}, {s(S_CS)}, {80*4096}
        s_lshl_b32 {s(S_T1)}, {s(S_T64)}, 7
        s_add_u32 {s(S_T0)}, {s(S_T0)}, {s(S_T1)}
        s_add_u32 {s(S_T0)}, {s(S_T0)}, {WS_KVT}
        v_lshlrev_b32 {v(T+6)}, 12, {v(T)}
        v_lshl_add_u32 {v(T+6)}, {v(T+1)}, 4, {v(T+6)}
        v_add_u32 {v(T+7)}, {32*4096}, {v(T+6)}
        v_add_u32 {v(T+8)}, {64*4096}, {v(T+6)}
        v_mov_b32 {v(T+9)}, {OOB}
        v_cmp_gt_u32 vcc, 128, v0
        v_cndmask_b32 {v(T+8)}, {v(T+9)}, {v(T+8)}, vcc
        """)
        for i in range(3):
            L += I(f'buffer_store_dwordx4 {v(OUT+4*i,4)}, {v(T+6+i)}, {s(SRD_WS,4)}, {s(S_T0)} offen sc1', tag='pstore')
        return L1, L

    W2STG = 131072
    def p_w2_load(self, T):
        L = I(f"""
        s_cmp_lt_u32 {s(S_ID)}, 96
        s_cselect_b32 {s(S_DIS)}, 0, {OOB}
        s_min_u32 {s(S_T0)}, {s(S_ID)}, 95
        s_lshl_b32 {s(S_T0)}, {s(S_T0)}, 2
        s_add_u32 {s(S_T0)}, {s(S_T0)}, {s(S_WAVE)}
        s_mul_i32 {s(S_T1)}, {s(S_T0)}, 1366
        s_lshr_b32 {s(S_T1)}, {s(S_T1)}, 16
        s_mul_i32 {s(S_T2)}, {s(S_T1)}, 48
        s_sub_u32 {s(S_T2)}, {s(S_T0)}, {s(S_T2)}
        s_mul_i32 {s(S_T2)}, {s(S_T2)}, {32*1280}
        s_mul_i32 {s(S_T1)}, {s(S_T1)}, 160
        s_add_u32 {s(S_T2)}, {s(S_T2)}, {s(S_T1)}
        s_mul_i32 {s(S_W2OFF)}, {s(S_T0)}, 5120
        s_add_u32 {s(S_W2OFF)}, {s(S_W2OFF)}, {WS_W2T}
        s_mul_i32 {s(S_T3)}, {s(S_WAVE)}, 5120
        s_add_u32 {s(S_T3)}, {s(S_T3)}, {self.W2STG}
        s_mov_b32 {s(S_T1)}, 0x1999999a
        """)
        for n in range(5):
            comp = 1024 * n if n < 4 else 0
            L += I(f"""
            v_add_u32 {v(T)}, {64*n}, v1
            v_mul_hi_u32 {v(T+1)}, {v(T)}, {s(S_T1)}
            v_mul_u32_u24 {v(T+2)}, 10, {v(T+1)}
            v_sub_u32 {v(T+2)}, {v(T)}, {v(T+2)}
            v_mul_u32_u24 {v(T+1)}, 1280, {v(T+1)}
            v_lshl_add_u32 {v(T+1)}, {v(T+2)}, 4, {v(T+1)}
            v_subrev_u32 {v(T+8+n)}, {comp}, {v(T+1)}
            v_or_b32 {v(T+8+n)}, {s(S_DIS)}, {v(T+8+n)}
            """)
        L += I(f's_mov_b32 m0, {s(S_T3)}')
        for n in range(4): L += I(f'buffer_load_dwordx4 {v(T+8+n)}, {s(SRD_W2,4)}, {s(S_T2)} offen offset:{1024*n}{NT} lds', tag='w2slab')
        L += I(f's_add_u32 m0, {s(S_T3)}, 4096')
        L += I(f'buffer_load_dwordx4 {v(T+12)}, {s(SRD_W2,4)}, {s(S_T2)} offen{NT} lds', tag='w2slab')
        L += I(f"""
        v_bfe_u32 {v(T)}, v1, 5, 1
        v_lshlrev_b32 {v(T)}, 4, {v(T)}
        v_bfe_u32 {v(T+1)}, v1, 4, 1
        v_lshl_add_u32 {v(T)}, {v(T+1)}, 2, {v(T)}
        v_bfe_u32 {v(T+1)}, v1, 2, 2
        v_add_u32 {v(T)}, {v(T)}, {v(T+1)}
        v_mul_u32_u24 {v(T)}, 160, {v(T)}
        v_and_b32 {v(T+1)}, 3, v1
        v_lshl_add_u32 {v(T)}, {v(T+1)}, 3, {v(T)}
        v_add_u32 {v(T+13)}, {s(S_T3)}, {v(T)}
        v_lshlrev_b32 {v(T+14)}, 4, v1
        v_or_b32 {v(T+14)}, {s(S_DIS)}, {v(T+14)}
        """)
        return L
    def p_w2_store(self, T, R):
        L = [waitvm('w2slab')]
        for ct in range(5):
            for al in range(2): L += I(f'ds_read_b64_tr_b16 {v(R[ct]+2*al,2)}, {v(T+13)} offset:{al*1280 + ct*32}')
        for ct in range(5):
            if ct == 4:
                L += I(f's_add_u32 {s(S_W2OFF)}, {s(S_W2OFF)}, 4096')
                L += I(f'buffer_store_dwordx4 {v(R[ct],4)}, {v(T+14)}, {s(SRD_WS,4)}, {s(S_W2OFF)} offen sc1', tag='wstore')
            else:
                L += I(f'buffer_store_dwordx4 {v(R[ct],4)}, {v(T+14)}, {s(SRD_WS,4)}, {s(S_W2OFF)} offen offset:{1024*ct} sc1', tag='wstore')
        return L

    XST, WST, CSA = 0, 65536, 155648
    NST = 4
    G_XD, G_WD, G_XA, G_XB, G_WA, G_WC = 2, 6, 9, 13, 17, 18
    G_ACC, G_XF, G_WF, G_CSF, G_CS = 20, 68, 76, 100, 112
    G_ONE = 156
    def g1_setup(self, T):
        XD, WD, XA, XB, WA, WC = self.G_XD, self.G_WD, self.G_XA, self.G_XB, self.G_WA, self.G_WC
        L = I(f"""
        v_lshrrev_b32 {v(T)}, 3, v1
        v_and_b32 {v(T+1)}, 7, v1
        v_lshrrev_b32 {v(T+2)}, 4, v1
        s_lshl_b32 {s(S_T0)}, {s(S_WAVE)}, 5
        v_add_u32 {v(T)}, {s(S_T0)}, {v(T)}
        v_mul_u32_u24 {v(T)}, 1280, {v(T)}
        v_xor_b32 {v(T+3)}, {v(T+1)}, {v(T+2)}
        v_add_u32 {v(T+4)}, 4, {v(T+2)}
        v_xor_b32 {v(T+4)}, {v(T+1)}, {v(T+4)}
        v_lshl_add_u32 {v(XD)}, {v(T+3)}, 4, {v(T)}
        v_lshl_add_u32 {v(T+4)}, {v(T+4)}, 4, {v(T)}
        v_add_u32 {v(XD+1)}, {10240-1024}, {v(T+4)}
        v_add_u32 {v(XD+2)}, {20480-2048}, {v(XD)}
        v_add_u32 {v(XD+3)}, {30720-3072}, {v(T+4)}
        s_mul_i32 {s(S_XOFF)}, {s(S_T)}, 163840
        s_lshl_b32 {s(S_XM0)}, {s(S_WAVE)}, 12
        s_mul_i32 {s(S_WOFF)}, {s(S_FS)}, 192
        s_mul_i32 {s(S_WM0)}, {s(S_WAVE)}, 3072
        s_add_u32 {s(S_WM0)}, {s(S_WM0)}, {self.WST}
        s_mul_i32 {s(S_T0)}, {s(S_WAVE)}, 192
        s_mov_b32 {s(S_T1)}, 0x15555556
        """)
        for i in range(3):
            L += I(f"""
            v_add_u32 {v(T)}, {s(S_T0)}, v1
            v_add_u32 {v(T)}, {64*i}, {v(T)}
            v_mul_hi_u32 {v(T+1)}, {v(T)}, {s(S_T1)}
            v_mul_u32_u24 {v(T+2)}, 12, {v(T+1)}
            v_sub_u32 {v(T+2)}, {v(T)}, {v(T+2)}
            v_mul_u32_u24 {v(T+1)}, 3072, {v(T+1)}
            v_lshl_add_u32 {v(T+1)}, {v(T+2)}, 4, {v(T+1)}
            v_subrev_u32 {v(WD+i)}, {1024*i}, {v(T+1)}
            """)
        return L
    def g1_setup2(self, T):
        XA, XB, WA, WC = self.G_XA, self.G_XB, self.G_WA, self.G_WC
        L = I(f"""
        v_and_b32 {v(T)}, 31, v1
        v_lshrrev_b32 {v(T+1)}, 5, v1
        v_bfe_u32 {v(T+2)}, v1, 1, 3
        v_lshlrev_b32 {v(T)}, 7, {v(T)}
        v_add_u32 {v(T)}, {s(S_XM0)}, {v(T)}
        """)
        for ks in range(4):
            L += I(f"""
            v_add_u32 {v(T+3)}, {2*ks}, {v(T+1)}
            v_xor_b32 {v(T+3)}, {v(T+3)}, {v(T+2)}
            v_lshl_add_u32 {v(XA+ks)}, {v(T+3)}, 4, {v(T)}
            """)
        L += I(f"""
        v_lshrrev_b32 {v(T)}, 5, v1
        v_lshlrev_b32 {v(T)}, 3, {v(T)}
        v_bfe_u32 {v(T+1)}, v1, 2, 2
        v_add_u32 {v(T)}, {v(T)}, {v(T+1)}
        v_mul_u32_u24 {v(T)}, 192, {v(T)}
        v_bfe_u32 {v(T+1)}, v1, 4, 1
        v_lshl_add_u32 {v(T)}, {v(T+1)}, 5, {v(T)}
        v_and_b32 {v(T+1)}, 3, v1
        v_lshl_add_u32 {v(T)}, {v(T+1)}, 3, {v(T)}
        v_add_u32 {v(WA)}, {self.WST}, {v(T)}
        s_mul_i32 {s(S_T0)}, {s(S_WAVE)}, 3072
        v_add_u32 {v(WC)}, {s(S_T0)}, {v(WA)}
        """)
        return L
    def g1_dma(self, c):
        XD, WD = self.G_XD, self.G_WD
        stg = c % self.NST
        L = [f's_add_u32 m0, {s(S_XM0)}, {self.XST + stg*16384}']
        for i in range(4): L.append(f'buffer_load_dwordx4 {v(XD+i)}, {s(SRD_Q,4)}, {s(S_XOFF)} offen offset:{1024*i} lds')
        L.append(f's_add_u32 {s(S_XOFF)}, {s(S_XOFF)}, 128')
        L.append(f's_add_u32 m0, {s(S_WM0)}, {stg*12288}')
        for i in range(3): L.append(f'buffer_load_dwordx4 {v(WD+i)}, {s(SRD_W1,4)}, {s(S_WOFF)} offen offset:{1024*i} lds')
        L.append(f's_add_u32 {s(S_WOFF)}, {s(S_WOFF)}, {64*3072}')
        return [Ins(t, tag='g1c%d' % c) for t in L]
    def g1_reads(self, n):
        c, ks = n >> 2, n & 3
        stg = c % self.NST; b = n & 1
        XF, WF = self.G_XF + 4 * b, self.G_WF + 12 * b
        L = [f'ds_read_b128 {v(XF,4)}, {v(self.G_XA+ks)} offset:{stg*16384}']
        for ft in range(3):
            for al in range(2):
                L.append(f'ds_read_b64_tr_b16 {v(WF+4*ft+2*al,2)}, {v(self.G_WA)} offset:{stg*12288 + (16*ks+4*al)*192 + ft*64}')
        return [Ins(t) for t in L]
    def g1_cs_reads(self, c):
        stg = c % self.NST
        return [Ins(f'ds_read_b64_tr_b16 {v(self.G_CSF+4*ft+2*al,2)}, {v(self.G_WC)} offset:{stg*12288 + (4*al)*192 + ft*64}') for ft in range(3) for al in range(2)]
    def g1_cs_mfma(self, first):
        return [Ins(f'v_mfma_f32_32x32x16_bf16 {a_(208+16*ft,16)}, {v(self.G_ONE,4)}, {v(self.G_CSF+4*ft,4)}, ' + ('0' if first else a_(208+16*ft,16))) for ft in range(3)]
    def g1_init(self):
        L = []
        for i in range(48): L += I(f'v_mov_b32 {v(self.G_ACC+i)}, 0')
        return L
    def g1_ones(self):
        return [Ins(f'v_mov_b32 {v(self.G_ONE+i)}, {s(S_ONES)}') for i in range(4)]
    def g1_main(self, bg, bgv):
        ACC = self.G_ACC
        out = [waitvm('g1c0'), waitlds()] + I('s_barrier') + self.g1_reads(0)
        for c in range(10):
            main = []
            csr = self.g1_cs_reads(c); csm = self.g1_cs_mfma(c == 0)
            for ks in range(4):
                n = 4 * c + ks
                b = n & 1
                M = [Ins(f'v_mfma_f32_32x32x16_bf16 {v(ACC+16*ft,16)}, {v(self.G_WF+12*b+4*ft,4)}, {v(self.G_XF+4*b,4)}, {v(ACC+16*ft,16)}') for ft in range(3)]
                R = self.g1_reads(n + 1) if n + 1 < 40 else [None] * 7
                R = [r for r in R]
                def RR(a, b_): return [r for r in R[a:b_] if r is not None]
                C2 = csr[2*ks:2*ks+2] if ks < 3 else []
                if ks == 0:
                    main += [M[0]] + RR(0, 3) + [M[1]] + RR(3, 5) + C2[:1] + [M[2]] + RR(5, 7) + C2[1:]
                elif ks < 3:
                    main += [M[0]] + RR(0, 3) + [M[1]] + RR(3, 5) + [M[2]] + RR(5, 7) + [csm[ks-1]] + C2
                else:
                    pre = ([waitvm('g1c%d' % (c + 1)), waitlds()] + I('s_barrier')) if n + 1 < 40 else []
                    main += [M[0]] + pre + RR(0, 3) + [csm[2]] + RR(3, 5) + [M[1]] + RR(5, 7) + [M[2]]
            B = list(bg.get(c, []))
            out += self.ts('g1 c%d' % c)
            m1 = merge(main, B, 0.0, 0.74)
            bar = [k for k, i in enumerate(m1) if i.op == 's_barrier']
            if bar:
                cut = bar[-1]
                while m1[cut - 1].kind in ('waitvm', 'waitlds'): cut -= 1
                out += merge_time(m1[:cut], bgv.get(c, []), 0.55 if c == 1 else 0.02, 0.98) + m1[cut:]
            else:
                out += merge_time(m1, bgv.get(c, []), 0.02, 0.98)
        return out
    def g1_epilogue(self, bg, ldsbg=None):
        ACC = self.G_ACC
        ST_, B1, AX, BX, RS, AD = 116, 118, 76, 88, 92, 94
        CS = self.G_CS
        L = I(f"""
        v_and_b32 {v(AD)}, 31, v1
        v_lshlrev_b32 {v(AD)}, 2, {v(AD)}
        v_add_u32 {v(AD)}, {self.CSA}, {v(AD)}
        s_mul_i32 {s(S_T0)}, {s(S_WAVE)}, 384
        v_add_u32 {v(AD+1)}, {s(S_T0)}, {v(AD)}
        """)
        for ft in range(3): L += I(f'v_accvgpr_read_b32 {v(CS+ft)}, {a_(208+16*ft)}')
        for ft in range(3): L += I(f'ds_write_b32 {v(AD+1)}, {v(CS+ft)} offset:{128*ft}')
        L += [waitlds()] + I('s_barrier') + self.ts('ep: barrier')
        for w in range(4):
            for ft in range(3): L += I(f'ds_read_b32 {v(100+3*w+ft)}, {v(AD)} offset:{384*w + 128*ft}')
        L += I(f"""
        v_cmp_gt_u32 vcc, 32, v1
        v_rcp_f32 {v(RS)}, {v(ST_+1)}
        v_xor_b32 {v(BX)}, 0x80000000, {v(ST_)}
        v_lshrrev_b32 {v(BX+1)}, 16, {v(BX)}
        v_or_b32 {v(BX)}, {v(BX)}, {v(BX+1)}
        v_lshrrev_b32 {v(BX+1)}, 16, {v(ST_+1)}
        v_mov_b32 {v(BX+2)}, 0
        v_mov_b32 {v(BX+3)}, 0
        """)
        for ft in range(3):
            a = AX + 4 * ft; cs = CS + ft
            L += I(f"""
            v_add_f32 {v(cs)}, {v(100+ft)}, {v(103+ft)}
            v_add_f32 {v(a)}, {v(106+ft)}, {v(109+ft)}
            v_add_f32 {v(cs)}, {v(cs)}, {v(a)}
            v_cvt_pk_bf16_f32 {v(a)}, {v(cs)}, {v(cs)}
            v_lshlrev_b32 {v(a+1)}, 16, {v(a)}
            v_sub_f32 {v(a+1)}, {v(cs)}, {v(a+1)}
            v_cvt_pk_bf16_f32 {v(a)}, {v(cs)}, {v(a+1)}
            v_cndmask_b32 {v(a)}, 0, {v(a)}, vcc
            v_cndmask_b32 {v(a+1)}, 0, {v(B1+ft)}, vcc
            v_mov_b32 {v(a+2)}, 0
            v_mov_b32 {v(a+3)}, 0
            v_mfma_f32_32x32x16_bf16 {v(ACC+16*ft,16)}, {v(a,4)}, {v(BX,4)}, {v(ACC+16*ft,16)}
            """)
        L += I(f"""
        s_lshl_b32 {s(S_T0)}, {s(S_T)}, 3
        s_lshl_b32 {s(S_T1)}, {s(S_WAVE)}, 1
        s_add_u32 {s(S_T0)}, {s(S_T0)}, {s(S_T1)}
        s_mul_i32 {s(S_T0)}, {s(S_T0)}, {48*1024}
        s_mul_i32 {s(S_T1)}, {s(S_FS)}, 3072
        s_add_u32 {s(S_T0)}, {s(S_T0)}, {s(S_T1)}
        s_add_u32 {s(S_T4)}, {s(S_T0)}, {WS_H}
        v_bfe_u32 {v(AD)}, v1, 4, 1
        v_mul_u32_u24 {v(AD)}, {48*1024}, {v(AD)}
        v_lshrrev_b32 {v(AD+1)}, 5, v1
        v_lshl_add_u32 {v(AD)}, {v(AD+1)}, 8, {v(AD)}
        v_and_b32 {v(AD+1)}, 15, v1
        v_lshl_add_u32 {v(AD)}, {v(AD+1)}, 4, {v(AD)}
        """)
        E = []
        for ft in range(3):
            A = ACC + 16 * ft
            for cc in range(2):
                for p in range(4 * cc, 4 * cc + 4):
                    r = A + 2 * p
                    E += I(f"""
                    v_max_f32 {v(r)}, 0, {v(r)}
                    v_max_f32 {v(r+1)}, 0, {v(r+1)}
                    v_pk_mul_f32 {v(r,2)}, {v(r,2)}, {v(RS,2)} op_sel_hi:[1,0]
                    v_pk_mul_f32 {v(r,2)}, {v(r,2)}, {v(r,2)}
                    """)
                for d in range(4):
                    r = A + 8 * cc + 2 * d
                    E += I(f'v_cvt_pk_bf16_f32 {v(A+8*cc+d)}, {v(r)}, {v(r+1)}')
                E += I(f'buffer_store_dwordx4 {v(A+8*cc,4)}, {v(AD)}, {s(SRD_WS,4)}, {s(S_T4)} offen offset:{1024*ft + 512*cc} sc1', tag='hstore')
        if ldsbg: E = merge(E, ldsbg)
        return L + self.ts('ep: xmfma') + merge_time(E, bg)

    def w2_setup(self, vaddr):
        return I(f"""
        s_mul_i32 {s(S_W2OFF)}, {s(S_CS)}, {48*5120}
        s_mul_i32 {s(S_T0)}, {s(S_WAVE)}, {12*5120}
        s_add_u32 {s(S_W2OFF)}, {s(S_W2OFF)}, {s(S_T0)}
        s_add_u32 {s(S_W2OFF)}, {s(S_W2OFF)}, {WS_W2T + (20480 if self.rot else 0)}
        v_lshlrev_b32 {v(vaddr)}, 4, v1
        """)
    def w2_load(self, n, vaddr):
        L = I(f'buffer_load_dwordx4 {a_(4*n,4)}, {v(vaddr)}, {s(SRD_WS,4)}, {s(S_W2OFF)} offen offset:{1024*(n%4)} sc1', tag='w2')
        if n % 4 == 3:
            if self.rot and n == 39: L += I(f's_sub_u32 {s(S_W2OFF)}, {s(S_W2OFF)}, {61440 - 4096}')
            else: L += I(f's_add_u32 {s(S_W2OFF)}, {s(S_W2OFF)}, 4096')
        return L

    CWS = 21248
    C_S0, C_S1, C_S2 = 208, 224, 240
    C_ACC, C_XF, C_HF, C_HD, C_XB, C_HB = 20, 52, 116, 132, 136, 137
    def c_dload(self):
        return I(f"""
        s_lshl_b32 {s(S_T0)}, {s(S_ID)}, 2
        s_add_u32 {s(S_T0)}, {s(S_T0)}, {s(S_WAVE)}
        s_lshl_b32 {s(S_T1)}, {s(S_T0)}, 1
        s_and_b32 {s(S_T1)}, {s(S_T1)}, -4
        s_load_dword {s(S_DVAL)}, {s(P_SSMD,2)}, {s(S_T1)}
        """)
    def c_hload(self):
        A = 202
        L = I(f"""
        s_lshl_b32 {s(S_T0)}, {s(S_ID)}, 2
        s_add_u32 {s(S_T0)}, {s(S_T0)}, {s(S_WAVE)}
        s_lshl_b32 {s(S_T0)}, {s(S_T0)}, 12
        v_lshlrev_b32 {v(A)}, 4, v1
        """)
        for i in range(4):
            L += I(f'buffer_load_dwordx4 {v(self.C_S0+4*i,4)}, {v(A)}, {s(SRD_H,4)}, {s(S_T0)} offen offset:{1024*i}{NT}')
        return L
    def c_prep_regs(self):
        S0, S1, S2 = self.C_S0, self.C_S1, self.C_S2
        L = []
        DP = 'row_mask:0xf bank_mask:0xf'
        for i in range(4):
            s0, q2, q3, q1, p2 = S0 + 4*i, S1 + 4*i, S2 + 4*i, 160 + 4*i, 203
            if i == 0:
                L += I(f'v_mov_b32 {v(q2)}, 0\nv_mov_b32 {v(p2)}, 0')
            else:
                L += I(f'v_mov_b32_dpp {v(q2)}, {v(s0-1)} wave_ror:1 {DP}\nv_mov_b32_dpp {v(p2)}, {v(s0-2)} wave_ror:1 {DP}')
            L += I(f"""
            v_mov_b32 {v(q2+1)}, {v(s0)}
            v_mov_b32 {v(q2+2)}, {v(s0+1)}
            v_mov_b32_dpp {v(q2)}, {v(s0+3)} wave_shr:1 {DP}
            v_mov_b32_dpp {v(p2)}, {v(s0+2)} wave_shr:1 {DP}
            v_mov_b32 {v(q2+3)}, {v(s0+2)}
            v_alignbit_b32 {v(q1+1)}, {v(s0+1)}, {v(s0)}, 16
            v_alignbit_b32 {v(q1+2)}, {v(s0+2)}, {v(s0+1)}, 16
            v_alignbit_b32 {v(q1+3)}, {v(s0+3)}, {v(s0+2)}, 16
            v_alignbit_b32 {v(q1)}, {v(s0)}, {v(q2)}, 16
            v_alignbit_b32 {v(q3)}, {v(q2)}, {v(p2)}, 16
            v_mov_b32 {v(q3+2)}, {v(q1+1)}
            v_mov_b32 {v(q3+3)}, {v(q1+2)}
            v_mov_b32 {v(q3+1)}, {v(q1)}
            """)
        return L
    def c_prep_addr(self):
        L = []
        L += I(f"""
        s_mul_i32 {s(S_T0)}, {s(S_WAVE)}, {self.CWS}
        s_add_u32 {s(S_T0)}, {s(S_T0)}, 90112
        s_cmp_eq_u32 {s(S_WAVE)}, 3
        s_cselect_b32 {s(S_T0)}, 32768, {s(S_T0)}
        v_lshlrev_b32 v176, 4, v1
        v_add_u32 v176, {s(S_T0)}, v176
        v_bfe_u32 v177, v1, 1, 2
        v_mul_u32_u24 v177, 4160, v177
        v_and_b32 v178, 1, v1
        v_lshl_add_u32 v177, v178, 4, v177
        v_add_u32 v177, {s(S_T0)}, v177
        v_min_u32 v179, 29, v1
        v_lshlrev_b32 v179, 4, v179
        s_add_u32 {s(S_T0)}, {s(S_T0)}, 16640
        v_add_u32 v179, {s(S_T0)}, v179
        v_mov_b32 v180, 0
        v_mov_b32 v181, 0
        v_mov_b32 v182, 0
        v_mov_b32 v183, 0
        """)
        XB, HB, HD = self.C_XB, self.C_HB, self.C_HD
        L += I(f"""
        v_and_b32 v184, 15, v1
        v_lshrrev_b32 v185, 4, v1
        v_lshlrev_b32 {v(XB)}, 5, v184
        v_lshlrev_b32 v186, 4, v185
        v_sub_u32 {v(XB)}, {v(XB)}, v186
        v_add_u32 {v(XB)}, 48, {v(XB)}
        v_add_u32 {v(XB)}, {s(S_T0)}, {v(XB)}
        v_bfe_u32 v187, v1, 2, 2
        v_mul_u32_u24 {v(HB)}, 4160, v187
        v_add_u32 {v(HB)}, {v(HB)}, v186
        v_and_b32 v187, 3, v1
        v_lshl_add_u32 {v(HB)}, v187, 3, {v(HB)}
        s_sub_u32 {s(S_T0)}, {s(S_T0)}, {16640 - 8}
        v_add_u32 {v(HB)}, {s(S_T0)}, {v(HB)}
        s_and_b32 {s(S_T1)}, {s(S_WAVE)}, 1
        s_lshl_b32 {s(S_T1)}, {s(S_T1)}, 4
        s_lshr_b32 {s(S_DVAL)}, {s(S_DVAL)}, {s(S_T1)}
        s_and_b32 {s(S_DVAL)}, {s(S_DVAL)}, 0xffff
        v_lshrrev_b32 v186, 3, v184
        v_add_u32 v186, v186, v185
        v_and_b32 v187, 1, v184
        v_lshlrev_b32 v187, 4, v187
        v_lshlrev_b32 v187, v187, {s(S_DVAL)}
        v_bfe_u32 v188, v184, 1, 2
        v_mov_b32 v189, 99
        v_cmp_eq_u32 vcc, 1, v186
        v_cndmask_b32 v188, v189, v188, vcc
        """)
        for w in range(4): L += I(f'v_cmp_eq_u32 vcc, {w}, v188\nv_cndmask_b32 {v(HD+w)}, 0, v187, vcc')
        return L
    def c_write_copies(self):
        S0, S1, S2 = self.C_S0, self.C_S1, self.C_S2
        L = I('ds_write_b128 v177, v[180:183]\nds_write_b128 v179, v[180:183]')
        for i in range(4):
            L += I(f'ds_write_b128 v176, {v(S0+4*i,4)} offset:{32 + 1024*i}')
            L += I(f'ds_write_b128 v176, {v(160+4*i,4)} offset:{32 + 4160 + 1024*i}')
            L += I(f'ds_write_b128 v176, {v(S1+4*i,4)} offset:{32 + 2*4160 + 1024*i}')
            L += I(f'ds_write_b128 v176, {v(S2+4*i,4)} offset:{32 + 3*4160 + 1024*i}')
        return L
    C_XL = 140
    def c_xload(self):
        L = I(f"""
        s_lshl_b32 {s(S_T0)}, {s(S_ID)}, 2
        s_add_u32 {s(S_T0)}, {s(S_T0)}, {s(S_WAVE)}
        s_lshl_b32 {s(S_T0)}, {s(S_T0)}, 12
        s_add_u32 {s(S_T0)}, {s(S_T0)}, {WS_KVT}
        v_lshlrev_b32 v138, 4, v1
        """)
        for i in range(4): L += I(f'buffer_load_dwordx4 {v(self.C_XL+4*i,4)}, v138, {s(SRD_WS,4)}, {s(S_T0)} offen offset:{1024*i} sc1')
        return L
    def c_xwrite(self):
        return [Ins(f'ds_write_b128 v176, {v(self.C_XL+4*i,4)} offset:{16640 + 480 + 1024*i}') for i in range(4)]
    def c_xread(self, q, b):
        return Ins(f'ds_read_b128 {v(self.C_XF + 32*(q&1) + 4*b, 4)}, {v(self.C_XB)} offset:{512*b + 64*(7-q)}')
    C_AORD = (0, 7, 1, 6, 2, 5, 3, 4)
    def c_hread(self, idx):
        q, a = idx // 8, self.C_AORD[idx % 8]
        r = self.C_HF + 4 * (idx % 4)
        return [Ins(f'ds_read_b64_tr_b16 {v(r+2*al,2)}, {v(self.C_HB)} offset:{512*a + 64*q + 8*(1-al)}') for al in range(2)]
    def c_main(self, bg):
        ACC = self.C_ACC
        out = [self.c_xread(0, b) for b in range(8)]
        for idx in range(3): out += self.c_hread(idx)
        for b in range(8): out += I(f'v_mfma_f32_16x16x32_bf16 {v(ACC+4*b,4)}, {v(self.C_HD,4)}, {v(self.C_XF+4*b,4)}, 0')
        for q in range(8):
            main = []
            for ai, a in enumerate(self.C_AORD):
                idx = 8 * q + ai
                hr = self.C_HF + 4 * (idx % 4)
                first = True
                for b in range(7 - a, -1, -1):
                    main.append(Ins(f'v_mfma_f32_16x16x32_bf16 {v(ACC+4*(a+b),4)}, {v(hr,4)}, {v(self.C_XF+32*(q&1)+4*b,4)}, {v(ACC+4*(a+b),4)}'))
                    if first and idx + 3 < 64: main += self.c_hread(idx + 3)
                    first = False
            xr = [self.c_xread(q + 1, b) for b in range(8)] if q < 7 else []
            if q in (0, 2, 4, 6, 7): out += self.ts('conv q%d' % q)
            m1 = merge(main, xr, 0.0, 0.7)
            out += merge(m1, bg.get(q, []), 0.0, 1.0)
        return out
    def c_post(self):
        ACC = self.C_ACC
        L = I(f"""
        s_lshl_b32 {s(S_T0)}, {s(S_ID)}, 2
        s_add_u32 {s(S_T0)}, {s(S_T0)}, {s(S_WAVE)}
        s_lshl_b32 {s(S_T0)}, {s(S_T0)}, 12
        s_add_u32 {s(S_T0)}, {s(S_T0)}, {WS_YT}
        v_and_b32 v52, 15, v1
        v_lshlrev_b32 v52, 5, v52
        v_bfe_u32 v53, v1, 4, 1
        v_lshl_add_u32 v52, v53, 9, v52
        v_bfe_u32 v53, v1, 5, 1
        v_lshl_add_u32 v52, v53, 4, v52
        """)
        for p in range(4):
            Q = 56 + 4 * p
            a0, a1 = ACC + 8 * p, ACC + 8 * p + 4
            L += I(f"""
            v_cvt_pk_bf16_f32 {v(Q)}, {v(a0)}, {v(a0+1)}
            v_cvt_pk_bf16_f32 {v(Q+1)}, {v(a0+2)}, {v(a0+3)}
            v_cvt_pk_bf16_f32 {v(Q+2)}, {v(a1)}, {v(a1+1)}
            v_cvt_pk_bf16_f32 {v(Q+3)}, {v(a1+2)}, {v(a1+3)}
            v_permlane16_swap_b32 {v(Q)}, {v(Q+2)}
            v_permlane16_swap_b32 {v(Q+1)}, {v(Q+3)}
            """)
            L += I(f'buffer_store_dwordx4 {v(Q,4)}, v52, {s(SRD_WS,4)}, {s(S_T0)} offen offset:{1024*p} sc1', tag='ystore')
        return L

    G2_ACC = (20, 40)
    G2_HR, G2_NR, G2_OFF = 104, 38, 11
    G2_HV = 2
    G2_RA = 5
    F_X, F_B, F_ST, F_Y = 60, 70, 80, 82
    F_PP, F_XU, F_T = 188, 104, 124
    def hreg(self, n): return self.G2_HR + 4 * ((n + self.G2_OFF) % self.G2_NR)
    def g2_setup(self):
        L = I(f"""
        v_lshlrev_b32 v8, 4, v1
        v_add_u32 v2, {4096 if self.rot else 0}, v8
        v_add_u32 v3, {8192 if self.rot else 4096}, v8
        v_add_u32 v4, {0 if self.rot else 8192}, v8
        s_mul_i32 {s(S_T0)}, {s(S_WAVE)}, {12*1024}
        s_add_u32 {s(S_T0)}, {s(S_T0)}, {WS_H}
        s_lshl_b32 {s(S_T1)}, {s(S_T64)}, 2
        """)
        for sg in range(4):
            L += I(f"""
            s_add_u32 {s(S_T2)}, {s(S_WAVE)}, {1+sg}
            s_and_b32 {s(S_T2)}, {s(S_T2)}, 3
            s_add_u32 {s(S_T3)}, {s(S_T1)}, {s(S_T2)}
            s_mul_i32 {s(S_T3)}, {s(S_T3)}, {48*1024}
            s_add_u32 {s(S_HOFF+sg)}, {s(S_T3)}, {s(S_T0)}
            """)
            if sg < 3:
                L += I(f"""
                s_mul_i32 {s(S_T2)}, {s(S_T2)}, 15360
                s_add_u32 {s(S_T2)}, {s(S_T2)}, {5120*sg}
                v_add_u32 {v(self.G2_RA+sg)}, {s(S_T2)}, v8
                """)
        L += I(f's_mul_i32 {s(S_T2)}, {s(S_WAVE)}, 15360\nv_add_u32 v8, {s(S_T2)}, v8')
        return L
    def g2_hload(self, n):
        sg, kk = n // 12, n % 12
        return Ins(f'buffer_load_dwordx4 {v(self.hreg(n),4)}, {v(self.G2_HV + kk//4)}, {s(SRD_WS,4)}, {s(S_HOFF+sg)} offen offset:{1024*(kk%4)} sc1')
    def f_loads(self):
        L = I(f"""
        s_lshl_b32 {s(S_T0)}, {s(S_T64)}, 6
        s_lshl_b32 {s(S_T1)}, {s(S_WAVE)}, 4
        s_add_u32 {s(S_T0)}, {s(S_T0)}, {s(S_T1)}
        v_and_b32 v9, 15, v1
        v_add_u32 v9, {s(S_T0)}, v9
        v_lshrrev_b32 v10, 4, v1
        s_mul_i32 {s(S_T2)}, {s(S_CS)}, 160
        v_lshl_add_u32 v10, v10, 3, {s(S_T2)}
        v_mul_u32_u24 v11, 1280, v9
        v_add_u32 v11, v11, v10
        """)
        for ct in range(5): L += I(f'buffer_load_dwordx2 {v(self.F_X+2*ct,2)}, v11, {s(SRD_Q,4)}, 0 offen offset:{32*ct}')
        for ct in range(5): L += I(f'global_load_dwordx2 {v(self.F_B+2*ct,2)}, v10, {s(P_B2,2)} offset:{32*ct}')
        L += I(f"""
        v_lshlrev_b32 v12, 3, v9
        v_add_u32 v12, {WS_STATS}, v12
        buffer_load_dwordx2 {v(self.F_ST,2)}, v12, {s(SRD_WS,4)}, 0 offen sc1
        """)
        return L
    def f_yloads(self):
        L = I(f"""
        v_lshlrev_b32 v12, 11, v10
        v_lshl_add_u32 v12, v9, 1, v12
        v_add_u32 v12, {WS_YT}, v12
        """)
        for ct in range(5):
            for r in range(4):
                L += I(f's_mov_b32 {s(S_T0)}, {(16*ct + r)*4096}')
                L += I(f'buffer_load_ushort {v(self.F_Y+4*ct+r)}, v12, {s(SRD_WS,4)}, {s(S_T0)} offen sc1')
        return L
    def f_pre(self):
        XU, SU, T, PP = self.F_XU, self.F_Y, self.F_T, self.F_PP
        X, B, ST_ = self.F_X, self.F_B, self.F_ST
        L = I(f"""
        v_rcp_f32 {v(T)}, {v(ST_+1)}
        v_mul_f32 {v(T+1)}, {v(ST_)}, {v(T)}
        v_xor_b32 {v(T+1)}, 0x80000000, {v(T+1)}
        """)
        for p in range(10):
            L += I(f"""
            v_lshlrev_b32 {v(XU+2*p)}, 16, {v(X+p)}
            v_and_b32 {v(XU+2*p+1)}, 0xffff0000, {v(X+p)}
            v_lshlrev_b32 {v(SU+2*p)}, 16, {v(SU+2*p)}
            v_lshlrev_b32 {v(SU+2*p+1)}, 16, {v(SU+2*p+1)}
            v_fma_f32 {v(T+2)}, {v(XU+2*p)}, {v(T)}, {v(T+1)}
            v_fma_f32 {v(T+3)}, {v(XU+2*p+1)}, {v(T)}, {v(T+1)}
            v_mul_f32 {v(SU+2*p)}, {v(SU+2*p)}, {v(T+2)}
            v_mul_f32 {v(SU+2*p+1)}, {v(SU+2*p+1)}, {v(T+3)}
            """)
        P2 = []
        for p in range(10):
            P2 += I(f"""
            v_lshlrev_b32 {v(T+4)}, 16, {v(B+p)}
            v_and_b32 {v(T+5)}, 0xffff0000, {v(B+p)}
            v_add_f32 {v(PP+2*p)}, {v(PP+2*p)}, {v(PP+20+2*p)}
            v_add_f32 {v(PP+2*p+1)}, {v(PP+2*p+1)}, {v(PP+21+2*p)}
            v_add_f32 {v(T+4)}, {v(T+4)}, {v(PP+40+2*p)}
            v_add_f32 {v(T+5)}, {v(T+5)}, {v(PP+41+2*p)}
            v_add_f32 {v(PP+2*p)}, {v(PP+2*p)}, {v(T+4)}
            v_add_f32 {v(PP+2*p+1)}, {v(PP+2*p+1)}, {v(T+5)}
            """)
        return L, P2
    def f_final(self):
        ACC = self.G2_ACC[1]; PP = self.F_PP
        XU, SU, T, X = self.F_XU, self.F_Y, self.F_T, self.F_X
        L = I(f's_mov_b32 {s(S_T0)}, {f2h(-1.4426950408889634)}')
        for ct in range(5):
            for h in range(2):
                p = 2 * ct + h
                U = T + 2 + 2 * (p & 1) + 4
                L += I(f"""
                v_pk_add_f32 {v(ACC+2*p,2)}, {v(ACC+2*p,2)}, {v(PP+2*p,2)}
                v_mul_f32 {v(U)}, {s(S_T0)}, {v(ACC+2*p)}
                v_mul_f32 {v(U+1)}, {s(S_T0)}, {v(ACC+2*p+1)}
                v_exp_f32 {v(U)}, {v(U)}
                v_exp_f32 {v(U+1)}, {v(U+1)}
                v_add_f32 {v(U)}, 1.0, {v(U)}
                v_add_f32 {v(U+1)}, 1.0, {v(U+1)}
                v_rcp_f32 {v(U)}, {v(U)}
                v_rcp_f32 {v(U+1)}, {v(U+1)}
                v_pk_mul_f32 {v(U,2)}, {v(U,2)}, {v(ACC+2*p,2)}
                v_pk_fma_f32 {v(U,2)}, {v(U,2)}, {v(SU+2*p,2)}, {v(XU+2*p,2)}
                v_cvt_pk_bf16_f32 {v(X+p)}, {v(U)}, {v(U+1)}
                """)
            L += I(f'buffer_store_dwordx2 {v(X+2*ct,2)}, v11, {s(SRD_OUT,4)}, 0 offen offset:{32*ct}')
        return L
    def f_pre_ct(self, ct):
        XU, SU, T, PP = self.F_XU, self.F_Y, self.F_T, self.F_PP
        X, B = self.F_X, self.F_B
        L = []
        for p in (2*ct, 2*ct + 1):
            L += I(f"""
            v_lshlrev_b32 {v(T+4)}, 16, {v(B+p)}
            v_and_b32 {v(T+5)}, 0xffff0000, {v(B+p)}
            v_add_f32 {v(PP+2*p)}, {v(PP+2*p)}, {v(PP+20+2*p)}
            v_add_f32 {v(PP+2*p+1)}, {v(PP+2*p+1)}, {v(PP+21+2*p)}
            v_add_f32 {v(T+4)}, {v(T+4)}, {v(PP+40+2*p)}
            v_add_f32 {v(T+5)}, {v(T+5)}, {v(PP+41+2*p)}
            v_add_f32 {v(PP+2*p)}, {v(PP+2*p)}, {v(T+4)}
            v_add_f32 {v(PP+2*p+1)}, {v(PP+2*p+1)}, {v(T+5)}
            """)
        return L
    def f_pre_x(self):
        XU, SU, T = self.F_XU, self.F_Y, self.F_T
        X, ST_ = self.F_X, self.F_ST
        L = I(f"""
        v_rcp_f32 {v(T)}, {v(ST_+1)}
        v_mul_f32 {v(T+1)}, {v(ST_)}, {v(T)}
        v_xor_b32 {v(T+1)}, 0x80000000, {v(T+1)}
        """)
        per = []
        for p in range(10):
            per.append(I(f"""
            v_lshlrev_b32 {v(XU+2*p)}, 16, {v(X+p)}
            v_and_b32 {v(XU+2*p+1)}, 0xffff0000, {v(X+p)}
            v_lshlrev_b32 {v(SU+2*p)}, 16, {v(SU+2*p)}
            v_lshlrev_b32 {v(SU+2*p+1)}, 16, {v(SU+2*p+1)}
            v_fma_f32 {v(T+2)}, {v(XU+2*p)}, {v(T)}, {v(T+1)}
            v_fma_f32 {v(T+3)}, {v(XU+2*p+1)}, {v(T)}, {v(T+1)}
            v_mul_f32 {v(SU+2*p)}, {v(SU+2*p)}, {v(T+2)}
            v_mul_f32 {v(SU+2*p+1)}, {v(SU+2*p+1)}, {v(T+3)}
            """))
        return L, per
    def f_fin_ct(self, ct):
        ACC = self.G2_ACC[1]; PP = self.F_PP
        XU, SU, T, X = self.F_XU, self.F_Y, self.F_T, self.F_X
        L = []
        for h in range(2):
            p = 2 * ct + h
            U = T + 6 + 2 * h
            L += I(f"""
            v_add_f32 {v(ACC+2*p)}, {v(ACC+2*p)}, {v(PP+2*p)}
            v_add_f32 {v(ACC+2*p+1)}, {v(ACC+2*p+1)}, {v(PP+2*p+1)}
            v_mul_f32 {v(U)}, {s(S_T0)}, {v(ACC+2*p)}
            v_mul_f32 {v(U+1)}, {s(S_T0)}, {v(ACC+2*p+1)}
            v_exp_f32 {v(U)}, {v(U)}
            v_exp_f32 {v(U+1)}, {v(U+1)}
            v_add_f32 {v(U)}, 1.0, {v(U)}
            v_add_f32 {v(U+1)}, 1.0, {v(U+1)}
            v_rcp_f32 {v(U)}, {v(U)}
            v_rcp_f32 {v(U+1)}, {v(U+1)}
            v_mul_f32 {v(U)}, {v(U)}, {v(ACC+2*p)}
            v_mul_f32 {v(U+1)}, {v(U+1)}, {v(ACC+2*p+1)}
            v_fma_f32 {v(U)}, {v(U)}, {v(SU+2*p)}, {v(XU+2*p)}
            v_fma_f32 {v(U+1)}, {v(U+1)}, {v(SU+2*p+1)}, {v(XU+2*p+1)}
            v_cvt_pk_bf16_f32 {v(X+p)}, {v(U)}, {v(U+1)}
            """)
        L += I(f'buffer_store_dwordx2 {v(X+2*ct,2)}, v11, {s(SRD_OUT,4)}, 0 offen offset:{32*ct}')
        return L
    def g2_main(self, first_unloaded, mid, last):
        out = []
        nxt = first_unloaded
        for sg in range(3):
            ACC = self.G2_ACC[sg & 1]
            for kk in range(12):
                n = sg * 12 + kk
                M = []
                for ct in range(5):
                    c = '0' if kk == 0 else v(ACC + 4 * ct, 4)
                    M.append(Ins(f'v_mfma_f32_16x16x32_bf16 {v(ACC+4*ct,4)}, {a_(20*kk+4*ct,4)}, {v(self.hreg(n),4)}, {c}'))
                B = []
                cnt = 0
                while nxt < 48 and nxt - self.G2_NR <= n - 1 and cnt < 1 and (nxt - first_unloaded) <= n:
                    B.append(self.g2_hload(nxt)); nxt += 1; cnt += 1
                B += mid.get(n, [])
                if sg >= 1 and kk == 1:
                    P = self.G2_ACC[(sg - 1) & 1]
                    B += [Ins(f'ds_write_b128 {v(self.G2_RA+sg-1)}, {v(P+4*ct,4)} offset:{1024*ct}') for ct in range(5)]
                if kk == 0 or n in (1, 4): out += self.ts('g2 n%d' % n)
                out += merge(M, B)
        assert nxt == 48, nxt
        out += self.ts('g2 n36')
        ACC = self.G2_ACC[1]
        P = self.G2_ACC[0]
        px0, pxp = self.f_pre_x()
        setup = I(f's_mov_b32 {s(S_T0)}, {f2h(-1.4426950408889634)}')
        for ct in range(5):
            M = []
            for kk in range(12):
                c = '0' if kk == 0 else v(ACC + 4 * ct, 4)
                M.append(Ins(f'v_mfma_f32_16x16x32_bf16 {v(ACC+4*ct,4)}, {a_(20*kk+4*ct,4)}, {v(self.hreg(36+kk),4)}, {c}'))
            B = []
            if ct == 0:
                B += [Ins(f'ds_write_b128 {v(self.G2_RA+2)}, {v(P+4*c2,4)} offset:{1024*c2}') for c2 in range(5)]
                B += last + [waitlds()] + I('s_barrier')
                for sp in range(3):
                    for c2 in range(2):
                        B.append(Ins(f'ds_read_b128 {v(self.F_PP + 4*(5*sp+c2), 4)}, v8 offset:{5120*sp + 1024*c2}'))
                B += px0 + setup
            else:
                if ct < 4:
                    c2 = ct + 1
                    for sp in range(3): B.append(Ins(f'ds_read_b128 {v(self.F_PP + 4*(5*sp+c2), 4)}, v8 offset:{5120*sp + 1024*c2}'))
                pc = ct - 1
                B += self.f_pre_ct(pc) + pxp[2*pc] + pxp[2*pc+1] + self.f_fin_ct(pc)
            out += merge(M, B)
        out += self.ts('G2 main done')
        out += self.f_pre_ct(4) + pxp[8] + pxp[9] + self.f_fin_ct(4)
        return out

TSNAMES = {}
def build_role(role, o):
    g = Gen(role, o)
    L = []
    def ts(name): return g.ts(name)
    L += ts('entry')
    if o.get('ts'): L += I('s_memrealtime s[6:7]\ns_waitcnt lgkmcnt(0)\nv_writelane_b32 v19, s6, 62')
    if o.get('pfcode'):
        L += I(f"""
        s_getpc_b64 s[6:7]
        """)
        L[-1].text += f'\nLpc_{role}:'
        L += I(f"""
        s_mov_b32 s8, Lend_{role}-Lpc_{role}-4
        v_and_b32 v3, 63, v0
        v_lshlrev_b32 v3, 7, v3
        v_lshrrev_b32 v4, 6, v0
        v_lshl_add_u32 v3, v4, 13, v3
        v_min_u32 v3, s8, v3
        global_load_dword a203, v3, s[6:7]
        """)
    L += g.prologue()
    first = [(SRD_Q, P_Q, S*D*2), (SRD_K, P_K, S*D*2), (SRD_V, P_V, S*D*2), (SRD_WS, P_WS, WS_BYTES), (SRD_W1, P_W1, D*F*2)]
    if role == 'A': first += [(SRD_W2, P_W2, D*F*2)]
    rest = [(SRD_OUT, P_OUT, S*D*2)] + ([(SRD_H, P_SSMK, S*D*2)] if role == 'A' else [])
    L += g.srds(first)
    L += I(f's_load_dword {s(S_EPOCH)}, {s(P_WS,2)}, {WS_EPOCH}')
    if o.get('pftlb'):
        stride = int(o.get('pftlb_stride', 20))
        L += I(f"""
        v_lshlrev_b32 v3, {stride}, v1
        buffer_load_dword a200, v3, {s(SRD_WS,4)}, 0 offen
        """)
        L += g.srds([(SRD_OUT, P_OUT, S*D*2)] + ([(SRD_H, P_SSMK, S*D*2)] if role == 'A' else [(SRD_W2, P_W2, D*F*2)]))
        L += I(f"""
        buffer_load_dword a201, v3, {s(SRD_OUT,4)}, 0 offen
        buffer_load_dword a202, v3, {s(SRD_H if role == 'A' else SRD_W2,4)}, 0 offen
        """)
    L += ts('prologue')
    if role == 'A': L += g.c_dload()
    L += g.p_kv_load()
    if o.get('pfg1'):
        L += I(f"""
        s_lshr_b32 {s(S_T0)}, {s(S_ID)}, 3
        s_lshl_b32 {s(S_T0)}, {s(S_T0)}, 2
        s_add_u32 {s(S_T0)}, {s(S_T0)}, {s(S_WAVE)}
        s_mul_i32 {s(S_T1)}, {s(S_T0)}, 40
        s_lshr_b32 {s(S_T2)}, {s(S_T)}, 2
        s_mul_i32 {s(S_T2)}, {s(S_T2)}, 655360
        v_min_u32 v20, 39, v1
        v_add_u32 v20, {s(S_T1)}, v20
        v_lshlrev_b32 v20, 7, v20
        buffer_load_dword a204, v20, {s(SRD_Q,4)}, {s(S_T2)} offen
        s_mul_i32 {s(S_T1)}, {s(S_T0)}, 60
        s_lshr_b32 {s(S_T2)}, {s(S_FS)}, 3
        s_mul_i32 {s(S_T2)}, {s(S_T2)}, 1536
        s_mov_b32 {s(S_T3)}, 0x15555556
        v_min_u32 v20, 59, v1
        v_add_u32 v20, {s(S_T1)}, v20
        v_mul_hi_u32 v21, v20, {s(S_T3)}
        v_mul_u32_u24 v22, 12, v21
        v_sub_u32 v22, v20, v22
        v_mul_u32_u24 v21, 3072, v21
        v_lshl_add_u32 v21, v22, 7, v21
        buffer_load_dword a205, v21, {s(SRD_W1,4)}, {s(S_T2)} offen
        """)
    L += g.g1_setup(20)
    L += g.g1_dma(0)
    if role == 'A': L += g.p_w2_load(240)
    L += g.p_stat_load(84)
    L += ts('P loads')
    pk1, pk2 = g.p_kv_compute()
    L += merge_time(g.srds(rest) + g.g1_setup2(20) + g.g1_init() + pk1, g.g1_dma(1) + g.g1_dma(2) + g.g1_dma(3), 0.05, 1.0)
    L += ts('pk1 done')
    L += [waitlds()] + I('s_barrier') + pk2 + g.p_stat_compute(84)
    if role == 'A': L += g.p_w2_store(240, [144, 148, 152, 160, 164])
    L += g.g1_ones() + g.make_tag()
    L += ts('P done')
    bg = {c: [] for c in range(10)}
    bgv = {c: [] for c in range(10)}
    for c in range(1, 7): bgv[c] += g.g1_dma(c + 3)
    bg[4] += I(f"""
        s_mul_i32 {s(S_T0)}, {s(S_FS)}, 192
        v_and_b32 v121, 31, v1
        v_lshl_add_u32 v121, v121, 1, {s(S_T0)}
        global_load_ushort v118, v121, {s(P_B1,2)}
        global_load_ushort v119, v121, {s(P_B1,2)} offset:64
        global_load_ushort v120, v121, {s(P_B1,2)} offset:128
        """)
    bg[2] += [waitvm('wstore'), waitvm('pstore')]
    bg[3] = g.set_flag(WS_FLAG_P, f's_mov_b32 {s(S_T0)}, {s(S_ID)}', 124, 125) + bg[3]
    comb = I(f"""
        s_mul_i32 {s(S_T0)}, {s(S_CS)}, 12
        s_mul_i32 {s(S_T1)}, {s(S_WAVE)}, 3
        s_add_u32 {s(S_T0)}, {s(S_T0)}, {s(S_T1)}
        v_min_u32 v126, 2, v1
        v_add_u32 v126, {s(S_T0)}, v126
        s_lshl_b32 {s(S_T0)}, {s(S_T)}, 7
        s_lshl_b32 {s(S_T1)}, {s(S_WAVE)}, 5
        s_add_u32 {s(S_T0)}, {s(S_T0)}, {s(S_T1)}
        s_and_b32 {s(S_T1)}, {s(S_T0)}, 0xf8
        s_lshr_b32 {s(S_T0)}, {s(S_T0)}, 8
        s_add_u32 {s(S_T0)}, {s(S_T0)}, {s(S_T1)}
        v_and_b32 v127, 3, v1
        v_lshlrev_b32 v127, 3, v127
        v_add_u32 v127, {s(S_T0)}, v127
        v_lshrrev_b32 v125, 2, v1
        v_cmp_eq_u32 vcc, 1, v125
        v_cndmask_b32 v126, v126, v127, vcc
        """)
    if role == 'A':
        comb += I(f"""
        s_mul_i32 {s(S_T0)}, {s(S_ID)}, 3277
        s_lshr_b32 {s(S_T0)}, {s(S_T0)}, 16
        s_lshl_b32 {s(S_T0)}, {s(S_T0)}, 3
        v_and_b32 v127, 3, v1
        v_lshlrev_b32 v127, 6, v127
        v_bfe_u32 v125, v1, 2, 3
        v_add_u32 v127, v127, v125
        v_add_u32 v127, {s(S_T0)}, v127
        v_cmp_lt_u32 vcc, 31, v1
        v_cndmask_b32 v126, v126, v127, vcc
        """)
    comb += I(f"""
        v_lshlrev_b32 v126, 6, v126
        v_add_u32 v126, {WS_FLAG_P}, v126
        buffer_load_dword v127, v126, {s(SRD_WS,4)}, 0 offen sc1
        """)
    bg[5] += comb
    w2l = [g.w2_load(n, 139) for n in range(60)]
    k = 0
    stat_ld = I(f"""
        s_lshl_b32 {s(S_T0)}, {s(S_T)}, 7
        s_lshl_b32 {s(S_T1)}, {s(S_WAVE)}, 5
        s_add_u32 {s(S_T0)}, {s(S_T0)}, {s(S_T1)}
        v_and_b32 v126, 31, v1
        v_add_u32 v126, {s(S_T0)}, v126
        v_lshlrev_b32 v126, 3, v126
        v_add_u32 v126, {WS_STATS}, v126
        buffer_load_dwordx2 v[116:117], v126, {s(SRD_WS,4)}, 0 offen sc1
        """)
    if role == 'A':
        bg[3] += g.c_hload()
        pa = g.c_prep_addr()
        bg[1] = pa + bg[1]
        bg[6] += g.c_prep_regs()
    bg[7] += g.poll(127, 126, 'p') + g.w2_setup(139) + stat_ld
    if role == 'A':
        bg[7] += g.c_xload()
        bg[7] = g.g2_setup() + bg[7]
        cw = g.c_write_copies()
        bg[8] += cw[:9]
        bg[9] += cw[9:]
        per = {8: 5, 9: 6}
    else:
        per = {8: 6, 9: 7}
    for c in sorted(per):
        for _ in range(per[c]): bgv[c] += w2l[k]; k += 1
    if o.get('x_nobg'):
        for c in range(10): bg[c] = []
    if o.get('x_nopk'):
        for c in (2, 3, 4): bg[c] = [i for i in bg[c] if i.kind in ('waitvm',) or i.tag == 'flag']
    if o.get('x_stop'):
        L += g.g1_main(bg, bgv) + ts('G1 main done') + [waitvmall()] + ts('end')
        L += I(f"""
        s_lshl_b32 {s(S_T0)}, {s(S_ID)}, 10
        s_lshl_b32 {s(S_T1)}, {s(S_WAVE)}, 8
        s_add_u32 {s(S_T0)}, {s(S_T0)}, {s(S_T1)}
        s_add_u32 {s(S_T0)}, {s(S_T0)}, {WS_TS}
        v_lshlrev_b32 v2, 2, v1
        buffer_store_dword v19, v2, {s(SRD_WS,4)}, {s(S_T0)} offen
        s_endpgm
        """)
        TSNAMES[role] = g.tsnames
        st = Stream(); st.ins = L
        return render(finalize(st)) + ''.join(g.tail)
    L += g.g1_main(bg, bgv)
    L += ts('G1 main done')
    gflag = g.set_flag(WS_FLAG_G, f's_lshl_b32 {s(S_T0)}, {s(S_T)}, 4\ns_add_u32 {s(S_T0)}, {s(S_T0)}, {s(S_FS)}', 16, 17)
    hflag_idx = f's_lshr_b32 {s(S_T0)}, {s(S_T64)}, 1\ns_lshl_b32 {s(S_T0)}, {s(S_T0)}, 4\ns_lshl_b32 {s(S_T1)}, {s(S_WAVE)}, 2\ns_add_u32 {s(S_T0)}, {s(S_T0)}, {s(S_T1)}'
    if role == 'A':
        e_bg = []
        for _ in range(11): e_bg += w2l[k]; k += 1
        L += g.g1_epilogue(e_bg, g.c_xwrite())
        L += ts('G1 epilogue')
        cb = {q: [] for q in range(8)}
        cb[2] += [waitvm('hstore')] + I('s_barrier') + gflag
        rem = 60 - k
        qi = 0
        for j in range(rem):
            cb[j * 5 // rem] += w2l[k]; k += 1
        cb[4] = g.flag_load(WS_FLAG_G, hflag_idx, 'v_and_b32 v13, 3, v1', 13, 14) + cb[4]
        cb[5] += g.poll(14, 13, 'g1')
        NPRE = 20
        hp = [g.g2_hload(n) for n in range(NPRE)]
        cb[5] += hp[:6]; cb[6] += hp[6:13]; cb[7] += hp[13:]
        L += g.c_main(cb)
        L += ts('conv main')
        L += g.c_post()
        cflag = [waitvm('ystore')] + I('s_barrier') + g.set_flag(WS_FLAG_C, f's_mov_b32 {s(S_T0)}, {s(S_ID)}', 16, 17)
        first_unl = NPRE
    else:
        e_bg = []
        for _ in range(6): e_bg += w2l[k]; k += 1
        L += g.g1_epilogue(e_bg)
        L += ts('G1 epilogue')
        L += g.g2_setup()
        L += [waitvm('hstore')] + I('s_barrier') + gflag
        while k < 60: L += w2l[k]; k += 1
        L += g.flag_load(WS_FLAG_G, hflag_idx, 'v_and_b32 v13, 3, v1', 13, 14)
        L += g.poll(14, 13, 'g1')
        L += ts('G1 flags')
        L += [g.g2_hload(n) for n in range(38)]
        cflag = I('s_barrier')
        first_unl = 38
    L += ts('G2 start')
    mid = {}
    fl = g.f_loads()
    mid[3] = fl[:11]
    for j in range(4): mid[5 + 2*j] = [fl[11 + j]]
    for j in range(5): mid[13 + 2*j] = [fl[15 + j]]
    mid[23] = fl[20:]
    mid[10] = cflag
    mid[16] = I(f"""
        s_cmp_eq_u32 {s(S_ID)}, 0
        s_cselect_b32 {s(S_T4)}, {s(S_TAG)}, 0
        s_cselect_b32 {s(S_T5)}, 0, {OOB}
        s_lshl_b32 {s(S_T0)}, {s(S_WAVE)}, 6
        v_add_u32 v15, {s(S_T0)}, v1
        v_lshlrev_b32 v15, 6, v15
        v_add_u32 v15, {WS_FLAG_P}, v15
        v_or_b32 v15, {s(S_T5)}, v15
        buffer_load_dword v18, v15, {s(SRD_WS,4)}, 0 offen sc1
        """)
    mid[24] = g.poll(18, 15, 'tk', exp=S_T4)
    epoch_store = I(f"""
        v_mov_b32 v18, {OOB}
        v_mov_b32 v15, {s(S_T5)}
        v_cmp_eq_u32 vcc, 0, v0
        v_cndmask_b32 v15, v18, v15, vcc
        v_mov_b32 v18, {s(S_TAG)}
        buffer_store_dword v18, v15, {s(SRD_WS,4)}, 0 offen sc1
        """)
    mid[22] = g.flag_load(WS_FLAG_C, f's_mul_i32 {s(S_T0)}, {s(S_CS)}, 20', 'v_min_u32 v13, 19, v1', 13, 14)
    yl = g.f_yloads()
    mid[29] = g.poll(14, 13, 'y') + yl[:9]
    for j, n in enumerate(range(30, 35)): mid[n] = yl[9 + 7*j: 9 + 7*(j+1)]
    mid[35] = yl[9 + 35:]
    L += g.g2_main(first_unl, mid, [])
    L += epoch_store
    L += ts('F done')
    if o.get('ts'):
        L += [waitvmall()] + ts('end')
        L += I('s_memrealtime s[6:7]\ns_waitcnt lgkmcnt(0)\nv_writelane_b32 v19, s6, 63')
        L += I(f"""
        s_lshl_b32 {s(S_T0)}, {s(S_ID)}, 10
        s_lshl_b32 {s(S_T1)}, {s(S_WAVE)}, 8
        s_add_u32 {s(S_T0)}, {s(S_T0)}, {s(S_T1)}
        s_add_u32 {s(S_T0)}, {s(S_T0)}, {WS_TS}
        v_lshlrev_b32 v2, 2, v1
        buffer_store_dword v19, v2, {s(SRD_WS,4)}, {s(S_T0)} offen
        """)
        TSNAMES[role] = g.tsnames
    L += I('s_endpgm')
    st = Stream(); st.ins = L
    return render(finalize(st)) + ''.join(g.tail) + f'Lend_{role}:\n    s_endpgm\n'

HEADER = """; Kernarg layout (112 bytes, ptrs only): q k v shift_k ssm_k ssm_D B_x w1 b1 w2 b2 out debug ws
; @launch grid=(256,1,1) block=(256,1,1) lds=163840
.amdgcn_target "amdgcn-amd-amdhsa--gfx950"
.text
.globl {n}_kernel
.p2align 8
.type {n}_kernel,@function
{n}_kernel:
"""
FOOTER = """
.section .rodata,"a"
.p2align 6
.amdhsa_kernel {n}_kernel
  .amdhsa_next_free_vgpr 512
  .amdhsa_next_free_sgpr 102
  .amdhsa_accum_offset 256
  .amdhsa_group_segment_fixed_size 0
  .amdhsa_kernarg_size 112
  .amdhsa_user_sgpr_count 2
  .amdhsa_user_sgpr_kernarg_segment_ptr 1
  .amdhsa_system_sgpr_workgroup_id_x 1
.end_amdhsa_kernel
"""
def build(o):
    global NT
    NT = ' nt' if o.get('nt') else ''
    txt = HEADER.format(n=NAME)
    txt += f"""    s_cmp_ge_u32 s2, 256
    s_cbranch_scc1 L_exit
    s_cmp_ge_u32 s2, {NA}
    s_cbranch_scc1 L_roleB
"""
    txt += build_role('A', o)
    txt += "L_exit:\n    s_endpgm\n.p2align 6\nL_roleB:\n"
    txt += build_role('B', o)
    txt += FOOTER.format(n=NAME)
    return txt

if __name__ == '__main__':
    o = {k: True for k in sys.argv[2:]}
    out = sys.argv[1] if len(sys.argv) > 1 else 'k.s'
    open(out, 'w').write(build(o))
    if o.get('ts'): json.dump(TSNAMES, open(out + '.ts.json', 'w'))
    print("wrote", out)
```

```python
import sys, struct, json
from asmlib import *

NAME = "recurrent_scan__ssm_conv_h3__dense_activation_squared_relu__prompt"
S, D, F = 2048, 640, 1536
def f2h(x): return '0x%08x' % struct.unpack('<I', struct.pack('<f', x))[0]

WS_EPOCH = 0
WS_FLAG_P = 0x1000
WS_FLAG_G = 0x5000
WS_FLAG_C = 0x9000
WS_FLAG_W = 0xC000
WS_STATS = 0x10000
WS_KVT = 0x100000
WS_YT = 0x400000
WS_H = 0x800000
WS_W2T = 0x1000000
WS_TS = 0x1300000
WS_BYTES = 0x1400000
NA = 160

def v(a, n=1): return 'v%d' % a if n == 1 else 'v[%d:%d]' % (a, a + n - 1)
def a_(a, n=1): return 'a%d' % a if n == 1 else 'a[%d:%d]' % (a, a + n - 1)
def s(a, n=1): return 's%d' % a if n == 1 else 's[%d:%d]' % (a, a + n - 1)

S_ID, S_WAVE, S_TAG = 2, 4, 5
SRD_Q, SRD_K, SRD_V, SRD_W1, SRD_W2, SRD_H, SRD_OUT, SRD_WS = 8, 12, 16, 20, 24, 28, 32, 36
P_Q, P_K, P_V, P_SHK, P_SSMK, P_SSMD, P_BX, P_W1, P_B1, P_W2, P_B2, P_OUT, P_DBG, P_WS = [40 + 2 * i for i in range(14)]
S_T, S_FS, S_T64, S_CS = 68, 69, 70, 71
S_PK, S_DIS = 72, 77
S_XOFF, S_WOFF, S_XM0, S_WM0 = 73, 74, 75, 76
S_W2OFF = 78
S_SPIN = 79
S_T0, S_T1, S_T2, S_T3, S_T4, S_T5 = 80, 81, 82, 83, 84, 85
S_ONES, S_EPOCH = 86, 87
S_MASK = 88
S_DVAL = 90
S_CB = 91
S_HOFF = 92
SRD_DBG = 96
OOB = 0x80000000

def I(text, tag=None): return [Ins(l.strip(), tag=tag) for l in text.strip('\n').split('\n') if l.split(';')[0].strip()]
def waitvm(tag):
    w = Ins('; waitvm'); w.kind = 'waitvm'; w.tag = tag; return w
def waitlds():
    w = Ins('; waitlds'); w.kind = 'waitlds'; return w
def waitvmall():
    w = Ins('; waitvmall'); w.kind = 'waitvmall'; return w

def weight(i):
    if i.kind in ('vmem', 'vmem_st'):
        return 12 if ('x4' in i.op) else 4
    if i.kind in ('waitvm', 'waitlds', 'waitvmall', 'label'): return 0
    return 1

def merge(main, bg, lo=0.0, hi=1.0):
    if not bg: return list(main)
    pos = [k for k, i in enumerate(main) if i.is_mfma()]
    if not pos: pos = list(range(len(main)))
    n = len(pos)
    a, b = int(lo * n), max(int(hi * n), int(lo * n) + 1)
    slots = pos[a:b]
    tot = sum(weight(i) for i in bg) or 1
    after = {}
    cum = 0
    for i in bg:
        k = min(int(cum * len(slots) / tot), len(slots) - 1)
        after.setdefault(slots[k], []).append(i)
        cum += weight(i)
    out = []
    for k, i in enumerate(main):
        out.append(i)
        out += after.get(k, [])
    return out

def est_times(stream):
    t = 0; pipe = 0; out = []
    for i in stream:
        if i.is_mfma():
            t = max(t, pipe); out.append(t)
            pipe = t + (32 if i.kind == 'mfma32' else 16); t += 8
        elif i.kind in ('waitvm', 'waitlds', 'waitvmall', 'label'):
            out.append(t)
        else:
            out.append(t); t += 8 if i.kind == 'trans' else 4
    return out, max(t, pipe)

def merge_time(stream, vm, lo=0.0, hi=1.0):
    if not vm: return list(stream)
    groups = []; cur = []
    for i in vm:
        cur.append(i)
        if i.kind in ('vmem', 'vmem_st'):
            groups.append(cur); cur = []
    if cur:
        if groups: groups[-1] += cur
        else: groups.append(cur)
    times, total = est_times(stream)
    n = len(groups)
    tgt = [total * (lo + (hi - lo) * (k + 0.0) / n) for k in range(n)]
    out = []; k = 0
    for i, t in zip(stream, times):
        while k < n and t >= tgt[k]:
            out += groups[k]; k += 1
        out.append(i)
    while k < n:
        out += groups[k]; k += 1
    return out

NT = ''
class Gen:
    def __init__(self, role, o):
        self.rot = (role == 'B' and bool(o.get('rot')))
        self.role = role; self.o = o; self.lab = 0; self.tail = []; self.tsnames = []
    def label(self, base):
        self.lab += 1
        return 'L%s_%s%d' % (self.role, base, self.lab)
    def ts(self, name):
        if not self.o.get('ts') or len(self.tsnames) >= 62: return []
        if self.o.get('light') and name not in ('entry', 'prologue', 'P loads', 'pk1 done', 'P done', 'g1 c5', 'G1 main done', 'G1 epilogue', 'conv main', 'G1 flags', 'G2 start', 'g2 n24', 'G2 main done', 'end'): return []
        k = len(self.tsnames); self.tsnames.append(name)
        return I(f's_memtime s[6:7]\ns_waitcnt lgkmcnt(0)\nv_writelane_b32 v19, s6, {k}')

    def flag_load(self, base, sidx_code, lane_code, vaddr, vflag):
        return I(sidx_code) + I(lane_code) + I(f"""
        v_add_u32 {v(vaddr)}, {s(S_T0)}, {v(vaddr)}
        v_lshlrev_b32 {v(vaddr)}, 6, {v(vaddr)}
        v_add_u32 {v(vaddr)}, {base}, {v(vaddr)}
        buffer_load_dword {v(vflag)}, {v(vaddr)}, {s(SRD_WS,4)}, 0 offen sc1
        """)
    def poll(self, vflag, vaddr, nm, exp=None, srd=None):
        exp = S_TAG if exp is None else exp
        srd = SRD_WS if srd is None else srd
        L = self.label('slow' + nm); Lb = self.label('back' + nm)
        br = Ins('s_cbranch_vccnz %s' % L); br.text += '\n%s:' % Lb
        self.tail.append(f"""{L}:
    s_mov_b32 {s(S_SPIN)}, 0
{L}_l:
    s_sleep 1
    buffer_load_dword {v(vflag)}, {v(vaddr)}, {s(srd,4)}, 0 offen sc1
    s_add_u32 {s(S_SPIN)}, {s(S_SPIN)}, 1
    s_cmp_gt_u32 {s(S_SPIN)}, 0x8000
    s_cbranch_scc1 {L}_x
    s_waitcnt vmcnt(0)
    v_cmp_ne_u32 vcc, {s(exp)}, {v(vflag)}
    s_nop 4
    s_cbranch_vccnz {L}_l
{L}_x:
    s_waitcnt vmcnt(0)
    s_nop 7
    s_branch {Lb}
""")
        return I('v_cmp_ne_u32 vcc, %s, %s' % (s(exp), v(vflag))) + [br]
    def set_flag(self, base, idx_code, t1, t2):
        return I(idx_code) + I(f"""
        s_lshl_b32 {s(S_T0)}, {s(S_T0)}, 6
        s_add_u32 {s(S_T0)}, {s(S_T0)}, {base}
        v_mov_b32 {v(t1)}, {s(S_T0)}
        v_mov_b32 {v(t2)}, {OOB}
        v_cmp_eq_u32 vcc, 0, v0
        v_cndmask_b32 {v(t1)}, {v(t2)}, {v(t1)}, vcc
        v_mov_b32 {v(t2)}, {s(S_TAG)}
        buffer_store_dword {v(t2)}, {v(t1)}, {s(SRD_WS,4)}, 0 offen sc1
        """, tag='flag')

    def prologue(self):
        L = I(f"""
        s_load_dwordx16 s[40:55], s[0:1], 0
        s_load_dwordx8 s[56:63], s[0:1], 64
        s_load_dwordx4 s[64:67], s[0:1], 96
        v_and_b32 v1, 63, v0
        v_lshrrev_b32 v2, 6, v0
        s_and_b32 {s(S_T0)}, {s(S_ID)}, 7
        s_lshr_b32 {s(S_T1)}, {s(S_ID)}, 3
        v_readfirstlane_b32 {s(S_WAVE)}, v2
        s_lshr_b32 {s(S_T2)}, {s(S_T0)}, 1
        s_lshl_b32 {s(S_T2)}, {s(S_T2)}, 2
        s_lshr_b32 {s(S_T3)}, {s(S_T1)}, 3
        s_add_u32 {s(S_T)}, {s(S_T2)}, {s(S_T3)}
        s_and_b32 {s(S_T2)}, {s(S_T0)}, 1
        s_lshl_b32 {s(S_T2)}, {s(S_T2)}, 3
        s_and_b32 {s(S_CS)}, {s(S_T1)}, 7
        s_add_u32 {s(S_FS)}, {s(S_T2)}, {s(S_CS)}
        s_lshl_b32 {s(S_T64)}, {s(S_T0)}, 2
        s_add_u32 {s(S_T64)}, {s(S_T64)}, {s(S_T3)}
        s_mov_b32 {s(S_ONES)}, 0x3f803f80
        """)
        return L
    def srds(self, lst):
        L = []
        for srd, p, n in lst:
            L += I(f"""
            s_mov_b32 {s(srd)}, {s(p)}
            s_mov_b32 {s(srd+1)}, {s(p+1)}
            s_mov_b32 {s(srd+2)}, {n}
            s_mov_b32 {s(srd+3)}, 0x20000
            """)
        return L
    def make_tag(self):
        return I(f"""
        s_mul_i32 {s(S_TAG)}, {s(S_EPOCH)}, 0x9e3779b1
        s_add_u32 {s(S_TAG)}, {s(S_TAG)}, 0x7f4a7c15
        """)

    def p_stat_load(self, R):
        return I(f"""
        s_and_b32 {s(S_T0)}, {s(S_ID)}, 7
        s_lshl_b32 {s(S_T0)}, {s(S_T0)}, 8
        s_and_b32 {s(S_T1)}, {s(S_ID)}, -8
        s_add_u32 {s(S_T0)}, {s(S_T0)}, {s(S_T1)}
        s_lshl_b32 {s(S_T1)}, {s(S_WAVE)}, 1
        s_add_u32 {s(S_T0)}, {s(S_T0)}, {s(S_T1)}
        v_lshrrev_b32 {v(R+12)}, 5, v1
        v_add_u32 {v(R+12)}, {s(S_T0)}, {v(R+12)}
        v_and_b32 {v(R+13)}, 31, v1
        v_mul_u32_u24 {v(R+10)}, 1280, {v(R+12)}
        v_lshl_add_u32 {v(R+11)}, {v(R+13)}, 3, {v(R+10)}
        v_lshl_add_u32 {v(R+10)}, {v(R+13)}, 4, {v(R+10)}
        buffer_load_dwordx4 {v(R,4)}, {v(R+10)}, {s(SRD_Q,4)}, 0 offen
        buffer_load_dwordx4 {v(R+4,4)}, {v(R+10)}, {s(SRD_Q,4)}, 0 offen offset:512
        buffer_load_dwordx2 {v(R+8,2)}, {v(R+11)}, {s(SRD_Q,4)}, 0 offen offset:1024
        """)
    def p_stat_compute(self, R, split=False):
        A, B, T, U = R + 14, R + 15, R + 16, R + 17
        assert A % 2 == 0
        L = I(f'v_mov_b32 {v(A)}, 0\nv_mov_b32 {v(B)}, 0')
        for i in range(10):
            L += I(f'v_dot2c_f32_bf16 {v(A)}, {s(S_ONES)}, {v(R+i)}\nv_dot2c_f32_bf16 {v(B)}, {v(R+i)}, {v(R+i)}')
        for rot in (8, 4, 2, 1):
            L += I(f'v_add_f32_dpp {v(A)}, {v(A)}, {v(A)} row_ror:{rot} row_mask:0xf bank_mask:0xf')
            L += I(f'v_add_f32_dpp {v(B)}, {v(B)}, {v(B)} row_ror:{rot} row_mask:0xf bank_mask:0xf')
        L += I(f"""
        v_mov_b32 {v(T)}, {v(A)}
        v_mov_b32 {v(U)}, {v(B)}
        v_permlane16_swap_b32 {v(A)}, {v(T)}
        v_permlane16_swap_b32 {v(B)}, {v(U)}
        v_add_f32 {v(A)}, {v(A)}, {v(T)}
        v_add_f32 {v(B)}, {v(B)}, {v(U)}
        v_mul_f32 {v(A)}, {f2h(1.0/640)}, {v(A)}
        v_mul_f32 {v(B)}, {f2h(1.0/640)}, {v(B)}
        v_fma_f32 {v(B)}, -{v(A)}, {v(A)}, {v(B)}
        v_max_f32 {v(B)}, 0, {v(B)}
        v_cvt_pk_bf16_f32 {v(A)}, {v(A)}, {v(B)}
        v_and_b32 {v(B)}, 0xffff0000, {v(A)}
        v_lshlrev_b32 {v(A)}, 16, {v(A)}
        v_add_f32 {v(B)}, {f2h(1e-5)}, {v(B)}
        v_cvt_pk_bf16_f32 {v(B)}, {v(B)}, {v(B)}
        v_lshlrev_b32 {v(B)}, 16, {v(B)}
        v_sqrt_f32 {v(B)}, {v(B)}
        v_cvt_pk_bf16_f32 {v(B)}, {v(B)}, {v(B)}
        v_lshlrev_b32 {v(B)}, 16, {v(B)}
        v_lshlrev_b32 {v(T)}, 3, {v(R+12)}
        v_add_u32 {v(T)}, {WS_STATS}, {v(T)}
        v_mov_b32 {v(U)}, {OOB}
        v_cmp_eq_u32 vcc, 0, {v(R+13)}
        v_cndmask_b32 {v(T)}, {v(U)}, {v(T)}, vcc
        """)
        if split:
            L += I(f'v_mov_b32 v116, {v(A)}\nv_mov_b32 v117, {v(A+1)}\nv_mov_b32 v122, {v(T)}')
            return L, I(f'buffer_store_dwordx2 v[116:117], v122, {s(SRD_WS,4)}, 0 offen sc1', tag='pstore')
        L += I(f'buffer_store_dwordx2 {v(A,2)}, {v(T)}, {s(SRD_WS,4)}, 0 offen sc1', tag='wstore')
        return L

    PK_K, PK_V, PK_W, PK_A, PK_T, PK_OUT = 144, 172, 188, 204, 214, 128
    PT = 114688
    PKL_K, PKL_V, PKL_W = 114688, 126976, 139264
    def p_kv_load(self):
        A = self.PK_A
        L = I(f"""
        s_lshl_b32 {s(S_T0)}, {s(S_T64)}, 6
        s_sub_u32 {s(S_T1)}, {s(S_T0)}, 3
        s_mul_i32 {s(S_T1)}, {s(S_T1)}, 1280
        s_mul_i32 {s(S_T0)}, {s(S_T0)}, 1280
        s_mul_i32 {s(S_T2)}, {s(S_CS)}, 160
        s_mov_b32 {s(S_T3)}, 0x1999999a
        s_lshl_b32 {s(S_T4)}, {s(S_WAVE)}, 6
        s_lshl_b32 {s(S_T5)}, {s(S_WAVE)}, 10
        """)
        for j in range(3):
            L += I(f"""
            v_add_u32 {v(A)}, {s(S_T4)}, v1
            v_add_u32 {v(A)}, {256*j}, {v(A)}
            v_mul_hi_u32 {v(A+1)}, {v(A)}, {s(S_T3)}
            v_mul_u32_u24 {v(A+2)}, 10, {v(A+1)}
            v_sub_u32 {v(A+2)}, {v(A)}, {v(A+2)}
            v_mul_u32_u24 {v(A+1)}, 1280, {v(A+1)}
            v_lshl_add_u32 {v(A+1)}, {v(A+2)}, 4, {v(A+1)}
            v_add_u32 {v(A+1)}, {s(S_T2)}, {v(A+1)}
            v_add_u32 {v(A+3)}, {s(S_T1)}, {v(A+1)}
            v_add_u32 {v(A+4)}, {s(S_T0)}, {v(A+1)}
            v_mov_b32 {v(A+5)}, {OOB}
            v_cmp_gt_u32 vcc, 670, {v(A)}
            v_cndmask_b32 {v(A+3)}, {v(A+5)}, {v(A+3)}, vcc
            v_cmp_gt_u32 vcc, 640, {v(A)}
            v_cndmask_b32 {v(A+4)}, {v(A+5)}, {v(A+4)}, vcc
            s_add_u32 m0, {s(S_T5)}, {self.PKL_K + 4096*j}
            """)
            L += I(f'buffer_load_dwordx4 {v(A+3)}, {s(SRD_K,4)}, 0 offen{NT} lds', tag='kvdma')
            L += I(f's_add_u32 m0, {s(S_T5)}, {self.PKL_V + 4096*j}')
            L += I(f'buffer_load_dwordx4 {v(A+4)}, {s(SRD_V,4)}, 0 offen{NT} lds', tag='kvdma')
        L += I(f"""
        s_mul_i32 {s(S_T2)}, {s(S_CS)}, 640
        v_lshl_add_u32 {v(A)}, v1, 4, {s(S_T2)}
        v_mov_b32 {v(A+5)}, {OOB}
        v_cmp_gt_u32 vcc, 40, v1
        v_cndmask_b32 {v(A)}, {v(A+5)}, {v(A)}, vcc
        s_mov_b32 m0, {self.PKL_W}
        """)
        L += I(f'buffer_load_dwordx4 {v(A)}, {s(SRD_H,4)}, 0 offen lds', tag='kvdma')
        return L
    def p_kv_fetch(self):
        K, V_, W, A = self.PK_K, self.PK_V, self.PK_W, self.PK_A
        L = I(f"""
        v_mul_u32_u24 {v(A+9)}, 6554, v0
        v_lshrrev_b32 {v(A+9)}, 16, {v(A+9)}
        v_mul_u32_u24 {v(A+8)}, 10, {v(A+9)}
        v_sub_u32 {v(A+8)}, v0, {v(A+8)}
        v_min_u32 {v(A)}, 15, {v(A+9)}
        v_mul_u32_u24 {v(A)}, 640, {v(A)}
        v_lshl_add_u32 {v(A)}, {v(A+8)}, 4, {v(A)}
        v_add_u32 {v(A+1)}, {self.PKL_V}, {v(A)}
        v_add_u32 {v(A)}, {self.PKL_K}, {v(A)}
        v_lshlrev_b32 {v(A+2)}, 6, {v(A+8)}
        v_add_u32 {v(A+2)}, {self.PKL_W}, {v(A+2)}
        """)
        for i in range(7): L += I(f'ds_read_b128 {v(K+4*i,4)}, {v(A)} offset:{160*i}')
        for i in range(4): L += I(f'ds_read_b128 {v(W+4*i,4)}, {v(A+2)} offset:{16*i}')
        for i in range(4): L += I(f'ds_read_b128 {v(V_+4*i,4)}, {v(A+1)} offset:{160*i}')
        return L
    def p_kv_compute(self, packed=True):
        K, V_, W, A, T = self.PK_K, self.PK_V, self.PK_W, self.PK_A, self.PK_T
        KU, VU, WU, AC, OUT = T, T + 14, T + 22, T + 30, self.PK_OUT
        L = []
        for dd in range(4):
            for r in range(7):
                L += I(f'v_lshlrev_b32 {v(KU+2*r)}, 16, {v(K+4*r+dd)}\nv_and_b32 {v(KU+2*r+1)}, 0xffff0000, {v(K+4*r+dd)}')
            for j in range(4):
                for h in range(2):
                    src = W + 4 * dd + 2 * h + (j >> 1)
                    L += I(f'v_and_b32 {v(WU+2*j+h)}, 0xffff0000, {v(src)}' if j & 1 else f'v_lshlrev_b32 {v(WU+2*j+h)}, 16, {v(src)}')
            for r in range(4):
                L += I(f'v_lshlrev_b32 {v(VU+2*r)}, 16, {v(V_+4*r+dd)}\nv_and_b32 {v(VU+2*r+1)}, 0xffff0000, {v(V_+4*r+dd)}')
            for t in range(4):
                for h in range(2): L += I(f'v_mul_f32 {v(AC+2*t+h)}, {v(KU+2*t+h)}, {v(WU+6+h)}')
            for j in (2, 1, 0):
                for t in range(4):
                    for h in range(2): L += I(f'v_fmac_f32 {v(AC+2*t+h)}, {v(KU+2*(t+3-j)+h)}, {v(WU+2*j+h)}')
            for t in range(4):
                for h in range(2): L += I(f'v_mul_f32 {v(AC+2*t+h)}, {v(AC+2*t+h)}, {v(VU+2*t+h)}')
            for h in range(2):
                ch = 2 * dd + h
                L += I(f'v_cvt_pk_bf16_f32 {v(OUT+2*ch)}, {v(AC+h)}, {v(AC+2+h)}\nv_cvt_pk_bf16_f32 {v(OUT+2*ch+1)}, {v(AC+4+h)}, {v(AC+6+h)}')
        L += I(f"""
        v_and_b32 {v(T)}, 14, {v(A+8)}
        v_xor_b32 {v(T)}, {v(T)}, {v(A+9)}
        v_lshlrev_b32 {v(T)}, 3, {v(T)}
        v_lshl_add_u32 {v(T)}, {v(A+8)}, 10, {v(T)}
        v_mov_b32 {v(T+1)}, 12288
        v_cmp_gt_u32 vcc, 160, v0
        v_cndmask_b32 {v(T)}, {v(T+1)}, {v(T)}, vcc
        v_add_u32 {v(T)}, {self.PT}, {v(T)}
        """)
        for i in range(8): L += I(f'ds_write_b64 {v(T)}, {v(OUT+2*i,2)} offset:{128*i}')
        L1 = L
        L = I(f"""
        v_lshrrev_b32 {v(T)}, 3, v0
        v_and_b32 {v(T+1)}, 7, v0
        v_lshrrev_b32 {v(T+2)}, 6, v0
        v_lshlrev_b32 {v(T+4)}, 1, {v(T+1)}
        v_lshlrev_b32 {v(T+5)}, 7, {v(T)}
        v_add_u32 {v(T+5)}, {self.PT}, {v(T+5)}
        """)
        for i in range(3):
            L += I(f"""
            v_add_u32 {v(T+3)}, {4*i}, {v(T+2)}
            v_and_b32 {v(T+3)}, 14, {v(T+3)}
            v_xor_b32 {v(T+3)}, {v(T+3)}, {v(T+4)}
            v_lshl_add_u32 {v(T+3)}, {v(T+3)}, 3, {v(T+5)}
            ds_read_b128 {v(OUT+4*i,4)}, {v(T+3)} offset:{4096*i}
            """)
        L += I(f"""
        s_mul_i32 {s(S_T0)}, {s(S_CS)}, {80*4096}
        s_lshl_b32 {s(S_T1)}, {s(S_T64)}, 7
        s_add_u32 {s(S_T0)}, {s(S_T0)}, {s(S_T1)}
        s_add_u32 {s(S_T0)}, {s(S_T0)}, {WS_KVT}
        v_lshlrev_b32 {v(T+6)}, 12, {v(T)}
        v_lshl_add_u32 {v(T+6)}, {v(T+1)}, 4, {v(T+6)}
        v_add_u32 {v(T+7)}, {32*4096}, {v(T+6)}
        v_add_u32 {v(T+8)}, {64*4096}, {v(T+6)}
        v_mov_b32 {v(T+9)}, {OOB}
        v_cmp_gt_u32 vcc, 128, v0
        v_cndmask_b32 {v(T+8)}, {v(T+9)}, {v(T+8)}, vcc
        """)
        for i in range(3):
            L += I(f'buffer_store_dwordx4 {v(OUT+4*i,4)}, {v(T+6+i)}, {s(SRD_WS,4)}, {s(S_T0)} offen sc1', tag='pstore')
        return L1, L

    W2STG = 140288
    def p_w2_load(self, T):
        L = I(f"""
        s_mov_b32 {s(S_DIS)}, 0
        s_sub_u32 {s(S_T0)}, {s(S_ID)}, {NA}
        s_lshl_b32 {s(S_T0)}, {s(S_T0)}, 2
        s_add_u32 {s(S_T0)}, {s(S_T0)}, {s(S_WAVE)}
        s_mul_i32 {s(S_T1)}, {s(S_T0)}, 1366
        s_lshr_b32 {s(S_T1)}, {s(S_T1)}, 16
        s_mul_i32 {s(S_T2)}, {s(S_T1)}, 48
        s_sub_u32 {s(S_T2)}, {s(S_T0)}, {s(S_T2)}
        s_mul_i32 {s(S_T2)}, {s(S_T2)}, {32*1280}
        s_mul_i32 {s(S_T1)}, {s(S_T1)}, 160
        s_add_u32 {s(S_T2)}, {s(S_T2)}, {s(S_T1)}
        s_mul_i32 {s(S_W2OFF)}, {s(S_T0)}, 5120
        s_add_u32 {s(S_W2OFF)}, {s(S_W2OFF)}, {WS_W2T}
        s_mul_i32 {s(S_T3)}, {s(S_WAVE)}, 5120
        s_add_u32 {s(S_T3)}, {s(S_T3)}, {self.W2STG}
        s_mov_b32 {s(S_T1)}, 0x1999999a
        """)
        for n in range(5):
            comp = 1024 * n if n < 4 else 0
            L += I(f"""
            v_add_u32 {v(T)}, {64*n}, v1
            v_mul_hi_u32 {v(T+1)}, {v(T)}, {s(S_T1)}
            v_mul_u32_u24 {v(T+2)}, 10, {v(T+1)}
            v_sub_u32 {v(T+2)}, {v(T)}, {v(T+2)}
            v_mul_u32_u24 {v(T+1)}, 1280, {v(T+1)}
            v_lshl_add_u32 {v(T+1)}, {v(T+2)}, 4, {v(T+1)}
            v_subrev_u32 {v(T+8+n)}, {comp}, {v(T+1)}
            v_or_b32 {v(T+8+n)}, {s(S_DIS)}, {v(T+8+n)}
            """)
        L += I(f's_mov_b32 m0, {s(S_T3)}')
        for n in range(4): L += I(f'buffer_load_dwordx4 {v(T+8+n)}, {s(SRD_W2,4)}, {s(S_T2)} offen offset:{1024*n}{NT} lds', tag='w2slab')
        L += I(f's_add_u32 m0, {s(S_T3)}, 4096')
        L += I(f'buffer_load_dwordx4 {v(T+12)}, {s(SRD_W2,4)}, {s(S_T2)} offen{NT} lds', tag='w2slab')
        L += I(f"""
        v_bfe_u32 {v(T)}, v1, 5, 1
        v_lshlrev_b32 {v(T)}, 4, {v(T)}
        v_bfe_u32 {v(T+1)}, v1, 4, 1
        v_lshl_add_u32 {v(T)}, {v(T+1)}, 2, {v(T)}
        v_bfe_u32 {v(T+1)}, v1, 2, 2
        v_add_u32 {v(T)}, {v(T)}, {v(T+1)}
        v_mul_u32_u24 {v(T)}, 160, {v(T)}
        v_and_b32 {v(T+1)}, 3, v1
        v_lshl_add_u32 {v(T)}, {v(T+1)}, 3, {v(T)}
        v_add_u32 {v(T+13)}, {s(S_T3)}, {v(T)}
        v_lshlrev_b32 {v(T+14)}, 4, v1
        v_or_b32 {v(T+14)}, {s(S_DIS)}, {v(T+14)}
        """)
        return L
    def p_w2_store(self, T):
        L = [waitvm('w2slab')]
        for ct in range(5):
            for al in range(2): L += I(f'ds_read_b64_tr_b16 {a_(4*ct+2*al,2)}, {v(T+13)} offset:{al*1280 + ct*32}')
        L += I(f'v_mov_b32 v123, {v(T+14)}')
        S_ = []
        for ct in range(5):
            if ct == 4:
                S_ += I(f's_add_u32 {s(S_W2OFF)}, {s(S_W2OFF)}, 4096')
                S_ += I(f'buffer_store_dwordx4 {a_(4*ct,4)}, v123, {s(SRD_WS,4)}, {s(S_W2OFF)} offen sc1', tag='pstore')
            else:
                S_ += I(f'buffer_store_dwordx4 {a_(4*ct,4)}, v123, {s(SRD_WS,4)}, {s(S_W2OFF)} offen offset:{1024*ct} sc1', tag='pstore')
        return L, S_

    XST, WST, CSA = 0, 65536, 160768
    NST = 4
    G_XD, G_WD, G_XA, G_XB, G_WA, G_WC = 2, 6, 9, 13, 17, 18
    G_ACC, G_XF, G_WF, G_CSF, G_CS = 20, 68, 76, 100, 112
    G_ONE = 156
    def g1_setup(self, T):
        XD, WD, XA, XB, WA, WC = self.G_XD, self.G_WD, self.G_XA, self.G_XB, self.G_WA, self.G_WC
        L = I(f"""
        v_lshrrev_b32 {v(T)}, 3, v1
        v_and_b32 {v(T+1)}, 7, v1
        v_lshrrev_b32 {v(T+2)}, 4, v1
        s_lshl_b32 {s(S_T0)}, {s(S_WAVE)}, 5
        v_add_u32 {v(T)}, {s(S_T0)}, {v(T)}
        v_mul_u32_u24 {v(T)}, 1280, {v(T)}
        v_xor_b32 {v(T+3)}, {v(T+1)}, {v(T+2)}
        v_add_u32 {v(T+4)}, 4, {v(T+2)}
        v_xor_b32 {v(T+4)}, {v(T+1)}, {v(T+4)}
        v_lshl_add_u32 {v(XD)}, {v(T+3)}, 4, {v(T)}
        v_lshl_add_u32 {v(T+4)}, {v(T+4)}, 4, {v(T)}
        v_add_u32 {v(XD+1)}, {10240-1024}, {v(T+4)}
        v_add_u32 {v(XD+2)}, {20480-2048}, {v(XD)}
        v_add_u32 {v(XD+3)}, {30720-3072}, {v(T+4)}
        s_mul_i32 {s(S_XOFF)}, {s(S_T)}, 163840
        s_lshl_b32 {s(S_XM0)}, {s(S_WAVE)}, 12
        s_mul_i32 {s(S_WOFF)}, {s(S_FS)}, 192
        s_mul_i32 {s(S_WM0)}, {s(S_WAVE)}, 3072
        s_add_u32 {s(S_WM0)}, {s(S_WM0)}, {self.WST}
        s_mul_i32 {s(S_T0)}, {s(S_WAVE)}, 192
        s_mov_b32 {s(S_T1)}, 0x15555556
        """)
        for i in range(3):
            L += I(f"""
            v_add_u32 {v(T)}, {s(S_T0)}, v1
            v_add_u32 {v(T)}, {64*i}, {v(T)}
            v_mul_hi_u32 {v(T+1)}, {v(T)}, {s(S_T1)}
            v_mul_u32_u24 {v(T+2)}, 12, {v(T+1)}
            v_sub_u32 {v(T+2)}, {v(T)}, {v(T+2)}
            v_mul_u32_u24 {v(T+1)}, 3072, {v(T+1)}
            v_lshl_add_u32 {v(T+1)}, {v(T+2)}, 4, {v(T+1)}
            v_subrev_u32 {v(WD+i)}, {1024*i}, {v(T+1)}
            """)
        return L
    def g1_setup2(self, T):
        XA, XB, WA, WC = self.G_XA, self.G_XB, self.G_WA, self.G_WC
        L = I(f"""
        v_and_b32 {v(T)}, 31, v1
        v_lshrrev_b32 {v(T+1)}, 5, v1
        v_bfe_u32 {v(T+2)}, v1, 1, 3
        v_lshlrev_b32 {v(T)}, 7, {v(T)}
        v_add_u32 {v(T)}, {s(S_XM0)}, {v(T)}
        """)
        for ks in range(4):
            L += I(f"""
            v_add_u32 {v(T+3)}, {2*ks}, {v(T+1)}
            v_xor_b32 {v(T+3)}, {v(T+3)}, {v(T+2)}
            v_lshl_add_u32 {v(XA+ks)}, {v(T+3)}, 4, {v(T)}
            """)
        L += I(f"""
        v_lshrrev_b32 {v(T)}, 5, v1
        v_lshlrev_b32 {v(T)}, 3, {v(T)}
        v_bfe_u32 {v(T+1)}, v1, 2, 2
        v_add_u32 {v(T)}, {v(T)}, {v(T+1)}
        v_mul_u32_u24 {v(T)}, 192, {v(T)}
        v_bfe_u32 {v(T+1)}, v1, 4, 1
        v_lshl_add_u32 {v(T)}, {v(T+1)}, 5, {v(T)}
        v_and_b32 {v(T+1)}, 3, v1
        v_lshl_add_u32 {v(T)}, {v(T+1)}, 3, {v(T)}
        v_add_u32 {v(WA)}, {self.WST}, {v(T)}
        s_mul_i32 {s(S_T0)}, {s(S_WAVE)}, 3072
        v_add_u32 {v(WC)}, {s(S_T0)}, {v(WA)}
        """)
        return L
    def g1_dma(self, c):
        XD, WD = self.G_XD, self.G_WD
        stg = c % self.NST
        L = [f's_add_u32 m0, {s(S_XM0)}, {self.XST + stg*16384}']
        for i in range(4): L.append(f'buffer_load_dwordx4 {v(XD+i)}, {s(SRD_Q,4)}, {s(S_XOFF)} offen offset:{1024*i} lds')
        L.append(f's_add_u32 {s(S_XOFF)}, {s(S_XOFF)}, 128')
        L.append(f's_add_u32 m0, {s(S_WM0)}, {stg*12288}')
        for i in range(3): L.append(f'buffer_load_dwordx4 {v(WD+i)}, {s(SRD_W1,4)}, {s(S_WOFF)} offen offset:{1024*i} lds')
        L.append(f's_add_u32 {s(S_WOFF)}, {s(S_WOFF)}, {64*3072}')
        return [Ins(t, tag='g1c%d' % c) for t in L]
    def g1_reads(self, n):
        c, ks = n >> 2, n & 3
        stg = c % self.NST; b = n & 1
        XF, WF = self.G_XF + 4 * b, self.G_WF + 12 * b
        L = [f'ds_read_b128 {v(XF,4)}, {v(self.G_XA+ks)} offset:{stg*16384}']
        for ft in range(3):
            for al in range(2):
                L.append(f'ds_read_b64_tr_b16 {v(WF+4*ft+2*al,2)}, {v(self.G_WA)} offset:{stg*12288 + (16*ks+4*al)*192 + ft*64}')
        return [Ins(t) for t in L]
    def g1_cs_reads(self, c):
        stg = c % self.NST
        return [Ins(f'ds_read_b64_tr_b16 {v(self.G_CSF+4*ft+2*al,2)}, {v(self.G_WC)} offset:{stg*12288 + (4*al)*192 + ft*64}') for ft in range(3) for al in range(2)]
    def g1_cs_mfma(self, first):
        return [Ins(f'v_mfma_f32_32x32x16_bf16 {a_(208+16*ft,16)}, {a_(196,4)}, {v(self.G_CSF+4*ft,4)}, ' + ('0' if first else a_(208+16*ft,16))) for ft in range(3)]
    def g1_init(self):
        L = []
        for i in range(48): L += I(f'v_mov_b32 {v(self.G_ACC+i)}, 0')
        return L
    def g1_ones(self):
        return I(f'v_mov_b32 v121, {s(S_ONES)}') + [Ins(f'v_accvgpr_write_b32 {a_(196+i)}, v121') for i in range(4)]
    def g1_main(self, bg, bgv):
        ACC = self.G_ACC
        out = [waitvm('g1c0'), waitlds()] + I('s_barrier') + self.g1_reads(0)
        for c in range(10):
            main = []
            csr = self.g1_cs_reads(c); csm = self.g1_cs_mfma(c == 0)
            for ks in range(4):
                n = 4 * c + ks
                b = n & 1
                M = [Ins(f'v_mfma_f32_32x32x16_bf16 {v(ACC+16*ft,16)}, {v(self.G_WF+12*b+4*ft,4)}, {v(self.G_XF+4*b,4)}, {v(ACC+16*ft,16)}') for ft in range(3)]
                R = self.g1_reads(n + 1) if n + 1 < 40 else [None] * 7
                R = [r for r in R]
                def RR(a, b_): return [r for r in R[a:b_] if r is not None]
                C2 = csr[2*ks:2*ks+2] if ks < 3 else []
                if ks == 0:
                    main += [M[0]] + RR(0, 3) + [M[1]] + RR(3, 5) + C2[:1] + [M[2]] + RR(5, 7) + C2[1:]
                elif ks < 3:
                    main += [M[0]] + RR(0, 3) + [M[1]] + RR(3, 5) + [M[2]] + RR(5, 7) + [csm[ks-1]] + C2
                else:
                    pre = ([waitvm('g1c%d' % (c + 1)), waitlds()] + I('s_barrier')) if n + 1 < 40 else []
                    main += [M[0]] + pre + RR(0, 3) + [csm[2]] + RR(3, 5) + [M[1]] + RR(5, 7) + [M[2]]
            B = list(bg.get(c, []))
            out += self.ts('g1 c%d' % c)
            m1 = merge(main, B, 0.0, 0.74)
            bar = [k for k, i in enumerate(m1) if i.op == 's_barrier']
            if bar:
                cut = bar[-1]
                while m1[cut - 1].kind in ('waitvm', 'waitlds'): cut -= 1
                out += merge_time(m1[:cut], bgv.get(c, []), 0.5 if c == 0 else 0.02, 0.98) + m1[cut:]
            else:
                out += merge_time(m1, bgv.get(c, []), 0.02, 0.98)
        return out
    def g1_epilogue(self, bg, ldsbg=None):
        ACC = self.G_ACC
        ST_, B1, AX, BX, RS, AD = 116, 118, 76, 88, 92, 94
        CS = self.G_CS
        L = I(f"""
        v_and_b32 {v(AD)}, 31, v1
        v_lshlrev_b32 {v(AD)}, 2, {v(AD)}
        v_add_u32 {v(AD)}, {self.CSA}, {v(AD)}
        s_mul_i32 {s(S_T0)}, {s(S_WAVE)}, 384
        v_add_u32 {v(AD+1)}, {s(S_T0)}, {v(AD)}
        """)
        for ft in range(3): L += I(f'v_accvgpr_read_b32 {v(CS+ft)}, {a_(208+16*ft)}')
        for ft in range(3): L += I(f'ds_write_b32 {v(AD+1)}, {v(CS+ft)} offset:{128*ft}')
        L += [waitlds()] + I('s_barrier') + self.ts('ep: barrier')
        for w in range(4):
            for ft in range(3): L += I(f'ds_read_b32 {v(100+3*w+ft)}, {v(AD)} offset:{384*w + 128*ft}')
        L += I(f"""
        v_cmp_gt_u32 vcc, 32, v1
        v_rcp_f32 {v(RS)}, {v(ST_+1)}
        v_xor_b32 {v(BX)}, 0x80000000, {v(ST_)}
        v_lshrrev_b32 {v(BX+1)}, 16, {v(BX)}
        v_or_b32 {v(BX)}, {v(BX)}, {v(BX+1)}
        v_lshrrev_b32 {v(BX+1)}, 16, {v(ST_+1)}
        v_mov_b32 {v(BX+2)}, 0
        v_mov_b32 {v(BX+3)}, 0
        """)
        for ft in range(3):
            a = AX + 4 * ft; cs = CS + ft
            L += I(f"""
            v_add_f32 {v(cs)}, {v(100+ft)}, {v(103+ft)}
            v_add_f32 {v(a)}, {v(106+ft)}, {v(109+ft)}
            v_add_f32 {v(cs)}, {v(cs)}, {v(a)}
            v_cvt_pk_bf16_f32 {v(a)}, {v(cs)}, {v(cs)}
            v_lshlrev_b32 {v(a+1)}, 16, {v(a)}
            v_sub_f32 {v(a+1)}, {v(cs)}, {v(a+1)}
            v_cvt_pk_bf16_f32 {v(a)}, {v(cs)}, {v(a+1)}
            v_cndmask_b32 {v(a)}, 0, {v(a)}, vcc
            v_cndmask_b32 {v(a+1)}, 0, {v(B1+ft)}, vcc
            v_mov_b32 {v(a+2)}, 0
            v_mov_b32 {v(a+3)}, 0
            v_mfma_f32_32x32x16_bf16 {v(ACC+16*ft,16)}, {v(a,4)}, {v(BX,4)}, {v(ACC+16*ft,16)}
            """)
        L += I(f"""
        s_lshl_b32 {s(S_T0)}, {s(S_T)}, 3
        s_lshl_b32 {s(S_T1)}, {s(S_WAVE)}, 1
        s_add_u32 {s(S_T0)}, {s(S_T0)}, {s(S_T1)}
        s_mul_i32 {s(S_T0)}, {s(S_T0)}, {48*1024}
        s_mul_i32 {s(S_T1)}, {s(S_FS)}, 3072
        s_add_u32 {s(S_T0)}, {s(S_T0)}, {s(S_T1)}
        s_add_u32 {s(S_T4)}, {s(S_T0)}, {WS_H}
        v_bfe_u32 {v(AD)}, v1, 4, 1
        v_mul_u32_u24 {v(AD)}, {48*1024}, {v(AD)}
        v_lshrrev_b32 {v(AD+1)}, 5, v1
        v_lshl_add_u32 {v(AD)}, {v(AD+1)}, 8, {v(AD)}
        v_and_b32 {v(AD+1)}, 15, v1
        v_lshl_add_u32 {v(AD)}, {v(AD+1)}, 4, {v(AD)}
        """)
        E = []
        for ft in range(3):
            A = ACC + 16 * ft
            for cc in range(2):
                for p in range(4 * cc, 4 * cc + 4):
                    r = A + 2 * p
                    E += I(f"""
                    v_max_f32 {v(r)}, 0, {v(r)}
                    v_max_f32 {v(r+1)}, 0, {v(r+1)}
                    v_pk_mul_f32 {v(r,2)}, {v(r,2)}, {v(RS,2)} op_sel_hi:[1,0]
                    v_pk_mul_f32 {v(r,2)}, {v(r,2)}, {v(r,2)}
                    """)
                for d in range(4):
                    r = A + 8 * cc + 2 * d
                    E += I(f'v_cvt_pk_bf16_f32 {v(A+8*cc+d)}, {v(r)}, {v(r+1)}')
                E += I(f'buffer_store_dwordx4 {v(A+8*cc,4)}, {v(AD)}, {s(SRD_WS,4)}, {s(S_T4)} offen offset:{1024*ft + 512*cc} sc1', tag='hstore')
        if ldsbg: E = merge(E, ldsbg)
        return L + self.ts('ep: xmfma') + merge_time(E, bg)

    def w2_setup(self, vaddr):
        return I(f"""
        s_mul_i32 {s(S_W2OFF)}, {s(S_CS)}, {48*5120}
        s_mul_i32 {s(S_T0)}, {s(S_WAVE)}, {12*5120}
        s_add_u32 {s(S_W2OFF)}, {s(S_W2OFF)}, {s(S_T0)}
        s_add_u32 {s(S_W2OFF)}, {s(S_W2OFF)}, {WS_W2T + (20480 if self.rot else 0)}
        v_lshlrev_b32 {v(vaddr)}, 4, v1
        """)
    def w2_load(self, n, vaddr):
        L = I(f'buffer_load_dwordx4 {a_(4*n,4)}, {v(vaddr)}, {s(SRD_WS,4)}, {s(S_W2OFF)} offen offset:{1024*(n%4)} sc1', tag='w2')
        if n % 4 == 3:
            if self.rot and n == 39: L += I(f's_sub_u32 {s(S_W2OFF)}, {s(S_W2OFF)}, {61440 - 4096}')
            else: L += I(f's_add_u32 {s(S_W2OFF)}, {s(S_W2OFF)}, 4096')
        return L

    CWS = 21248
    C_S0, C_S1, C_S2 = 208, 224, 240
    C_ACC, C_XF, C_HF, C_HD, C_XB, C_HB = 20, 52, 116, 132, 136, 137
    def c_dload(self):
        return I(f"""
        s_lshl_b32 {s(S_T0)}, {s(S_ID)}, 2
        s_add_u32 {s(S_T0)}, {s(S_T0)}, {s(S_WAVE)}
        s_lshl_b32 {s(S_T1)}, {s(S_T0)}, 1
        s_and_b32 {s(S_T1)}, {s(S_T1)}, -4
        s_load_dword {s(S_DVAL)}, {s(P_SSMD,2)}, {s(S_T1)}
        """)
    def c_hload(self):
        A = 202
        L = I(f"""
        s_lshl_b32 {s(S_T0)}, {s(S_ID)}, 2
        s_add_u32 {s(S_T0)}, {s(S_T0)}, {s(S_WAVE)}
        s_lshl_b32 {s(S_T0)}, {s(S_T0)}, 12
        v_lshlrev_b32 {v(A)}, 4, v1
        """)
        for i in range(4):
            L += I(f'buffer_load_dwordx4 {v(self.C_S0+4*i,4)}, {v(A)}, {s(SRD_H,4)}, {s(S_T0)} offen offset:{1024*i}{NT}')
        return L
    def c_prep_regs(self):
        S0, S1, S2 = self.C_S0, self.C_S1, self.C_S2
        L = []
        DP = 'row_mask:0xf bank_mask:0xf'
        for i in range(4):
            s0, q2, q3, q1, p2 = S0 + 4*i, S1 + 4*i, S2 + 4*i, 160 + 4*i, 203
            if i == 0:
                L += I(f'v_mov_b32 {v(q2)}, 0\nv_mov_b32 {v(p2)}, 0')
            else:
                L += I(f'v_mov_b32_dpp {v(q2)}, {v(s0-1)} wave_ror:1 {DP}\nv_mov_b32_dpp {v(p2)}, {v(s0-2)} wave_ror:1 {DP}')
            L += I(f"""
            v_mov_b32 {v(q2+1)}, {v(s0)}
            v_mov_b32 {v(q2+2)}, {v(s0+1)}
            v_mov_b32_dpp {v(q2)}, {v(s0+3)} wave_shr:1 {DP}
            v_mov_b32_dpp {v(p2)}, {v(s0+2)} wave_shr:1 {DP}
            v_mov_b32 {v(q2+3)}, {v(s0+2)}
            v_alignbit_b32 {v(q1+1)}, {v(s0+1)}, {v(s0)}, 16
            v_alignbit_b32 {v(q1+2)}, {v(s0+2)}, {v(s0+1)}, 16
            v_alignbit_b32 {v(q1+3)}, {v(s0+3)}, {v(s0+2)}, 16
            v_alignbit_b32 {v(q1)}, {v(s0)}, {v(q2)}, 16
            v_alignbit_b32 {v(q3)}, {v(q2)}, {v(p2)}, 16
            v_mov_b32 {v(q3+2)}, {v(q1+1)}
            v_mov_b32 {v(q3+3)}, {v(q1+2)}
            v_mov_b32 {v(q3+1)}, {v(q1)}
            """)
        return L
    def c_prep_addr(self):
        L = []
        L += I(f"""
        s_mul_i32 {s(S_T0)}, {s(S_WAVE)}, {self.CWS}
        s_add_u32 {s(S_T0)}, {s(S_T0)}, 90112
        s_cmp_eq_u32 {s(S_WAVE)}, 3
        s_cselect_b32 {s(S_T0)}, 32768, {s(S_T0)}
        v_lshlrev_b32 v176, 4, v1
        v_add_u32 v176, {s(S_T0)}, v176
        v_bfe_u32 v177, v1, 1, 2
        v_mul_u32_u24 v177, 4160, v177
        v_and_b32 v178, 1, v1
        v_lshl_add_u32 v177, v178, 4, v177
        v_add_u32 v177, {s(S_T0)}, v177
        v_min_u32 v179, 29, v1
        v_lshlrev_b32 v179, 4, v179
        s_add_u32 {s(S_T0)}, {s(S_T0)}, 16640
        v_add_u32 v179, {s(S_T0)}, v179
        v_mov_b32 v180, 0
        v_mov_b32 v181, 0
        v_mov_b32 v182, 0
        v_mov_b32 v183, 0
        """)
        XB, HB, HD = self.C_XB, self.C_HB, self.C_HD
        L += I(f"""
        v_and_b32 v184, 15, v1
        v_lshrrev_b32 v185, 4, v1
        v_lshlrev_b32 {v(XB)}, 5, v184
        v_lshlrev_b32 v186, 4, v185
        v_sub_u32 {v(XB)}, {v(XB)}, v186
        v_add_u32 {v(XB)}, 48, {v(XB)}
        v_add_u32 {v(XB)}, {s(S_T0)}, {v(XB)}
        v_bfe_u32 v187, v1, 2, 2
        v_mul_u32_u24 {v(HB)}, 4160, v187
        v_add_u32 {v(HB)}, {v(HB)}, v186
        v_and_b32 v187, 3, v1
        v_lshl_add_u32 {v(HB)}, v187, 3, {v(HB)}
        s_sub_u32 {s(S_T0)}, {s(S_T0)}, {16640 - 8}
        v_add_u32 {v(HB)}, {s(S_T0)}, {v(HB)}
        s_and_b32 {s(S_T1)}, {s(S_WAVE)}, 1
        s_lshl_b32 {s(S_T1)}, {s(S_T1)}, 4
        s_lshr_b32 {s(S_DVAL)}, {s(S_DVAL)}, {s(S_T1)}
        s_and_b32 {s(S_DVAL)}, {s(S_DVAL)}, 0xffff
        v_lshrrev_b32 v186, 3, v184
        v_add_u32 v186, v186, v185
        v_and_b32 v187, 1, v184
        v_lshlrev_b32 v187, 4, v187
        v_lshlrev_b32 v187, v187, {s(S_DVAL)}
        v_bfe_u32 v188, v184, 1, 2
        v_mov_b32 v189, 99
        v_cmp_eq_u32 vcc, 1, v186
        v_cndmask_b32 v188, v189, v188, vcc
        """)
        for w in range(4): L += I(f'v_cmp_eq_u32 vcc, {w}, v188\nv_cndmask_b32 {v(HD+w)}, 0, v187, vcc')
        return L
    def c_write_copies(self):
        S0, S1, S2 = self.C_S0, self.C_S1, self.C_S2
        L = I('ds_write_b128 v177, v[180:183]\nds_write_b128 v179, v[180:183]')
        for i in range(4):
            L += I(f'ds_write_b128 v176, {v(S0+4*i,4)} offset:{32 + 1024*i}')
            L += I(f'ds_write_b128 v176, {v(160+4*i,4)} offset:{32 + 4160 + 1024*i}')
            L += I(f'ds_write_b128 v176, {v(S1+4*i,4)} offset:{32 + 2*4160 + 1024*i}')
            L += I(f'ds_write_b128 v176, {v(S2+4*i,4)} offset:{32 + 3*4160 + 1024*i}')
        return L
    C_XL = 140
    def c_xload(self):
        L = I(f"""
        s_lshl_b32 {s(S_T0)}, {s(S_ID)}, 2
        s_add_u32 {s(S_T0)}, {s(S_T0)}, {s(S_WAVE)}
        s_lshl_b32 {s(S_T0)}, {s(S_T0)}, 12
        s_add_u32 {s(S_T0)}, {s(S_T0)}, {WS_KVT}
        v_lshlrev_b32 v138, 4, v1
        """)
        for i in range(4): L += I(f'buffer_load_dwordx4 {v(self.C_XL+4*i,4)}, v138, {s(SRD_WS,4)}, {s(S_T0)} offen offset:{1024*i} sc1')
        return L
    def c_xwrite(self):
        return [Ins(f'ds_write_b128 v176, {v(self.C_XL+4*i,4)} offset:{16640 + 480 + 1024*i}') for i in range(4)]
    def c_xread(self, q, b):
        return Ins(f'ds_read_b128 {v(self.C_XF + 32*(q&1) + 4*b, 4)}, {v(self.C_XB)} offset:{512*b + 64*(7-q)}')
    C_AORD = (0, 7, 1, 6, 2, 5, 3, 4)
    def c_hread(self, idx):
        q, a = idx // 8, self.C_AORD[idx % 8]
        r = self.C_HF + 4 * (idx % 4)
        return [Ins(f'ds_read_b64_tr_b16 {v(r+2*al,2)}, {v(self.C_HB)} offset:{512*a + 64*q + 8*(1-al)}') for al in range(2)]
    def c_main(self, bg):
        ACC = self.C_ACC
        out = [self.c_xread(0, b) for b in range(8)]
        for idx in range(3): out += self.c_hread(idx)
        for b in range(8): out += I(f'v_mfma_f32_16x16x32_bf16 {v(ACC+4*b,4)}, {v(self.C_HD,4)}, {v(self.C_XF+4*b,4)}, 0')
        for q in range(8):
            main = []
            for ai, a in enumerate(self.C_AORD):
                idx = 8 * q + ai
                hr = self.C_HF + 4 * (idx % 4)
                first = True
                for b in range(7 - a, -1, -1):
                    main.append(Ins(f'v_mfma_f32_16x16x32_bf16 {v(ACC+4*(a+b),4)}, {v(hr,4)}, {v(self.C_XF+32*(q&1)+4*b,4)}, {v(ACC+4*(a+b),4)}'))
                    if first and idx + 3 < 64: main += self.c_hread(idx + 3)
                    first = False
            xr = [self.c_xread(q + 1, b) for b in range(8)] if q < 7 else []
            if q in (0, 2, 4, 6, 7): out += self.ts('conv q%d' % q)
            m1 = merge(main, xr, 0.0, 0.7)
            out += merge(m1, bg.get(q, []), 0.0, 1.0)
        return out
    def c_post(self):
        ACC = self.C_ACC
        L = I(f"""
        s_lshl_b32 {s(S_T0)}, {s(S_ID)}, 2
        s_add_u32 {s(S_T0)}, {s(S_T0)}, {s(S_WAVE)}
        s_lshl_b32 {s(S_T0)}, {s(S_T0)}, 12
        s_add_u32 {s(S_T0)}, {s(S_T0)}, {WS_YT}
        v_and_b32 v52, 15, v1
        v_lshlrev_b32 v52, 5, v52
        v_bfe_u32 v53, v1, 4, 1
        v_lshl_add_u32 v52, v53, 9, v52
        v_bfe_u32 v53, v1, 5, 1
        v_lshl_add_u32 v52, v53, 4, v52
        """)
        for p in range(4):
            Q = 56 + 4 * p
            a0, a1 = ACC + 8 * p, ACC + 8 * p + 4
            L += I(f"""
            v_cvt_pk_bf16_f32 {v(Q)}, {v(a0)}, {v(a0+1)}
            v_cvt_pk_bf16_f32 {v(Q+1)}, {v(a0+2)}, {v(a0+3)}
            v_cvt_pk_bf16_f32 {v(Q+2)}, {v(a1)}, {v(a1+1)}
            v_cvt_pk_bf16_f32 {v(Q+3)}, {v(a1+2)}, {v(a1+3)}
            v_permlane16_swap_b32 {v(Q)}, {v(Q+2)}
            v_permlane16_swap_b32 {v(Q+1)}, {v(Q+3)}
            """)
            L += I(f'buffer_store_dwordx4 {v(Q,4)}, v52, {s(SRD_WS,4)}, {s(S_T0)} offen offset:{1024*p} sc1', tag='ystore')
        return L

    G2_ACC = (20, 40)
    G2_HR, G2_NR, G2_OFF = 104, 38, 11
    G2_HV = 2
    G2_RA = 5
    F_X, F_B, F_ST, F_Y = 60, 70, 80, 82
    F_PP, F_XU, F_T = 188, 104, 124
    def hreg(self, n): return self.G2_HR + 4 * ((n + self.G2_OFF) % self.G2_NR)
    def g2_setup(self):
        L = I(f"""
        v_lshlrev_b32 v8, 4, v1
        v_add_u32 v2, {4096 if self.rot else 0}, v8
        v_add_u32 v3, {8192 if self.rot else 4096}, v8
        v_add_u32 v4, {0 if self.rot else 8192}, v8
        s_mul_i32 {s(S_T0)}, {s(S_WAVE)}, {12*1024}
        s_add_u32 {s(S_T0)}, {s(S_T0)}, {WS_H}
        s_lshl_b32 {s(S_T1)}, {s(S_T64)}, 2
        """)
        for sg in range(4):
            L += I(f"""
            s_add_u32 {s(S_T2)}, {s(S_WAVE)}, {1+sg}
            s_and_b32 {s(S_T2)}, {s(S_T2)}, 3
            s_add_u32 {s(S_T3)}, {s(S_T1)}, {s(S_T2)}
            s_mul_i32 {s(S_T3)}, {s(S_T3)}, {48*1024}
            s_add_u32 {s(S_HOFF+sg)}, {s(S_T3)}, {s(S_T0)}
            """)
            if sg < 3:
                L += I(f"""
                s_mul_i32 {s(S_T2)}, {s(S_T2)}, 15360
                s_add_u32 {s(S_T2)}, {s(S_T2)}, {5120*sg}
                v_add_u32 {v(self.G2_RA+sg)}, {s(S_T2)}, v8
                """)
        L += I(f's_mul_i32 {s(S_T2)}, {s(S_WAVE)}, 15360\nv_add_u32 v8, {s(S_T2)}, v8')
        return L
    def g2_hload(self, n):
        sg, kk = n // 12, n % 12
        return Ins(f'buffer_load_dwordx4 {v(self.hreg(n),4)}, {v(self.G2_HV + kk//4)}, {s(SRD_WS,4)}, {s(S_HOFF+sg)} offen offset:{1024*(kk%4)} sc1')
    def f_loads(self):
        L = I(f"""
        s_lshl_b32 {s(S_T0)}, {s(S_T64)}, 6
        s_lshl_b32 {s(S_T1)}, {s(S_WAVE)}, 4
        s_add_u32 {s(S_T0)}, {s(S_T0)}, {s(S_T1)}
        v_and_b32 v9, 15, v1
        v_add_u32 v9, {s(S_T0)}, v9
        v_lshrrev_b32 v10, 4, v1
        s_mul_i32 {s(S_T2)}, {s(S_CS)}, 160
        v_lshl_add_u32 v10, v10, 3, {s(S_T2)}
        v_mul_u32_u24 v11, 1280, v9
        v_add_u32 v11, v11, v10
        """)
        for ct in range(5): L += I(f'buffer_load_dwordx2 {v(self.F_X+2*ct,2)}, v11, {s(SRD_Q,4)}, 0 offen offset:{32*ct}')
        for ct in range(5): L += I(f'global_load_dwordx2 {v(self.F_B+2*ct,2)}, v10, {s(P_B2,2)} offset:{32*ct}')
        L += I(f"""
        v_lshlrev_b32 v12, 3, v9
        v_add_u32 v12, {WS_STATS}, v12
        buffer_load_dwordx2 {v(self.F_ST,2)}, v12, {s(SRD_WS,4)}, 0 offen sc1
        """)
        return L
    def f_yloads(self):
        L = I(f"""
        v_lshlrev_b32 v12, 11, v10
        v_lshl_add_u32 v12, v9, 1, v12
        v_add_u32 v12, {WS_YT}, v12
        """)
        for ct in range(5):
            for r in range(4):
                L += I(f's_mov_b32 {s(S_T0)}, {(16*ct + r)*4096}')
                L += I(f'buffer_load_ushort {v(self.F_Y+4*ct+r)}, v12, {s(SRD_WS,4)}, {s(S_T0)} offen sc1')
        return L
    def f_pre(self):
        XU, SU, T, PP = self.F_XU, self.F_Y, self.F_T, self.F_PP
        X, B, ST_ = self.F_X, self.F_B, self.F_ST
        L = I(f"""
        v_rcp_f32 {v(T)}, {v(ST_+1)}
        v_mul_f32 {v(T+1)}, {v(ST_)}, {v(T)}
        v_xor_b32 {v(T+1)}, 0x80000000, {v(T+1)}
        """)
        for p in range(10):
            L += I(f"""
            v_lshlrev_b32 {v(XU+2*p)}, 16, {v(X+p)}
            v_and_b32 {v(XU+2*p+1)}, 0xffff0000, {v(X+p)}
            v_lshlrev_b32 {v(SU+2*p)}, 16, {v(SU+2*p)}
            v_lshlrev_b32 {v(SU+2*p+1)}, 16, {v(SU+2*p+1)}
            v_fma_f32 {v(T+2)}, {v(XU+2*p)}, {v(T)}, {v(T+1)}
            v_fma_f32 {v(T+3)}, {v(XU+2*p+1)}, {v(T)}, {v(T+1)}
            v_mul_f32 {v(SU+2*p)}, {v(SU+2*p)}, {v(T+2)}
            v_mul_f32 {v(SU+2*p+1)}, {v(SU+2*p+1)}, {v(T+3)}
            """)
        P2 = []
        for p in range(10):
            P2 += I(f"""
            v_lshlrev_b32 {v(T+4)}, 16, {v(B+p)}
            v_and_b32 {v(T+5)}, 0xffff0000, {v(B+p)}
            v_add_f32 {v(PP+2*p)}, {v(PP+2*p)}, {v(PP+20+2*p)}
            v_add_f32 {v(PP+2*p+1)}, {v(PP+2*p+1)}, {v(PP+21+2*p)}
            v_add_f32 {v(T+4)}, {v(T+4)}, {v(PP+40+2*p)}
            v_add_f32 {v(T+5)}, {v(T+5)}, {v(PP+41+2*p)}
            v_add_f32 {v(PP+2*p)}, {v(PP+2*p)}, {v(T+4)}
            v_add_f32 {v(PP+2*p+1)}, {v(PP+2*p+1)}, {v(T+5)}
            """)
        return L, P2
    def f_final(self):
        ACC = self.G2_ACC[1]; PP = self.F_PP
        XU, SU, T, X = self.F_XU, self.F_Y, self.F_T, self.F_X
        L = I(f's_mov_b32 {s(S_T0)}, {f2h(-1.4426950408889634)}')
        for ct in range(5):
            for h in range(2):
                p = 2 * ct + h
                U = T + 2 + 2 * (p & 1) + 4
                L += I(f"""
                v_pk_add_f32 {v(ACC+2*p,2)}, {v(ACC+2*p,2)}, {v(PP+2*p,2)}
                v_mul_f32 {v(U)}, {s(S_T0)}, {v(ACC+2*p)}
                v_mul_f32 {v(U+1)}, {s(S_T0)}, {v(ACC+2*p+1)}
                v_exp_f32 {v(U)}, {v(U)}
                v_exp_f32 {v(U+1)}, {v(U+1)}
                v_add_f32 {v(U)}, 1.0, {v(U)}
                v_add_f32 {v(U+1)}, 1.0, {v(U+1)}
                v_rcp_f32 {v(U)}, {v(U)}
                v_rcp_f32 {v(U+1)}, {v(U+1)}
                v_pk_mul_f32 {v(U,2)}, {v(U,2)}, {v(ACC+2*p,2)}
                v_pk_fma_f32 {v(U,2)}, {v(U,2)}, {v(SU+2*p,2)}, {v(XU+2*p,2)}
                v_cvt_pk_bf16_f32 {v(X+p)}, {v(U)}, {v(U+1)}
                """)
            L += I(f'buffer_store_dwordx2 {v(X+2*ct,2)}, v11, {s(SRD_OUT,4)}, 0 offen offset:{32*ct}')
        return L
    def f_pre_ct(self, ct):
        XU, SU, T, PP = self.F_XU, self.F_Y, self.F_T, self.F_PP
        X, B = self.F_X, self.F_B
        L = []
        for p in (2*ct, 2*ct + 1):
            L += I(f"""
            v_lshlrev_b32 {v(T+4)}, 16, {v(B+p)}
            v_and_b32 {v(T+5)}, 0xffff0000, {v(B+p)}
            v_add_f32 {v(PP+2*p)}, {v(PP+2*p)}, {v(PP+20+2*p)}
            v_add_f32 {v(PP+2*p+1)}, {v(PP+2*p+1)}, {v(PP+21+2*p)}
            v_add_f32 {v(T+4)}, {v(T+4)}, {v(PP+40+2*p)}
            v_add_f32 {v(T+5)}, {v(T+5)}, {v(PP+41+2*p)}
            v_add_f32 {v(PP+2*p)}, {v(PP+2*p)}, {v(T+4)}
            v_add_f32 {v(PP+2*p+1)}, {v(PP+2*p+1)}, {v(T+5)}
            """)
        return L
    def f_pre_x(self):
        XU, SU, T = self.F_XU, self.F_Y, self.F_T
        X, ST_ = self.F_X, self.F_ST
        L = I(f"""
        v_rcp_f32 {v(T)}, {v(ST_+1)}
        v_mul_f32 {v(T+1)}, {v(ST_)}, {v(T)}
        v_xor_b32 {v(T+1)}, 0x80000000, {v(T+1)}
        """)
        per = []
        for p in range(10):
            per.append(I(f"""
            v_lshlrev_b32 {v(XU+2*p)}, 16, {v(X+p)}
            v_and_b32 {v(XU+2*p+1)}, 0xffff0000, {v(X+p)}
            v_lshlrev_b32 {v(SU+2*p)}, 16, {v(SU+2*p)}
            v_lshlrev_b32 {v(SU+2*p+1)}, 16, {v(SU+2*p+1)}
            v_fma_f32 {v(T+2)}, {v(XU+2*p)}, {v(T)}, {v(T+1)}
            v_fma_f32 {v(T+3)}, {v(XU+2*p+1)}, {v(T)}, {v(T+1)}
            v_mul_f32 {v(SU+2*p)}, {v(SU+2*p)}, {v(T+2)}
            v_mul_f32 {v(SU+2*p+1)}, {v(SU+2*p+1)}, {v(T+3)}
            """))
        return L, per
    def f_fin_ct(self, ct):
        ACC = self.G2_ACC[1]; PP = self.F_PP
        XU, SU, T, X = self.F_XU, self.F_Y, self.F_T, self.F_X
        L = []
        for h in range(2):
            p = 2 * ct + h
            U = T + 6 + 2 * h
            L += I(f"""
            v_add_f32 {v(ACC+2*p)}, {v(ACC+2*p)}, {v(PP+2*p)}
            v_add_f32 {v(ACC+2*p+1)}, {v(ACC+2*p+1)}, {v(PP+2*p+1)}
            v_mul_f32 {v(U)}, {s(S_T0)}, {v(ACC+2*p)}
            v_mul_f32 {v(U+1)}, {s(S_T0)}, {v(ACC+2*p+1)}
            v_exp_f32 {v(U)}, {v(U)}
            v_exp_f32 {v(U+1)}, {v(U+1)}
            v_add_f32 {v(U)}, 1.0, {v(U)}
            v_add_f32 {v(U+1)}, 1.0, {v(U+1)}
            v_rcp_f32 {v(U)}, {v(U)}
            v_rcp_f32 {v(U+1)}, {v(U+1)}
            v_mul_f32 {v(U)}, {v(U)}, {v(ACC+2*p)}
            v_mul_f32 {v(U+1)}, {v(U+1)}, {v(ACC+2*p+1)}
            v_fma_f32 {v(U)}, {v(U)}, {v(SU+2*p)}, {v(XU+2*p)}
            v_fma_f32 {v(U+1)}, {v(U+1)}, {v(SU+2*p+1)}, {v(XU+2*p+1)}
            v_cvt_pk_bf16_f32 {v(X+p)}, {v(U)}, {v(U+1)}
            """)
        L += I(f'buffer_store_dwordx2 {v(X+2*ct,2)}, v11, {s(SRD_OUT,4)}, 0 offen offset:{32*ct}')
        return L
    def g2_main(self, first_unloaded, mid, last):
        out = []
        nxt = first_unloaded
        for sg in range(3):
            ACC = self.G2_ACC[sg & 1]
            for kk in range(12):
                n = sg * 12 + kk
                M = []
                for ct in range(5):
                    c = '0' if kk == 0 else v(ACC + 4 * ct, 4)
                    M.append(Ins(f'v_mfma_f32_16x16x32_bf16 {v(ACC+4*ct,4)}, {a_(20*kk+4*ct,4)}, {v(self.hreg(n),4)}, {c}'))
                B = []
                cnt = 0
                while nxt < 48 and nxt - self.G2_NR <= n - 1 and cnt < 1 and (nxt - first_unloaded) <= n:
                    B.append(self.g2_hload(nxt)); nxt += 1; cnt += 1
                B += mid.get(n, [])
                if sg >= 1 and kk == 1:
                    P = self.G2_ACC[(sg - 1) & 1]
                    B += [Ins(f'ds_write_b128 {v(self.G2_RA+sg-1)}, {v(P+4*ct,4)} offset:{1024*ct}') for ct in range(5)]
                if kk == 0 or n in (1, 4): out += self.ts('g2 n%d' % n)
                out += merge(M, B)
        assert nxt == 48, nxt
        out += self.ts('g2 n36')
        ACC = self.G2_ACC[1]
        P = self.G2_ACC[0]
        px0, pxp = self.f_pre_x()
        setup = I(f's_mov_b32 {s(S_T0)}, {f2h(-1.4426950408889634)}')
        for ct in range(5):
            M = []
            for kk in range(12):
                c = '0' if kk == 0 else v(ACC + 4 * ct, 4)
                M.append(Ins(f'v_mfma_f32_16x16x32_bf16 {v(ACC+4*ct,4)}, {a_(20*kk+4*ct,4)}, {v(self.hreg(36+kk),4)}, {c}'))
            B = []
            if ct == 0:
                B += [Ins(f'ds_write_b128 {v(self.G2_RA+2)}, {v(P+4*c2,4)} offset:{1024*c2}') for c2 in range(5)]
                B += last + [waitlds()] + I('s_barrier')
                for sp in range(3):
                    for c2 in range(2):
                        B.append(Ins(f'ds_read_b128 {v(self.F_PP + 4*(5*sp+c2), 4)}, v8 offset:{5120*sp + 1024*c2}'))
                B += px0 + setup
            else:
                if ct < 4:
                    c2 = ct + 1
                    for sp in range(3): B.append(Ins(f'ds_read_b128 {v(self.F_PP + 4*(5*sp+c2), 4)}, v8 offset:{5120*sp + 1024*c2}'))
                pc = ct - 1
                B += self.f_pre_ct(pc) + pxp[2*pc] + pxp[2*pc+1] + self.f_fin_ct(pc)
            out += merge(M, B)
        out += self.ts('G2 main done')
        out += self.f_pre_ct(4) + pxp[8] + pxp[9] + self.f_fin_ct(4)
        return out

TSNAMES = {}
def build_role(role, o):
    g = Gen(role, o)
    L = []
    def ts(name): return g.ts(name)
    L += ts('entry')
    if o.get('ts'): L += I('s_memrealtime s[6:7]\ns_waitcnt lgkmcnt(0)\nv_writelane_b32 v19, s6, 62')
    if o.get('pfcode'):
        L += I(f"""
        s_getpc_b64 s[6:7]
        """)
        L[-1].text += f'\nLpc_{role}:'
        L += I(f"""
        s_mov_b32 s8, Lend_{role}-Lpc_{role}-4
        v_and_b32 v3, 63, v0
        v_lshlrev_b32 v3, 7, v3
        v_lshrrev_b32 v4, 6, v0
        v_lshl_add_u32 v3, v4, 13, v3
        v_min_u32 v3, s8, v3
        global_load_dword a203, v3, s[6:7]
        """)
    L += g.prologue()
    first = [(SRD_K, P_K, S*D*2), (SRD_V, P_V, S*D*2), (SRD_H, P_SHK, D*4*2), (SRD_Q, P_Q, S*D*2), (SRD_WS, P_WS, WS_BYTES), (SRD_W1, P_W1, D*F*2)]
    if role == 'B': first += [(SRD_W2, P_W2, D*F*2)]
    rest = [(SRD_OUT, P_OUT, S*D*2)] + ([(SRD_H, P_SSMK, S*D*2)] if role == 'A' else [])
    L += g.srds(first)
    L += I(f's_load_dword {s(S_EPOCH)}, {s(P_WS,2)}, {WS_EPOCH}')
    L += ts('prologue')
    if role == 'A': L += g.c_dload()
    L += g.g1_setup(20)
    L += g.g1_dma(0)
    L += g.p_kv_load()
    if role == 'B': L += g.p_w2_load(240)
    L += g.p_stat_load(214)
    L += ts('P loads')
    L += merge_time(g.srds(rest) + g.g1_setup2(20) + g.g1_init() + g.g1_ones() + g.make_tag(), g.g1_dma(1) + g.g1_dma(2), 0.0, 1.0)
    L += ts('P done')
    pk1, pk2 = g.p_kv_compute()
    st1, st2 = g.p_stat_compute(214, split=True)
    bg = {c: [] for c in range(10)}
    bgv = {c: [] for c in range(10)}
    for c in range(0, 7): bgv[c] += g.g1_dma(c + 3)
    bg[0] += st1 + [waitvm('kvdma')]
    stores = st2
    if role == 'B':
        w1_, w2_ = g.p_w2_store(240)
        bg[0] = w1_ + bg[0]
        stores = stores + w2_
    n1 = len(pk1)
    bg[1] += g.p_kv_fetch() + pk1[:n1 // 2]
    bg[2] += pk1[n1 // 2:]
    bg[3] += pk2 + stores
    bg[5] += I(f"""
        s_mul_i32 {s(S_T0)}, {s(S_FS)}, 192
        v_and_b32 v121, 31, v1
        v_lshl_add_u32 v121, v121, 1, {s(S_T0)}
        global_load_ushort v118, v121, {s(P_B1,2)}
        global_load_ushort v119, v121, {s(P_B1,2)} offset:64
        global_load_ushort v120, v121, {s(P_B1,2)} offset:128
        """)
    bg[4] += [waitvm('pstore')]
    bg[5] = g.set_flag(WS_FLAG_P, f's_mov_b32 {s(S_T0)}, {s(S_ID)}', 124, 125) + bg[5]
    comb = I(f"""
        s_mul_i32 {s(S_T0)}, {s(S_CS)}, 12
        s_mul_i32 {s(S_T1)}, {s(S_WAVE)}, 3
        s_add_u32 {s(S_T0)}, {s(S_T0)}, {s(S_T1)}
        s_add_u32 {s(S_T0)}, {s(S_T0)}, {NA}
        v_min_u32 v126, 2, v1
        v_add_u32 v126, {s(S_T0)}, v126
        s_lshl_b32 {s(S_T0)}, {s(S_T)}, 7
        s_lshl_b32 {s(S_T1)}, {s(S_WAVE)}, 5
        s_add_u32 {s(S_T0)}, {s(S_T0)}, {s(S_T1)}
        s_and_b32 {s(S_T1)}, {s(S_T0)}, 0xf8
        s_lshr_b32 {s(S_T0)}, {s(S_T0)}, 8
        s_add_u32 {s(S_T0)}, {s(S_T0)}, {s(S_T1)}
        v_and_b32 v127, 3, v1
        v_lshlrev_b32 v127, 3, v127
        v_add_u32 v127, {s(S_T0)}, v127
        v_lshrrev_b32 v125, 2, v1
        v_cmp_eq_u32 vcc, 1, v125
        v_cndmask_b32 v126, v126, v127, vcc
        """)
    if role == 'A':
        comb += I(f"""
        s_mul_i32 {s(S_T0)}, {s(S_ID)}, 3277
        s_lshr_b32 {s(S_T0)}, {s(S_T0)}, 16
        s_lshl_b32 {s(S_T0)}, {s(S_T0)}, 3
        v_and_b32 v127, 3, v1
        v_lshlrev_b32 v127, 6, v127
        v_bfe_u32 v125, v1, 2, 3
        v_add_u32 v127, v127, v125
        v_add_u32 v127, {s(S_T0)}, v127
        v_cmp_lt_u32 vcc, 31, v1
        v_cndmask_b32 v126, v126, v127, vcc
        """)
    comb += I(f"""
        v_lshlrev_b32 v126, 6, v126
        v_add_u32 v126, {WS_FLAG_P}, v126
        buffer_load_dword v127, v126, {s(SRD_WS,4)}, 0 offen sc1
        """)
    w2l = [g.w2_load(n, 139) for n in range(60)]
    k = 0
    stat_ld = I(f"""
        s_lshl_b32 {s(S_T0)}, {s(S_T)}, 7
        s_lshl_b32 {s(S_T1)}, {s(S_WAVE)}, 5
        s_add_u32 {s(S_T0)}, {s(S_T0)}, {s(S_T1)}
        v_and_b32 v126, 31, v1
        v_add_u32 v126, {s(S_T0)}, v126
        v_lshlrev_b32 v126, 3, v126
        v_add_u32 v126, {WS_STATS}, v126
        buffer_load_dwordx2 v[116:117], v126, {s(SRD_WS,4)}, 0 offen sc1
        """)
    if role == 'A':
        bg[5] = g.c_hload() + bg[5]
        pa = g.c_prep_addr()
        bg[5] += pa
        bg[7] = g.c_prep_regs() + bg[7]
    bg[7] = comb + bg[7]
    bg[8] += g.poll(127, 126, 'p') + g.w2_setup(139) + stat_ld
    if role == 'A':
        bg[8] += g.c_xload()
        bg[6] += g.g2_setup() if False else []
        bg[7] += g.g2_setup()
        cw = g.c_write_copies()
        bg[9] += cw
        per = {9: 5}
    else:
        per = {9: 7}
    for c in sorted(per):
        for _ in range(per[c]): bgv[c] += w2l[k]; k += 1
    if o.get('x_nobg'):
        for c in range(10): bg[c] = []
    if o.get('x_nopk'):
        for c in (2, 3, 4): bg[c] = [i for i in bg[c] if i.kind in ('waitvm',) or i.tag == 'flag']
    if o.get('x_stop'):
        L += g.g1_main(bg, bgv) + ts('G1 main done') + [waitvmall()] + ts('end')
        L += I(f"""
        s_lshl_b32 {s(S_T0)}, {s(S_ID)}, 10
        s_lshl_b32 {s(S_T1)}, {s(S_WAVE)}, 8
        s_add_u32 {s(S_T0)}, {s(S_T0)}, {s(S_T1)}
        s_add_u32 {s(S_T0)}, {s(S_T0)}, {WS_TS}
        v_lshlrev_b32 v2, 2, v1
        buffer_store_dword v19, v2, {s(SRD_WS,4)}, {s(S_T0)} offen
        s_endpgm
        """)
        TSNAMES[role] = g.tsnames
        st = Stream(); st.ins = L
        return render(finalize(st)) + ''.join(g.tail)
    L += g.g1_main(bg, bgv)
    L += ts('G1 main done')
    gflag = g.set_flag(WS_FLAG_G, f's_lshl_b32 {s(S_T0)}, {s(S_T)}, 4\ns_add_u32 {s(S_T0)}, {s(S_T0)}, {s(S_FS)}', 16, 17)
    hflag_idx = f's_lshr_b32 {s(S_T0)}, {s(S_T64)}, 1\ns_lshl_b32 {s(S_T0)}, {s(S_T0)}, 4\ns_lshl_b32 {s(S_T1)}, {s(S_WAVE)}, 2\ns_add_u32 {s(S_T0)}, {s(S_T0)}, {s(S_T1)}'
    if role == 'A':
        e_bg = []
        for _ in range(11): e_bg += w2l[k]; k += 1
        L += g.g1_epilogue(e_bg, g.c_xwrite())
        L += ts('G1 epilogue')
        cb = {q: [] for q in range(8)}
        cb[2] += [waitvm('hstore')] + I('s_barrier') + gflag
        rem = 60 - k
        qi = 0
        for j in range(rem):
            cb[j * 5 // rem] += w2l[k]; k += 1
        cb[4] = g.flag_load(WS_FLAG_G, hflag_idx, 'v_and_b32 v13, 3, v1', 13, 14) + cb[4]
        cb[5] += g.poll(14, 13, 'g1')
        NPRE = 20
        hp = [g.g2_hload(n) for n in range(NPRE)]
        cb[5] += hp[:6]; cb[6] += hp[6:13]; cb[7] += hp[13:]
        L += g.c_main(cb)
        L += ts('conv main')
        L += g.c_post()
        cflag = [waitvm('ystore')] + I('s_barrier') + g.set_flag(WS_FLAG_C, f's_mov_b32 {s(S_T0)}, {s(S_ID)}', 16, 17)
        first_unl = NPRE
    else:
        e_bg = []
        for _ in range(6): e_bg += w2l[k]; k += 1
        L += g.g1_epilogue(e_bg)
        L += ts('G1 epilogue')
        L += g.g2_setup()
        L += [waitvm('hstore')] + I('s_barrier') + gflag
        while k < 60: L += w2l[k]; k += 1
        L += g.flag_load(WS_FLAG_G, hflag_idx, 'v_and_b32 v13, 3, v1', 13, 14)
        L += g.poll(14, 13, 'g1')
        L += ts('G1 flags')
        L += [g.g2_hload(n) for n in range(38)]
        cflag = I('s_barrier')
        first_unl = 38
    L += ts('G2 start')
    mid = {}
    fl = g.f_loads()
    mid[3] = fl[:11]
    for j in range(4): mid[5 + 2*j] = [fl[11 + j]]
    for j in range(5): mid[13 + 2*j] = [fl[15 + j]]
    mid[23] = fl[20:]
    mid[10] = cflag
    mid[16] = I(f"""
        s_cmp_eq_u32 {s(S_ID)}, 0
        s_cselect_b32 {s(S_T4)}, {s(S_TAG)}, 0
        s_cselect_b32 {s(S_T5)}, 0, {OOB}
        s_lshl_b32 {s(S_T0)}, {s(S_WAVE)}, 6
        v_add_u32 v15, {s(S_T0)}, v1
        v_lshlrev_b32 v15, 6, v15
        v_add_u32 v15, {WS_FLAG_P}, v15
        v_or_b32 v15, {s(S_T5)}, v15
        buffer_load_dword v18, v15, {s(SRD_WS,4)}, 0 offen sc1
        """)
    mid[24] = g.poll(18, 15, 'tk', exp=S_T4)
    epoch_store = I(f"""
        v_mov_b32 v18, {OOB}
        v_mov_b32 v15, {s(S_T5)}
        v_cmp_eq_u32 vcc, 0, v0
        v_cndmask_b32 v15, v18, v15, vcc
        v_mov_b32 v18, {s(S_TAG)}
        buffer_store_dword v18, v15, {s(SRD_WS,4)}, 0 offen sc1
        """)
    mid[22] = g.flag_load(WS_FLAG_C, f's_mul_i32 {s(S_T0)}, {s(S_CS)}, 20', 'v_min_u32 v13, 19, v1', 13, 14)
    yl = g.f_yloads()
    mid[29] = g.poll(14, 13, 'y') + yl[:9]
    for j, n in enumerate(range(30, 35)): mid[n] = yl[9 + 7*j: 9 + 7*(j+1)]
    mid[35] = yl[9 + 35:]
    L += g.g2_main(first_unl, mid, [])
    L += epoch_store
    L += ts('F done')
    if o.get('ts'):
        L += [waitvmall()] + ts('end')
        L += I('s_memrealtime s[6:7]\ns_waitcnt lgkmcnt(0)\nv_writelane_b32 v19, s6, 63')
        L += I(f"""
        s_lshl_b32 {s(S_T0)}, {s(S_ID)}, 10
        s_lshl_b32 {s(S_T1)}, {s(S_WAVE)}, 8
        s_add_u32 {s(S_T0)}, {s(S_T0)}, {s(S_T1)}
        s_add_u32 {s(S_T0)}, {s(S_T0)}, {WS_TS}
        v_lshlrev_b32 v2, 2, v1
        buffer_store_dword v19, v2, {s(SRD_WS,4)}, {s(S_T0)} offen
        """)
        TSNAMES[role] = g.tsnames
    L += I('s_endpgm')
    st = Stream(); st.ins = L
    return render(finalize(st)) + ''.join(g.tail) + f'Lend_{role}:\n    s_endpgm\n'

HEADER = """; Kernarg layout (112 bytes, ptrs only): q k v shift_k ssm_k ssm_D B_x w1 b1 w2 b2 out debug ws
; @launch grid=(256,1,1) block=(256,1,1) lds=163840
.amdgcn_target "amdgcn-amd-amdhsa--gfx950"
.text
.globl {n}_kernel
.p2align 8
.type {n}_kernel,@function
{n}_kernel:
"""
FOOTER = """
.section .rodata,"a"
.p2align 6
.amdhsa_kernel {n}_kernel
  .amdhsa_next_free_vgpr 512
  .amdhsa_next_free_sgpr 102
  .amdhsa_accum_offset 256
  .amdhsa_group_segment_fixed_size 0
  .amdhsa_kernarg_size 112
  .amdhsa_user_sgpr_count 2
  .amdhsa_user_sgpr_kernarg_segment_ptr 1
  .amdhsa_system_sgpr_workgroup_id_x 1
.end_amdhsa_kernel
"""
def build(o):
    global NT
    NT = ' nt' if o.get('nt') else ''
    txt = HEADER.format(n=NAME)
    txt += f"""    s_cmp_ge_u32 s2, 256
    s_cbranch_scc1 L_exit
    s_cmp_ge_u32 s2, {NA}
    s_cbranch_scc1 L_roleB
"""
    txt += build_role('A', o)
    txt += "L_exit:\n    s_endpgm\n.p2align 6\nL_roleB:\n"
    txt += build_role('B', o)
    txt += FOOTER.format(n=NAME)
    return txt

if __name__ == '__main__':
    o = {k: True for k in sys.argv[2:]}
    out = sys.argv[1] if len(sys.argv) > 1 else 'k.s'
    open(out, 'w').write(build(o))
    if o.get('ts'): json.dump(TSNAMES, open(out + '.ts.json', 'w'))
    print("wrote", out)
```

```python
import sys, struct, json
from asmlib import *

NAME = "recurrent_scan__ssm_conv_h3__dense_activation_squared_relu__prompt"
S, D, F = 2048, 640, 1536
def f2h(x): return '0x%08x' % struct.unpack('<I', struct.pack('<f', x))[0]

WS_EPOCH = 0
WS_FLAG_P = 0x1000
WS_FLAG_G = 0x5000
WS_FLAG_C = 0x9000
WS_FLAG_W = 0xC000
WS_STATS = 0x10000
WS_KVT = 0x100000
WS_YT = 0x400000
WS_H = 0x800000
WS_W2T = 0x1000000
WS_TS = 0x1300000
WS_BYTES = 0x1400000
NA = 160

def v(a, n=1): return 'v%d' % a if n == 1 else 'v[%d:%d]' % (a, a + n - 1)
def a_(a, n=1): return 'a%d' % a if n == 1 else 'a[%d:%d]' % (a, a + n - 1)
def s(a, n=1): return 's%d' % a if n == 1 else 's[%d:%d]' % (a, a + n - 1)

S_ID, S_WAVE, S_TAG = 2, 4, 5
SRD_Q, SRD_K, SRD_V, SRD_W1, SRD_W2, SRD_H, SRD_OUT, SRD_WS = 8, 12, 16, 20, 24, 28, 32, 36
P_Q, P_K, P_V, P_SHK, P_SSMK, P_SSMD, P_BX, P_W1, P_B1, P_W2, P_B2, P_OUT, P_DBG, P_WS = [40 + 2 * i for i in range(14)]
S_T, S_FS, S_T64, S_CS = 68, 69, 70, 71
S_PK, S_DIS = 72, 77
S_XOFF, S_WOFF, S_XM0, S_WM0 = 73, 74, 75, 76
S_W2OFF = 78
S_SPIN = 79
S_T0, S_T1, S_T2, S_T3, S_T4, S_T5 = 80, 81, 82, 83, 84, 85
S_ONES, S_EPOCH = 86, 87
S_MASK = 88
S_DVAL = 90
S_CB = 91
S_HOFF = 92
SRD_DBG = 96
OOB = 0x80000000

def I(text, tag=None): return [Ins(l.strip(), tag=tag) for l in text.strip('\n').split('\n') if l.split(';')[0].strip()]
def waitvm(tag):
    w = Ins('; waitvm'); w.kind = 'waitvm'; w.tag = tag; return w
def waitlds():
    w = Ins('; waitlds'); w.kind = 'waitlds'; return w
def waitvmall():
    w = Ins('; waitvmall'); w.kind = 'waitvmall'; return w

def weight(i):
    if i.kind in ('vmem', 'vmem_st'):
        return 12 if ('x4' in i.op) else 4
    if i.kind in ('waitvm', 'waitlds', 'waitvmall', 'label'): return 0
    return 1

def merge(main, bg, lo=0.0, hi=1.0):
    if not bg: return list(main)
    pos = [k for k, i in enumerate(main) if i.is_mfma()]
    if not pos: pos = list(range(len(main)))
    n = len(pos)
    a, b = int(lo * n), max(int(hi * n), int(lo * n) + 1)
    slots = pos[a:b]
    tot = sum(weight(i) for i in bg) or 1
    after = {}
    cum = 0
    for i in bg:
        k = min(int(cum * len(slots) / tot), len(slots) - 1)
        after.setdefault(slots[k], []).append(i)
        cum += weight(i)
    out = []
    for k, i in enumerate(main):
        out.append(i)
        out += after.get(k, [])
    return out

def est_times(stream):
    t = 0; pipe = 0; out = []
    for i in stream:
        if i.is_mfma():
            t = max(t, pipe); out.append(t)
            pipe = t + (32 if i.kind == 'mfma32' else 16); t += 8
        elif i.kind in ('waitvm', 'waitlds', 'waitvmall', 'label'):
            out.append(t)
        else:
            out.append(t); t += 8 if i.kind == 'trans' else 4
    return out, max(t, pipe)

def merge_time(stream, vm, lo=0.0, hi=1.0):
    if not vm: return list(stream)
    groups = []; cur = []
    for i in vm:
        cur.append(i)
        if i.kind in ('vmem', 'vmem_st'):
            groups.append(cur); cur = []
    if cur:
        if groups: groups[-1] += cur
        else: groups.append(cur)
    times, total = est_times(stream)
    n = len(groups)
    tgt = [total * (lo + (hi - lo) * (k + 0.0) / n) for k in range(n)]
    out = []; k = 0
    for i, t in zip(stream, times):
        while k < n and t >= tgt[k]:
            out += groups[k]; k += 1
        out.append(i)
    while k < n:
        out += groups[k]; k += 1
    return out

NT = ''
OUTMOD = ''
class Gen:
    def __init__(self, role, o):
        self.rot = (role == 'B' and bool(o.get('rot')))
        self.role = role; self.o = o; self.lab = 0; self.tail = []; self.tsnames = []
    def label(self, base):
        self.lab += 1
        return 'L%s_%s%d' % (self.role, base, self.lab)
    def ts(self, name):
        if not self.o.get('ts') or len(self.tsnames) >= 62: return []
        if self.o.get('light') and name not in ('entry', 'prologue', 'P loads', 'pk1 done', 'P done', 'g1 c5', 'G1 main done', 'G1 epilogue', 'conv main', 'G1 flags', 'G2 start', 'g2 n24', 'G2 main done', 'end'): return []
        k = len(self.tsnames); self.tsnames.append(name)
        return I(f's_memtime s[6:7]\ns_waitcnt lgkmcnt(0)\nv_writelane_b32 v19, s6, {k}')

    def flag_load(self, base, sidx_code, lane_code, vaddr, vflag):
        return I(sidx_code) + I(lane_code) + I(f"""
        v_add_u32 {v(vaddr)}, {s(S_T0)}, {v(vaddr)}
        v_lshlrev_b32 {v(vaddr)}, 6, {v(vaddr)}
        v_add_u32 {v(vaddr)}, {base}, {v(vaddr)}
        buffer_load_dword {v(vflag)}, {v(vaddr)}, {s(SRD_WS,4)}, 0 offen sc1
        """)
    def poll(self, vflag, vaddr, nm, exp=None, srd=None):
        exp = S_TAG if exp is None else exp
        srd = SRD_WS if srd is None else srd
        L = self.label('slow' + nm); Lb = self.label('back' + nm)
        br = Ins('s_cbranch_vccnz %s' % L); br.text += '\n%s:' % Lb
        self.tail.append(f"""{L}:
    s_mov_b32 {s(S_SPIN)}, 0
{L}_l:
    s_sleep 1
    buffer_load_dword {v(vflag)}, {v(vaddr)}, {s(srd,4)}, 0 offen sc1
    s_add_u32 {s(S_SPIN)}, {s(S_SPIN)}, 1
    s_cmp_gt_u32 {s(S_SPIN)}, 0x8000
    s_cbranch_scc1 {L}_x
    s_waitcnt vmcnt(0)
    v_cmp_ne_u32 vcc, {s(exp)}, {v(vflag)}
    s_nop 4
    s_cbranch_vccnz {L}_l
{L}_x:
    s_waitcnt vmcnt(0)
    s_nop 7
    s_branch {Lb}
""")
        return I('v_cmp_ne_u32 vcc, %s, %s' % (s(exp), v(vflag))) + [br]
    def set_flag(self, base, idx_code, t1, t2):
        return I(idx_code) + I(f"""
        s_lshl_b32 {s(S_T0)}, {s(S_T0)}, 6
        s_add_u32 {s(S_T0)}, {s(S_T0)}, {base}
        v_mov_b32 {v(t1)}, {s(S_T0)}
        v_mov_b32 {v(t2)}, {OOB}
        v_cmp_eq_u32 vcc, 0, v0
        v_cndmask_b32 {v(t1)}, {v(t2)}, {v(t1)}, vcc
        v_mov_b32 {v(t2)}, {s(S_TAG)}
        buffer_store_dword {v(t2)}, {v(t1)}, {s(SRD_WS,4)}, 0 offen sc1
        """, tag='flag')

    def prologue(self):
        L = I(f"""
        s_load_dwordx16 s[40:55], s[0:1], 0
        s_load_dwordx8 s[56:63], s[0:1], 64
        s_load_dwordx4 s[64:67], s[0:1], 96
        v_and_b32 v1, 63, v0
        v_lshrrev_b32 v2, 6, v0
        s_and_b32 {s(S_T0)}, {s(S_ID)}, 7
        s_lshr_b32 {s(S_T1)}, {s(S_ID)}, 3
        v_readfirstlane_b32 {s(S_WAVE)}, v2
        s_lshr_b32 {s(S_T2)}, {s(S_T0)}, 1
        s_lshl_b32 {s(S_T2)}, {s(S_T2)}, 2
        s_lshr_b32 {s(S_T3)}, {s(S_T1)}, 3
        s_add_u32 {s(S_T)}, {s(S_T2)}, {s(S_T3)}
        s_and_b32 {s(S_T2)}, {s(S_T0)}, 1
        s_lshl_b32 {s(S_T2)}, {s(S_T2)}, 3
        s_and_b32 {s(S_CS)}, {s(S_T1)}, 7
        s_add_u32 {s(S_FS)}, {s(S_T2)}, {s(S_CS)}
        s_lshl_b32 {s(S_T64)}, {s(S_T0)}, 2
        s_add_u32 {s(S_T64)}, {s(S_T64)}, {s(S_T3)}
        s_mov_b32 {s(S_ONES)}, 0x3f803f80
        """)
        return L
    def srds(self, lst):
        L = []
        for srd, p, n in lst:
            L += I(f"""
            s_mov_b32 {s(srd)}, {s(p)}
            s_mov_b32 {s(srd+1)}, {s(p+1)}
            s_mov_b32 {s(srd+2)}, {n}
            s_mov_b32 {s(srd+3)}, 0x20000
            """)
        return L
    def make_tag(self):
        return I(f"""
        s_mul_i32 {s(S_TAG)}, {s(S_EPOCH)}, 0x9e3779b1
        s_add_u32 {s(S_TAG)}, {s(S_TAG)}, 0x7f4a7c15
        """)

    def p_stat_load(self, R):
        return I(f"""
        s_and_b32 {s(S_T0)}, {s(S_ID)}, 7
        s_lshl_b32 {s(S_T0)}, {s(S_T0)}, 8
        s_and_b32 {s(S_T1)}, {s(S_ID)}, -8
        s_add_u32 {s(S_T0)}, {s(S_T0)}, {s(S_T1)}
        s_lshl_b32 {s(S_T1)}, {s(S_WAVE)}, 1
        s_add_u32 {s(S_T0)}, {s(S_T0)}, {s(S_T1)}
        v_lshrrev_b32 {v(R+12)}, 5, v1
        v_add_u32 {v(R+12)}, {s(S_T0)}, {v(R+12)}
        v_and_b32 {v(R+13)}, 31, v1
        v_mul_u32_u24 {v(R+10)}, 1280, {v(R+12)}
        v_lshl_add_u32 {v(R+11)}, {v(R+13)}, 3, {v(R+10)}
        v_lshl_add_u32 {v(R+10)}, {v(R+13)}, 4, {v(R+10)}
        buffer_load_dwordx4 {v(R,4)}, {v(R+10)}, {s(SRD_Q,4)}, 0 offen
        buffer_load_dwordx4 {v(R+4,4)}, {v(R+10)}, {s(SRD_Q,4)}, 0 offen offset:512
        buffer_load_dwordx2 {v(R+8,2)}, {v(R+11)}, {s(SRD_Q,4)}, 0 offen offset:1024
        """)
    def p_stat_compute(self, R, split=False):
        A, B, T, U = R + 14, R + 15, R + 16, R + 17
        assert A % 2 == 0
        L = I(f'v_mov_b32 {v(A)}, 0\nv_mov_b32 {v(B)}, 0')
        for i in range(10):
            L += I(f'v_dot2c_f32_bf16 {v(A)}, {s(S_ONES)}, {v(R+i)}\nv_dot2c_f32_bf16 {v(B)}, {v(R+i)}, {v(R+i)}')
        for rot in (8, 4, 2, 1):
            L += I(f'v_add_f32_dpp {v(A)}, {v(A)}, {v(A)} row_ror:{rot} row_mask:0xf bank_mask:0xf')
            L += I(f'v_add_f32_dpp {v(B)}, {v(B)}, {v(B)} row_ror:{rot} row_mask:0xf bank_mask:0xf')
        L += I(f"""
        v_mov_b32 {v(T)}, {v(A)}
        v_mov_b32 {v(U)}, {v(B)}
        v_permlane16_swap_b32 {v(A)}, {v(T)}
        v_permlane16_swap_b32 {v(B)}, {v(U)}
        v_add_f32 {v(A)}, {v(A)}, {v(T)}
        v_add_f32 {v(B)}, {v(B)}, {v(U)}
        v_mul_f32 {v(A)}, {f2h(1.0/640)}, {v(A)}
        v_mul_f32 {v(B)}, {f2h(1.0/640)}, {v(B)}
        v_fma_f32 {v(B)}, -{v(A)}, {v(A)}, {v(B)}
        v_max_f32 {v(B)}, 0, {v(B)}
        v_cvt_pk_bf16_f32 {v(A)}, {v(A)}, {v(B)}
        v_and_b32 {v(B)}, 0xffff0000, {v(A)}
        v_lshlrev_b32 {v(A)}, 16, {v(A)}
        v_add_f32 {v(B)}, {f2h(1e-5)}, {v(B)}
        v_cvt_pk_bf16_f32 {v(B)}, {v(B)}, {v(B)}
        v_lshlrev_b32 {v(B)}, 16, {v(B)}
        v_sqrt_f32 {v(B)}, {v(B)}
        v_cvt_pk_bf16_f32 {v(B)}, {v(B)}, {v(B)}
        v_lshlrev_b32 {v(B)}, 16, {v(B)}
        v_lshlrev_b32 {v(T)}, 3, {v(R+12)}
        v_add_u32 {v(T)}, {WS_STATS}, {v(T)}
        v_mov_b32 {v(U)}, {OOB}
        v_cmp_eq_u32 vcc, 0, {v(R+13)}
        v_cndmask_b32 {v(T)}, {v(U)}, {v(T)}, vcc
        """)
        if split:
            L += I(f'v_mov_b32 v116, {v(A)}\nv_mov_b32 v117, {v(A+1)}\nv_mov_b32 v122, {v(T)}')
            return L, I(f'buffer_store_dwordx2 v[116:117], v122, {s(SRD_WS,4)}, 0 offen sc1', tag='pstore')
        L += I(f'buffer_store_dwordx2 {v(A,2)}, {v(T)}, {s(SRD_WS,4)}, 0 offen sc1', tag='wstore')
        return L

    PK_K, PK_V, PK_W, PK_A, PK_T, PK_OUT = 144, 172, 188, 204, 214, 128
    PT = 114688
    PKL_K, PKL_V, PKL_W = 114688, 126976, 139264
    def p_kv_load(self):
        A = self.PK_A
        L = I(f"""
        s_lshl_b32 {s(S_T0)}, {s(S_T64)}, 6
        s_sub_u32 {s(S_T1)}, {s(S_T0)}, 3
        s_mul_i32 {s(S_T1)}, {s(S_T1)}, 1280
        s_mul_i32 {s(S_T0)}, {s(S_T0)}, 1280
        s_mul_i32 {s(S_T2)}, {s(S_CS)}, 160
        s_mov_b32 {s(S_T3)}, 0x1999999a
        s_lshl_b32 {s(S_T4)}, {s(S_WAVE)}, 6
        s_lshl_b32 {s(S_T5)}, {s(S_WAVE)}, 10
        """)
        for j in range(3):
            L += I(f"""
            v_add_u32 {v(A)}, {s(S_T4)}, v1
            v_add_u32 {v(A)}, {256*j}, {v(A)}
            v_mul_hi_u32 {v(A+1)}, {v(A)}, {s(S_T3)}
            v_mul_u32_u24 {v(A+2)}, 10, {v(A+1)}
            v_sub_u32 {v(A+2)}, {v(A)}, {v(A+2)}
            v_mul_u32_u24 {v(A+1)}, 1280, {v(A+1)}
            v_lshl_add_u32 {v(A+1)}, {v(A+2)}, 4, {v(A+1)}
            v_add_u32 {v(A+1)}, {s(S_T2)}, {v(A+1)}
            v_add_u32 {v(A+3)}, {s(S_T1)}, {v(A+1)}
            v_add_u32 {v(A+4)}, {s(S_T0)}, {v(A+1)}
            v_mov_b32 {v(A+5)}, {OOB}
            v_cmp_gt_u32 vcc, 670, {v(A)}
            v_cndmask_b32 {v(A+3)}, {v(A+5)}, {v(A+3)}, vcc
            v_cmp_gt_u32 vcc, 640, {v(A)}
            v_cndmask_b32 {v(A+4)}, {v(A+5)}, {v(A+4)}, vcc
            s_add_u32 m0, {s(S_T5)}, {self.PKL_K + 4096*j}
            """)
            L += I(f'buffer_load_dwordx4 {v(A+3)}, {s(SRD_K,4)}, 0 offen{NT} lds', tag='kvdma')
            L += I(f's_add_u32 m0, {s(S_T5)}, {self.PKL_V + 4096*j}')
            L += I(f'buffer_load_dwordx4 {v(A+4)}, {s(SRD_V,4)}, 0 offen{NT} lds', tag='kvdma')
        L += I(f"""
        s_mul_i32 {s(S_T2)}, {s(S_CS)}, 640
        v_lshl_add_u32 {v(A)}, v1, 4, {s(S_T2)}
        v_mov_b32 {v(A+5)}, {OOB}
        v_cmp_gt_u32 vcc, 40, v1
        v_cndmask_b32 {v(A)}, {v(A+5)}, {v(A)}, vcc
        s_mov_b32 m0, {self.PKL_W}
        """)
        L += I(f'buffer_load_dwordx4 {v(A)}, {s(SRD_H,4)}, 0 offen lds', tag='kvdma')
        return L
    def p_kv_fetch(self):
        K, V_, W, A = self.PK_K, self.PK_V, self.PK_W, self.PK_A
        L = I(f"""
        v_mul_u32_u24 {v(A+9)}, 6554, v0
        v_lshrrev_b32 {v(A+9)}, 16, {v(A+9)}
        v_mul_u32_u24 {v(A+8)}, 10, {v(A+9)}
        v_sub_u32 {v(A+8)}, v0, {v(A+8)}
        v_min_u32 {v(A)}, 15, {v(A+9)}
        v_mul_u32_u24 {v(A)}, 640, {v(A)}
        v_lshl_add_u32 {v(A)}, {v(A+8)}, 4, {v(A)}
        v_add_u32 {v(A+1)}, {self.PKL_V}, {v(A)}
        v_add_u32 {v(A)}, {self.PKL_K}, {v(A)}
        v_lshlrev_b32 {v(A+2)}, 6, {v(A+8)}
        v_add_u32 {v(A+2)}, {self.PKL_W}, {v(A+2)}
        """)
        for i in range(7): L += I(f'ds_read_b128 {v(K+4*i,4)}, {v(A)} offset:{160*i}')
        for i in range(4): L += I(f'ds_read_b128 {v(W+4*i,4)}, {v(A+2)} offset:{16*i}')
        for i in range(4): L += I(f'ds_read_b128 {v(V_+4*i,4)}, {v(A+1)} offset:{160*i}')
        return L
    def p_kv_compute(self, packed=True):
        K, V_, W, A, T = self.PK_K, self.PK_V, self.PK_W, self.PK_A, self.PK_T
        KU, VU, WU, AC, OUT = T, T + 14, T + 22, T + 30, self.PK_OUT
        L = []
        for dd in range(4):
            for r in range(7):
                L += I(f'v_lshlrev_b32 {v(KU+2*r)}, 16, {v(K+4*r+dd)}\nv_and_b32 {v(KU+2*r+1)}, 0xffff0000, {v(K+4*r+dd)}')
            for j in range(4):
                for h in range(2):
                    src = W + 4 * dd + 2 * h + (j >> 1)
                    L += I(f'v_and_b32 {v(WU+2*j+h)}, 0xffff0000, {v(src)}' if j & 1 else f'v_lshlrev_b32 {v(WU+2*j+h)}, 16, {v(src)}')
            for r in range(4):
                L += I(f'v_lshlrev_b32 {v(VU+2*r)}, 16, {v(V_+4*r+dd)}\nv_and_b32 {v(VU+2*r+1)}, 0xffff0000, {v(V_+4*r+dd)}')
            for t in range(4):
                for h in range(2): L += I(f'v_mul_f32 {v(AC+2*t+h)}, {v(KU+2*t+h)}, {v(WU+6+h)}')
            for j in (2, 1, 0):
                for t in range(4):
                    for h in range(2): L += I(f'v_fmac_f32 {v(AC+2*t+h)}, {v(KU+2*(t+3-j)+h)}, {v(WU+2*j+h)}')
            for t in range(4):
                for h in range(2): L += I(f'v_mul_f32 {v(AC+2*t+h)}, {v(AC+2*t+h)}, {v(VU+2*t+h)}')
            for h in range(2):
                ch = 2 * dd + h
                L += I(f'v_cvt_pk_bf16_f32 {v(OUT+2*ch)}, {v(AC+h)}, {v(AC+2+h)}\nv_cvt_pk_bf16_f32 {v(OUT+2*ch+1)}, {v(AC+4+h)}, {v(AC+6+h)}')
        L += I(f"""
        v_and_b32 {v(T)}, 14, {v(A+8)}
        v_xor_b32 {v(T)}, {v(T)}, {v(A+9)}
        v_lshlrev_b32 {v(T)}, 3, {v(T)}
        v_lshl_add_u32 {v(T)}, {v(A+8)}, 10, {v(T)}
        v_mov_b32 {v(T+1)}, 12288
        v_cmp_gt_u32 vcc, 160, v0
        v_cndmask_b32 {v(T)}, {v(T+1)}, {v(T)}, vcc
        v_add_u32 {v(T)}, {self.PT}, {v(T)}
        """)
        for i in range(8): L += I(f'ds_write_b64 {v(T)}, {v(OUT+2*i,2)} offset:{128*i}')
        L1 = L
        L = I(f"""
        v_lshrrev_b32 {v(T)}, 3, v0
        v_and_b32 {v(T+1)}, 7, v0
        v_lshrrev_b32 {v(T+2)}, 6, v0
        v_lshlrev_b32 {v(T+4)}, 1, {v(T+1)}
        v_lshlrev_b32 {v(T+5)}, 7, {v(T)}
        v_add_u32 {v(T+5)}, {self.PT}, {v(T+5)}
        """)
        for i in range(3):
            L += I(f"""
            v_add_u32 {v(T+3)}, {4*i}, {v(T+2)}
            v_and_b32 {v(T+3)}, 14, {v(T+3)}
            v_xor_b32 {v(T+3)}, {v(T+3)}, {v(T+4)}
            v_lshl_add_u32 {v(T+3)}, {v(T+3)}, 3, {v(T+5)}
            ds_read_b128 {v(OUT+4*i,4)}, {v(T+3)} offset:{4096*i}
            """)
        L += I(f"""
        s_mul_i32 {s(S_T0)}, {s(S_CS)}, {80*4096}
        s_lshl_b32 {s(S_T1)}, {s(S_T64)}, 7
        s_add_u32 {s(S_T0)}, {s(S_T0)}, {s(S_T1)}
        s_add_u32 {s(S_T0)}, {s(S_T0)}, {WS_KVT}
        v_lshlrev_b32 {v(T+6)}, 12, {v(T)}
        v_lshl_add_u32 {v(T+6)}, {v(T+1)}, 4, {v(T+6)}
        v_add_u32 {v(T+7)}, {32*4096}, {v(T+6)}
        v_add_u32 {v(T+8)}, {64*4096}, {v(T+6)}
        v_mov_b32 {v(T+9)}, {OOB}
        v_cmp_gt_u32 vcc, 128, v0
        v_cndmask_b32 {v(T+8)}, {v(T+9)}, {v(T+8)}, vcc
        """)
        for i in range(3):
            L += I(f'buffer_store_dwordx4 {v(OUT+4*i,4)}, {v(T+6+i)}, {s(SRD_WS,4)}, {s(S_T0)} offen sc1', tag='pstore')
        return L1, L

    W2STG = 140288
    def p_w2_load(self, T):
        L = I(f"""
        s_mov_b32 {s(S_DIS)}, 0
        s_sub_u32 {s(S_T0)}, {s(S_ID)}, {NA}
        s_lshl_b32 {s(S_T0)}, {s(S_T0)}, 2
        s_add_u32 {s(S_T0)}, {s(S_T0)}, {s(S_WAVE)}
        s_mul_i32 {s(S_T1)}, {s(S_T0)}, 1366
        s_lshr_b32 {s(S_T1)}, {s(S_T1)}, 16
        s_mul_i32 {s(S_T2)}, {s(S_T1)}, 48
        s_sub_u32 {s(S_T2)}, {s(S_T0)}, {s(S_T2)}
        s_mul_i32 {s(S_T2)}, {s(S_T2)}, {32*1280}
        s_mul_i32 {s(S_T1)}, {s(S_T1)}, 160
        s_add_u32 {s(S_T2)}, {s(S_T2)}, {s(S_T1)}
        s_mul_i32 {s(S_W2OFF)}, {s(S_T0)}, 5120
        s_add_u32 {s(S_W2OFF)}, {s(S_W2OFF)}, {WS_W2T}
        s_mul_i32 {s(S_T3)}, {s(S_WAVE)}, 5120
        s_add_u32 {s(S_T3)}, {s(S_T3)}, {self.W2STG}
        s_mov_b32 {s(S_T1)}, 0x1999999a
        """)
        for n in range(5):
            comp = 1024 * n if n < 4 else 0
            L += I(f"""
            v_add_u32 {v(T)}, {64*n}, v1
            v_mul_hi_u32 {v(T+1)}, {v(T)}, {s(S_T1)}
            v_mul_u32_u24 {v(T+2)}, 10, {v(T+1)}
            v_sub_u32 {v(T+2)}, {v(T)}, {v(T+2)}
            v_mul_u32_u24 {v(T+1)}, 1280, {v(T+1)}
            v_lshl_add_u32 {v(T+1)}, {v(T+2)}, 4, {v(T+1)}
            v_subrev_u32 {v(T+8+n)}, {comp}, {v(T+1)}
            v_or_b32 {v(T+8+n)}, {s(S_DIS)}, {v(T+8+n)}
            """)
        L += I(f's_mov_b32 m0, {s(S_T3)}')
        for n in range(4): L += I(f'buffer_load_dwordx4 {v(T+8+n)}, {s(SRD_W2,4)}, {s(S_T2)} offen offset:{1024*n}{NT} lds', tag='w2slab')
        L += I(f's_add_u32 m0, {s(S_T3)}, 4096')
        L += I(f'buffer_load_dwordx4 {v(T+12)}, {s(SRD_W2,4)}, {s(S_T2)} offen{NT} lds', tag='w2slab')
        L += I(f"""
        v_bfe_u32 {v(T)}, v1, 5, 1
        v_lshlrev_b32 {v(T)}, 4, {v(T)}
        v_bfe_u32 {v(T+1)}, v1, 4, 1
        v_lshl_add_u32 {v(T)}, {v(T+1)}, 2, {v(T)}
        v_bfe_u32 {v(T+1)}, v1, 2, 2
        v_add_u32 {v(T)}, {v(T)}, {v(T+1)}
        v_mul_u32_u24 {v(T)}, 160, {v(T)}
        v_and_b32 {v(T+1)}, 3, v1
        v_lshl_add_u32 {v(T)}, {v(T+1)}, 3, {v(T)}
        v_add_u32 {v(T+13)}, {s(S_T3)}, {v(T)}
        v_lshlrev_b32 {v(T+14)}, 4, v1
        v_or_b32 {v(T+14)}, {s(S_DIS)}, {v(T+14)}
        """)
        return L
    def p_w2_store(self, T):
        L = [waitvm('w2slab')]
        for ct in range(5):
            for al in range(2): L += I(f'ds_read_b64_tr_b16 {a_(4*ct+2*al,2)}, {v(T+13)} offset:{al*1280 + ct*32}')
        L += I(f'v_mov_b32 v123, {v(T+14)}')
        S_ = []
        for ct in range(5):
            if ct == 4:
                S_ += I(f's_add_u32 {s(S_W2OFF)}, {s(S_W2OFF)}, 4096')
                S_ += I(f'buffer_store_dwordx4 {a_(4*ct,4)}, v123, {s(SRD_WS,4)}, {s(S_W2OFF)} offen sc1', tag='pstore')
            else:
                S_ += I(f'buffer_store_dwordx4 {a_(4*ct,4)}, v123, {s(SRD_WS,4)}, {s(S_W2OFF)} offen offset:{1024*ct} sc1', tag='pstore')
        return L, S_

    XST, WST, CSA = 0, 65536, 160768
    NST = 4
    G_XD, G_WD, G_XA, G_XB, G_WA, G_WC = 2, 6, 9, 13, 17, 18
    G_ACC, G_XF, G_WF, G_CSF, G_CS = 20, 68, 76, 100, 112
    G_ONE = 156
    def g1_setup(self, T):
        XD, WD, XA, XB, WA, WC = self.G_XD, self.G_WD, self.G_XA, self.G_XB, self.G_WA, self.G_WC
        L = I(f"""
        v_lshrrev_b32 {v(T)}, 3, v1
        v_and_b32 {v(T+1)}, 7, v1
        v_lshrrev_b32 {v(T+2)}, 4, v1
        s_lshl_b32 {s(S_T0)}, {s(S_WAVE)}, 5
        v_add_u32 {v(T)}, {s(S_T0)}, {v(T)}
        v_mul_u32_u24 {v(T)}, 1280, {v(T)}
        v_xor_b32 {v(T+3)}, {v(T+1)}, {v(T+2)}
        v_add_u32 {v(T+4)}, 4, {v(T+2)}
        v_xor_b32 {v(T+4)}, {v(T+1)}, {v(T+4)}
        v_lshl_add_u32 {v(XD)}, {v(T+3)}, 4, {v(T)}
        v_lshl_add_u32 {v(T+4)}, {v(T+4)}, 4, {v(T)}
        v_add_u32 {v(XD+1)}, {10240-1024}, {v(T+4)}
        v_add_u32 {v(XD+2)}, {20480-2048}, {v(XD)}
        v_add_u32 {v(XD+3)}, {30720-3072}, {v(T+4)}
        s_mul_i32 {s(S_XOFF)}, {s(S_T)}, 163840
        s_lshl_b32 {s(S_XM0)}, {s(S_WAVE)}, 12
        s_mul_i32 {s(S_WOFF)}, {s(S_FS)}, 192
        s_mul_i32 {s(S_WM0)}, {s(S_WAVE)}, 3072
        s_add_u32 {s(S_WM0)}, {s(S_WM0)}, {self.WST}
        s_mul_i32 {s(S_T0)}, {s(S_WAVE)}, 192
        s_mov_b32 {s(S_T1)}, 0x15555556
        """)
        for i in range(3):
            L += I(f"""
            v_add_u32 {v(T)}, {s(S_T0)}, v1
            v_add_u32 {v(T)}, {64*i}, {v(T)}
            v_mul_hi_u32 {v(T+1)}, {v(T)}, {s(S_T1)}
            v_mul_u32_u24 {v(T+2)}, 12, {v(T+1)}
            v_sub_u32 {v(T+2)}, {v(T)}, {v(T+2)}
            v_mul_u32_u24 {v(T+1)}, 3072, {v(T+1)}
            v_lshl_add_u32 {v(T+1)}, {v(T+2)}, 4, {v(T+1)}
            v_subrev_u32 {v(WD+i)}, {1024*i}, {v(T+1)}
            """)
        return L
    def g1_setup2(self, T):
        XA, XB, WA, WC = self.G_XA, self.G_XB, self.G_WA, self.G_WC
        L = I(f"""
        v_and_b32 {v(T)}, 31, v1
        v_lshrrev_b32 {v(T+1)}, 5, v1
        v_bfe_u32 {v(T+2)}, v1, 1, 3
        v_lshlrev_b32 {v(T)}, 7, {v(T)}
        v_add_u32 {v(T)}, {s(S_XM0)}, {v(T)}
        """)
        for ks in range(4):
            L += I(f"""
            v_add_u32 {v(T+3)}, {2*ks}, {v(T+1)}
            v_xor_b32 {v(T+3)}, {v(T+3)}, {v(T+2)}
            v_lshl_add_u32 {v(XA+ks)}, {v(T+3)}, 4, {v(T)}
            """)
        L += I(f"""
        v_lshrrev_b32 {v(T)}, 5, v1
        v_lshlrev_b32 {v(T)}, 3, {v(T)}
        v_bfe_u32 {v(T+1)}, v1, 2, 2
        v_add_u32 {v(T)}, {v(T)}, {v(T+1)}
        v_mul_u32_u24 {v(T)}, 192, {v(T)}
        v_bfe_u32 {v(T+1)}, v1, 4, 1
        v_lshl_add_u32 {v(T)}, {v(T+1)}, 5, {v(T)}
        v_and_b32 {v(T+1)}, 3, v1
        v_lshl_add_u32 {v(T)}, {v(T+1)}, 3, {v(T)}
        v_add_u32 {v(WA)}, {self.WST}, {v(T)}
        s_mul_i32 {s(S_T0)}, {s(S_WAVE)}, 3072
        v_add_u32 {v(WC)}, {s(S_T0)}, {v(WA)}
        """)
        return L
    def g1_dma(self, c):
        XD, WD = self.G_XD, self.G_WD
        stg = c % self.NST
        L = [f's_add_u32 m0, {s(S_XM0)}, {self.XST + stg*16384}']
        for i in range(4): L.append(f'buffer_load_dwordx4 {v(XD+i)}, {s(SRD_Q,4)}, {s(S_XOFF)} offen offset:{1024*i} lds')
        L.append(f's_add_u32 {s(S_XOFF)}, {s(S_XOFF)}, 128')
        L.append(f's_add_u32 m0, {s(S_WM0)}, {stg*12288}')
        for i in range(3): L.append(f'buffer_load_dwordx4 {v(WD+i)}, {s(SRD_W1,4)}, {s(S_WOFF)} offen offset:{1024*i} lds')
        L.append(f's_add_u32 {s(S_WOFF)}, {s(S_WOFF)}, {64*3072}')
        return [Ins(t, tag='g1c%d' % c) for t in L]
    def g1_reads(self, n):
        c, ks = n >> 2, n & 3
        stg = c % self.NST; b = n & 1
        XF, WF = self.G_XF + 4 * b, self.G_WF + 12 * b
        L = [f'ds_read_b128 {v(XF,4)}, {v(self.G_XA+ks)} offset:{stg*16384}']
        for ft in range(3):
            for al in range(2):
                L.append(f'ds_read_b64_tr_b16 {v(WF+4*ft+2*al,2)}, {v(self.G_WA)} offset:{stg*12288 + (16*ks+4*al)*192 + ft*64}')
        return [Ins(t) for t in L]
    def g1_cs_reads(self, c):
        stg = c % self.NST
        return [Ins(f'ds_read_b64_tr_b16 {v(self.G_CSF+4*ft+2*al,2)}, {v(self.G_WC)} offset:{stg*12288 + (4*al)*192 + ft*64}') for ft in range(3) for al in range(2)]
    def g1_cs_mfma(self, first):
        return [Ins(f'v_mfma_f32_32x32x16_bf16 {a_(208+16*ft,16)}, {a_(196,4)}, {v(self.G_CSF+4*ft,4)}, ' + ('0' if first else a_(208+16*ft,16))) for ft in range(3)]
    def g1_init(self):
        L = []
        for i in range(48): L += I(f'v_mov_b32 {v(self.G_ACC+i)}, 0')
        return L
    def g1_ones(self):
        return I(f'v_mov_b32 v121, {s(S_ONES)}') + [Ins(f'v_accvgpr_write_b32 {a_(196+i)}, v121') for i in range(4)]
    def g1_main(self, bg, bgv):
        ACC = self.G_ACC
        out = [waitvm('g1c0'), waitlds()] + I('s_barrier') + self.g1_reads(0)
        for c in range(10):
            main = []
            csr = self.g1_cs_reads(c); csm = self.g1_cs_mfma(c == 0)
            for ks in range(4):
                n = 4 * c + ks
                b = n & 1
                M = [Ins(f'v_mfma_f32_32x32x16_bf16 {v(ACC+16*ft,16)}, {v(self.G_WF+12*b+4*ft,4)}, {v(self.G_XF+4*b,4)}, {v(ACC+16*ft,16)}') for ft in range(3)]
                R = self.g1_reads(n + 1) if n + 1 < 40 else [None] * 7
                R = [r for r in R]
                def RR(a, b_): return [r for r in R[a:b_] if r is not None]
                C2 = csr[2*ks:2*ks+2] if ks < 3 else []
                if ks == 0:
                    main += [M[0]] + RR(0, 3) + [M[1]] + RR(3, 5) + C2[:1] + [M[2]] + RR(5, 7) + C2[1:]
                elif ks < 3:
                    main += [M[0]] + RR(0, 3) + [M[1]] + RR(3, 5) + [M[2]] + RR(5, 7) + [csm[ks-1]] + C2
                else:
                    pre = ([waitvm('g1c%d' % (c + 1)), waitlds()] + I('s_barrier')) if n + 1 < 40 else []
                    main += [M[0]] + pre + RR(0, 3) + [csm[2]] + RR(3, 5) + [M[1]] + RR(5, 7) + [M[2]]
            B = list(bg.get(c, []))
            out += self.ts('g1 c%d' % c)
            m1 = merge(main, B, 0.0, 0.74)
            bar = [k for k, i in enumerate(m1) if i.op == 's_barrier']
            if bar:
                cut = bar[-1]
                while m1[cut - 1].kind in ('waitvm', 'waitlds'): cut -= 1
                out += merge_time(m1[:cut], bgv.get(c, []), 0.5 if c == 0 else 0.02, 0.98) + m1[cut:]
            else:
                out += merge_time(m1, bgv.get(c, []), 0.02, 0.98)
        return out
    def g1_epilogue(self, bg, ldsbg=None):
        ACC = self.G_ACC
        ST_, B1, AX, BX, RS, AD = 116, 118, 76, 88, 92, 94
        CS = self.G_CS
        L = I(f"""
        v_and_b32 {v(AD)}, 31, v1
        v_lshlrev_b32 {v(AD)}, 2, {v(AD)}
        v_add_u32 {v(AD)}, {self.CSA}, {v(AD)}
        s_mul_i32 {s(S_T0)}, {s(S_WAVE)}, 384
        v_add_u32 {v(AD+1)}, {s(S_T0)}, {v(AD)}
        """)
        for ft in range(3): L += I(f'v_accvgpr_read_b32 {v(CS+ft)}, {a_(208+16*ft)}')
        for ft in range(3): L += I(f'ds_write_b32 {v(AD+1)}, {v(CS+ft)} offset:{128*ft}')
        L += [waitlds()] + I('s_barrier') + self.ts('ep: barrier')
        for w in range(4):
            for ft in range(3): L += I(f'ds_read_b32 {v(100+3*w+ft)}, {v(AD)} offset:{384*w + 128*ft}')
        L += I(f"""
        v_cmp_gt_u32 vcc, 32, v1
        v_rcp_f32 {v(RS)}, {v(ST_+1)}
        v_xor_b32 {v(BX)}, 0x80000000, {v(ST_)}
        v_lshrrev_b32 {v(BX+1)}, 16, {v(BX)}
        v_or_b32 {v(BX)}, {v(BX)}, {v(BX+1)}
        v_lshrrev_b32 {v(BX+1)}, 16, {v(ST_+1)}
        v_mov_b32 {v(BX+2)}, 0
        v_mov_b32 {v(BX+3)}, 0
        """)
        for ft in range(3):
            a = AX + 4 * ft; cs = CS + ft
            L += I(f"""
            v_add_f32 {v(cs)}, {v(100+ft)}, {v(103+ft)}
            v_add_f32 {v(a)}, {v(106+ft)}, {v(109+ft)}
            v_add_f32 {v(cs)}, {v(cs)}, {v(a)}
            v_cvt_pk_bf16_f32 {v(a)}, {v(cs)}, {v(cs)}
            v_lshlrev_b32 {v(a+1)}, 16, {v(a)}
            v_sub_f32 {v(a+1)}, {v(cs)}, {v(a+1)}
            v_cvt_pk_bf16_f32 {v(a)}, {v(cs)}, {v(a+1)}
            v_cndmask_b32 {v(a)}, 0, {v(a)}, vcc
            v_cndmask_b32 {v(a+1)}, 0, {v(B1+ft)}, vcc
            v_mov_b32 {v(a+2)}, 0
            v_mov_b32 {v(a+3)}, 0
            v_mfma_f32_32x32x16_bf16 {v(ACC+16*ft,16)}, {v(a,4)}, {v(BX,4)}, {v(ACC+16*ft,16)}
            """)
        L += I(f"""
        s_lshl_b32 {s(S_T0)}, {s(S_T)}, 3
        s_lshl_b32 {s(S_T1)}, {s(S_WAVE)}, 1
        s_add_u32 {s(S_T0)}, {s(S_T0)}, {s(S_T1)}
        s_mul_i32 {s(S_T0)}, {s(S_T0)}, {48*1024}
        s_mul_i32 {s(S_T1)}, {s(S_FS)}, 3072
        s_add_u32 {s(S_T0)}, {s(S_T0)}, {s(S_T1)}
        s_add_u32 {s(S_T4)}, {s(S_T0)}, {WS_H}
        v_bfe_u32 {v(AD)}, v1, 4, 1
        v_mul_u32_u24 {v(AD)}, {48*1024}, {v(AD)}
        v_lshrrev_b32 {v(AD+1)}, 5, v1
        v_lshl_add_u32 {v(AD)}, {v(AD+1)}, 8, {v(AD)}
        v_and_b32 {v(AD+1)}, 15, v1
        v_lshl_add_u32 {v(AD)}, {v(AD+1)}, 4, {v(AD)}
        """)
        E = []
        for ft in range(3):
            A = ACC + 16 * ft
            for cc in range(2):
                for p in range(4 * cc, 4 * cc + 4):
                    r = A + 2 * p
                    E += I(f"""
                    v_max_f32 {v(r)}, 0, {v(r)}
                    v_max_f32 {v(r+1)}, 0, {v(r+1)}
                    v_pk_mul_f32 {v(r,2)}, {v(r,2)}, {v(RS,2)} op_sel_hi:[1,0]
                    v_pk_mul_f32 {v(r,2)}, {v(r,2)}, {v(r,2)}
                    """)
                for d in range(4):
                    r = A + 8 * cc + 2 * d
                    E += I(f'v_cvt_pk_bf16_f32 {v(A+8*cc+d)}, {v(r)}, {v(r+1)}')
                E += I(f'buffer_store_dwordx4 {v(A+8*cc,4)}, {v(AD)}, {s(SRD_WS,4)}, {s(S_T4)} offen offset:{1024*ft + 512*cc} sc1', tag='hstore')
        if ldsbg: E = merge(E, ldsbg)
        return L + self.ts('ep: xmfma') + merge_time(E, bg)

    def w2_setup(self, vaddr):
        return I(f"""
        s_mul_i32 {s(S_W2OFF)}, {s(S_CS)}, {48*5120}
        s_mul_i32 {s(S_T0)}, {s(S_WAVE)}, {12*5120}
        s_add_u32 {s(S_W2OFF)}, {s(S_W2OFF)}, {s(S_T0)}
        s_add_u32 {s(S_W2OFF)}, {s(S_W2OFF)}, {WS_W2T + (20480 if self.rot else 0)}
        v_lshlrev_b32 {v(vaddr)}, 4, v1
        """)
    def w2_load(self, n, vaddr):
        L = I(f'buffer_load_dwordx4 {a_(4*n,4)}, {v(vaddr)}, {s(SRD_WS,4)}, {s(S_W2OFF)} offen offset:{1024*(n%4)} sc1', tag='w2')
        if n % 4 == 3:
            if self.rot and n == 39: L += I(f's_sub_u32 {s(S_W2OFF)}, {s(S_W2OFF)}, {61440 - 4096}')
            else: L += I(f's_add_u32 {s(S_W2OFF)}, {s(S_W2OFF)}, 4096')
        return L

    CWS = 21248
    C_S0, C_S1, C_S2 = 208, 224, 240
    C_ACC, C_XF, C_HF, C_HD, C_XB, C_HB = 20, 52, 116, 132, 136, 137
    def c_dload(self):
        return I(f"""
        s_lshl_b32 {s(S_T0)}, {s(S_ID)}, 2
        s_add_u32 {s(S_T0)}, {s(S_T0)}, {s(S_WAVE)}
        s_lshl_b32 {s(S_T1)}, {s(S_T0)}, 1
        s_and_b32 {s(S_T1)}, {s(S_T1)}, -4
        s_load_dword {s(S_DVAL)}, {s(P_SSMD,2)}, {s(S_T1)}
        """)
    def c_hload(self):
        A = 202
        L = I(f"""
        s_lshl_b32 {s(S_T0)}, {s(S_ID)}, 2
        s_add_u32 {s(S_T0)}, {s(S_T0)}, {s(S_WAVE)}
        s_lshl_b32 {s(S_T0)}, {s(S_T0)}, 12
        v_lshlrev_b32 {v(A)}, 4, v1
        """)
        for i in range(4):
            L += I(f'buffer_load_dwordx4 {v(self.C_S0+4*i,4)}, {v(A)}, {s(SRD_H,4)}, {s(S_T0)} offen offset:{1024*i}{NT}')
        return L
    def c_prep_regs(self):
        S0, S1, S2 = self.C_S0, self.C_S1, self.C_S2
        L = []
        DP = 'row_mask:0xf bank_mask:0xf'
        for i in range(4):
            s0, q2, q3, q1, p2 = S0 + 4*i, S1 + 4*i, S2 + 4*i, 160 + 4*i, 203
            if i == 0:
                L += I(f'v_mov_b32 {v(q2)}, 0\nv_mov_b32 {v(p2)}, 0')
            else:
                L += I(f'v_mov_b32_dpp {v(q2)}, {v(s0-1)} wave_ror:1 {DP}\nv_mov_b32_dpp {v(p2)}, {v(s0-2)} wave_ror:1 {DP}')
            L += I(f"""
            v_mov_b32 {v(q2+1)}, {v(s0)}
            v_mov_b32 {v(q2+2)}, {v(s0+1)}
            v_mov_b32_dpp {v(q2)}, {v(s0+3)} wave_shr:1 {DP}
            v_mov_b32_dpp {v(p2)}, {v(s0+2)} wave_shr:1 {DP}
            v_mov_b32 {v(q2+3)}, {v(s0+2)}
            v_alignbit_b32 {v(q1+1)}, {v(s0+1)}, {v(s0)}, 16
            v_alignbit_b32 {v(q1+2)}, {v(s0+2)}, {v(s0+1)}, 16
            v_alignbit_b32 {v(q1+3)}, {v(s0+3)}, {v(s0+2)}, 16
            v_alignbit_b32 {v(q1)}, {v(s0)}, {v(q2)}, 16
            v_alignbit_b32 {v(q3)}, {v(q2)}, {v(p2)}, 16
            v_mov_b32 {v(q3+2)}, {v(q1+1)}
            v_mov_b32 {v(q3+3)}, {v(q1+2)}
            v_mov_b32 {v(q3+1)}, {v(q1)}
            """)
        return L
    def c_prep_addr(self):
        L = []
        L += I(f"""
        s_mul_i32 {s(S_T0)}, {s(S_WAVE)}, {self.CWS}
        s_add_u32 {s(S_T0)}, {s(S_T0)}, 90112
        s_cmp_eq_u32 {s(S_WAVE)}, 3
        s_cselect_b32 {s(S_T0)}, 32768, {s(S_T0)}
        v_lshlrev_b32 v176, 4, v1
        v_add_u32 v176, {s(S_T0)}, v176
        v_bfe_u32 v177, v1, 1, 2
        v_mul_u32_u24 v177, 4160, v177
        v_and_b32 v178, 1, v1
        v_lshl_add_u32 v177, v178, 4, v177
        v_add_u32 v177, {s(S_T0)}, v177
        v_min_u32 v179, 29, v1
        v_lshlrev_b32 v179, 4, v179
        s_add_u32 {s(S_T0)}, {s(S_T0)}, 16640
        v_add_u32 v179, {s(S_T0)}, v179
        v_mov_b32 v180, 0
        v_mov_b32 v181, 0
        v_mov_b32 v182, 0
        v_mov_b32 v183, 0
        """)
        XB, HB, HD = self.C_XB, self.C_HB, self.C_HD
        L += I(f"""
        v_and_b32 v184, 15, v1
        v_lshrrev_b32 v185, 4, v1
        v_lshlrev_b32 {v(XB)}, 5, v184
        v_lshlrev_b32 v186, 4, v185
        v_sub_u32 {v(XB)}, {v(XB)}, v186
        v_add_u32 {v(XB)}, 48, {v(XB)}
        v_add_u32 {v(XB)}, {s(S_T0)}, {v(XB)}
        v_bfe_u32 v187, v1, 2, 2
        v_mul_u32_u24 {v(HB)}, 4160, v187
        v_add_u32 {v(HB)}, {v(HB)}, v186
        v_and_b32 v187, 3, v1
        v_lshl_add_u32 {v(HB)}, v187, 3, {v(HB)}
        s_sub_u32 {s(S_T0)}, {s(S_T0)}, {16640 - 8}
        v_add_u32 {v(HB)}, {s(S_T0)}, {v(HB)}
        s_and_b32 {s(S_T1)}, {s(S_WAVE)}, 1
        s_lshl_b32 {s(S_T1)}, {s(S_T1)}, 4
        s_lshr_b32 {s(S_DVAL)}, {s(S_DVAL)}, {s(S_T1)}
        s_and_b32 {s(S_DVAL)}, {s(S_DVAL)}, 0xffff
        v_lshrrev_b32 v186, 3, v184
        v_add_u32 v186, v186, v185
        v_and_b32 v187, 1, v184
        v_lshlrev_b32 v187, 4, v187
        v_lshlrev_b32 v187, v187, {s(S_DVAL)}
        v_bfe_u32 v188, v184, 1, 2
        v_mov_b32 v189, 99
        v_cmp_eq_u32 vcc, 1, v186
        v_cndmask_b32 v188, v189, v188, vcc
        """)
        for w in range(4): L += I(f'v_cmp_eq_u32 vcc, {w}, v188\nv_cndmask_b32 {v(HD+w)}, 0, v187, vcc')
        return L
    def c_write_copies(self):
        S0, S1, S2 = self.C_S0, self.C_S1, self.C_S2
        L = I('ds_write_b128 v177, v[180:183]\nds_write_b128 v179, v[180:183]')
        for i in range(4):
            L += I(f'ds_write_b128 v176, {v(S0+4*i,4)} offset:{32 + 1024*i}')
            L += I(f'ds_write_b128 v176, {v(160+4*i,4)} offset:{32 + 4160 + 1024*i}')
            L += I(f'ds_write_b128 v176, {v(S1+4*i,4)} offset:{32 + 2*4160 + 1024*i}')
            L += I(f'ds_write_b128 v176, {v(S2+4*i,4)} offset:{32 + 3*4160 + 1024*i}')
        return L
    C_XL = 140
    def c_xload(self):
        L = I(f"""
        s_lshl_b32 {s(S_T0)}, {s(S_ID)}, 2
        s_add_u32 {s(S_T0)}, {s(S_T0)}, {s(S_WAVE)}
        s_lshl_b32 {s(S_T0)}, {s(S_T0)}, 12
        s_add_u32 {s(S_T0)}, {s(S_T0)}, {WS_KVT}
        v_lshlrev_b32 v138, 4, v1
        """)
        for i in range(4): L += I(f'buffer_load_dwordx4 {v(self.C_XL+4*i,4)}, v138, {s(SRD_WS,4)}, {s(S_T0)} offen offset:{1024*i} sc1')
        return L
    def c_xwrite(self):
        return [Ins(f'ds_write_b128 v176, {v(self.C_XL+4*i,4)} offset:{16640 + 480 + 1024*i}') for i in range(4)]
    def c_xread(self, q, b):
        return Ins(f'ds_read_b128 {v(self.C_XF + 32*(q&1) + 4*b, 4)}, {v(self.C_XB)} offset:{512*b + 64*(7-q)}')
    C_AORD = (0, 7, 1, 6, 2, 5, 3, 4)
    def c_hread(self, idx):
        q, a = idx // 8, self.C_AORD[idx % 8]
        r = self.C_HF + 4 * (idx % 4)
        return [Ins(f'ds_read_b64_tr_b16 {v(r+2*al,2)}, {v(self.C_HB)} offset:{512*a + 64*q + 8*(1-al)}') for al in range(2)]
    def c_main(self, bg):
        ACC = self.C_ACC
        out = [self.c_xread(0, b) for b in range(8)]
        for idx in range(3): out += self.c_hread(idx)
        for b in range(8): out += I(f'v_mfma_f32_16x16x32_bf16 {v(ACC+4*b,4)}, {v(self.C_HD,4)}, {v(self.C_XF+4*b,4)}, 0')
        for q in range(8):
            main = []
            for ai, a in enumerate(self.C_AORD):
                idx = 8 * q + ai
                hr = self.C_HF + 4 * (idx % 4)
                first = True
                for b in range(7 - a, -1, -1):
                    main.append(Ins(f'v_mfma_f32_16x16x32_bf16 {v(ACC+4*(a+b),4)}, {v(hr,4)}, {v(self.C_XF+32*(q&1)+4*b,4)}, {v(ACC+4*(a+b),4)}'))
                    if first and idx + 3 < 64: main += self.c_hread(idx + 3)
                    first = False
            xr = [self.c_xread(q + 1, b) for b in range(8)] if q < 7 else []
            if q in (0, 2, 4, 6, 7): out += self.ts('conv q%d' % q)
            m1 = merge(main, xr, 0.0, 0.7)
            out += merge(m1, bg.get(q, []), 0.0, 1.0)
        return out
    def c_post(self):
        ACC = self.C_ACC
        L = I(f"""
        s_lshl_b32 {s(S_T0)}, {s(S_ID)}, 2
        s_add_u32 {s(S_T0)}, {s(S_T0)}, {s(S_WAVE)}
        s_lshl_b32 {s(S_T0)}, {s(S_T0)}, 12
        s_add_u32 {s(S_T0)}, {s(S_T0)}, {WS_YT}
        v_and_b32 v52, 15, v1
        v_lshlrev_b32 v52, 5, v52
        v_bfe_u32 v53, v1, 4, 1
        v_lshl_add_u32 v52, v53, 9, v52
        v_bfe_u32 v53, v1, 5, 1
        v_lshl_add_u32 v52, v53, 4, v52
        """)
        for p in range(4):
            Q = 56 + 4 * p
            a0, a1 = ACC + 8 * p, ACC + 8 * p + 4
            L += I(f"""
            v_cvt_pk_bf16_f32 {v(Q)}, {v(a0)}, {v(a0+1)}
            v_cvt_pk_bf16_f32 {v(Q+1)}, {v(a0+2)}, {v(a0+3)}
            v_cvt_pk_bf16_f32 {v(Q+2)}, {v(a1)}, {v(a1+1)}
            v_cvt_pk_bf16_f32 {v(Q+3)}, {v(a1+2)}, {v(a1+3)}
            v_permlane16_swap_b32 {v(Q)}, {v(Q+2)}
            v_permlane16_swap_b32 {v(Q+1)}, {v(Q+3)}
            """)
            L += I(f'buffer_store_dwordx4 {v(Q,4)}, v52, {s(SRD_WS,4)}, {s(S_T0)} offen offset:{1024*p} sc1', tag='ystore')
        return L

    G2_ACC = (20, 40)
    G2_HR, G2_NR, G2_OFF = 104, 38, 11
    G2_HV = 2
    G2_RA = 5
    F_X, F_B, F_ST, F_Y = 60, 70, 80, 82
    F_PP, F_XU, F_T = 188, 104, 124
    def hreg(self, n): return self.G2_HR + 4 * ((n + self.G2_OFF) % self.G2_NR)
    def g2_setup(self):
        L = I(f"""
        v_lshlrev_b32 v8, 4, v1
        v_add_u32 v2, {4096 if self.rot else 0}, v8
        v_add_u32 v3, {8192 if self.rot else 4096}, v8
        v_add_u32 v4, {0 if self.rot else 8192}, v8
        s_mul_i32 {s(S_T0)}, {s(S_WAVE)}, {12*1024}
        s_add_u32 {s(S_T0)}, {s(S_T0)}, {WS_H}
        s_lshl_b32 {s(S_T1)}, {s(S_T64)}, 2
        """)
        for sg in range(4):
            L += I(f"""
            s_add_u32 {s(S_T2)}, {s(S_WAVE)}, {1+sg}
            s_and_b32 {s(S_T2)}, {s(S_T2)}, 3
            s_add_u32 {s(S_T3)}, {s(S_T1)}, {s(S_T2)}
            s_mul_i32 {s(S_T3)}, {s(S_T3)}, {48*1024}
            s_add_u32 {s(S_HOFF+sg)}, {s(S_T3)}, {s(S_T0)}
            """)
            if sg < 3:
                L += I(f"""
                s_mul_i32 {s(S_T2)}, {s(S_T2)}, 15360
                s_add_u32 {s(S_T2)}, {s(S_T2)}, {5120*sg}
                v_add_u32 {v(self.G2_RA+sg)}, {s(S_T2)}, v8
                """)
        L += I(f's_mul_i32 {s(S_T2)}, {s(S_WAVE)}, 15360\nv_add_u32 v8, {s(S_T2)}, v8')
        return L
    def g2_hload(self, n):
        sg, kk = n // 12, n % 12
        return Ins(f'buffer_load_dwordx4 {v(self.hreg(n),4)}, {v(self.G2_HV + kk//4)}, {s(SRD_WS,4)}, {s(S_HOFF+sg)} offen offset:{1024*(kk%4)} sc1')
    def f_loads(self):
        L = I(f"""
        s_lshl_b32 {s(S_T0)}, {s(S_T64)}, 6
        s_lshl_b32 {s(S_T1)}, {s(S_WAVE)}, 4
        s_add_u32 {s(S_T0)}, {s(S_T0)}, {s(S_T1)}
        v_and_b32 v9, 15, v1
        v_add_u32 v9, {s(S_T0)}, v9
        v_lshrrev_b32 v10, 4, v1
        s_mul_i32 {s(S_T2)}, {s(S_CS)}, 160
        v_lshl_add_u32 v10, v10, 3, {s(S_T2)}
        v_mul_u32_u24 v11, 1280, v9
        v_add_u32 v11, v11, v10
        """)
        for ct in range(5): L += I(f'buffer_load_dwordx2 {v(self.F_X+2*ct,2)}, v11, {s(SRD_Q,4)}, 0 offen offset:{32*ct}')
        for ct in range(5): L += I(f'global_load_dwordx2 {v(self.F_B+2*ct,2)}, v10, {s(P_B2,2)} offset:{32*ct}')
        L += I(f"""
        v_lshlrev_b32 v12, 3, v9
        v_add_u32 v12, {WS_STATS}, v12
        buffer_load_dwordx2 {v(self.F_ST,2)}, v12, {s(SRD_WS,4)}, 0 offen sc1
        """)
        return L
    def f_yloads(self):
        L = I(f"""
        v_lshlrev_b32 v12, 11, v10
        v_lshl_add_u32 v12, v9, 1, v12
        v_add_u32 v12, {WS_YT}, v12
        """)
        for ct in range(5):
            for r in range(4):
                L += I(f's_mov_b32 {s(S_T0)}, {(16*ct + r)*4096}')
                L += I(f'buffer_load_ushort {v(self.F_Y+4*ct+r)}, v12, {s(SRD_WS,4)}, {s(S_T0)} offen sc1')
        return L
    def f_pre(self):
        XU, SU, T, PP = self.F_XU, self.F_Y, self.F_T, self.F_PP
        X, B, ST_ = self.F_X, self.F_B, self.F_ST
        L = I(f"""
        v_rcp_f32 {v(T)}, {v(ST_+1)}
        v_mul_f32 {v(T+1)}, {v(ST_)}, {v(T)}
        v_xor_b32 {v(T+1)}, 0x80000000, {v(T+1)}
        """)
        for p in range(10):
            L += I(f"""
            v_lshlrev_b32 {v(XU+2*p)}, 16, {v(X+p)}
            v_and_b32 {v(XU+2*p+1)}, 0xffff0000, {v(X+p)}
            v_lshlrev_b32 {v(SU+2*p)}, 16, {v(SU+2*p)}
            v_lshlrev_b32 {v(SU+2*p+1)}, 16, {v(SU+2*p+1)}
            v_fma_f32 {v(T+2)}, {v(XU+2*p)}, {v(T)}, {v(T+1)}
            v_fma_f32 {v(T+3)}, {v(XU+2*p+1)}, {v(T)}, {v(T+1)}
            v_mul_f32 {v(SU+2*p)}, {v(SU+2*p)}, {v(T+2)}
            v_mul_f32 {v(SU+2*p+1)}, {v(SU+2*p+1)}, {v(T+3)}
            """)
        P2 = []
        for p in range(10):
            P2 += I(f"""
            v_lshlrev_b32 {v(T+4)}, 16, {v(B+p)}
            v_and_b32 {v(T+5)}, 0xffff0000, {v(B+p)}
            v_add_f32 {v(PP+2*p)}, {v(PP+2*p)}, {v(PP+20+2*p)}
            v_add_f32 {v(PP+2*p+1)}, {v(PP+2*p+1)}, {v(PP+21+2*p)}
            v_add_f32 {v(T+4)}, {v(T+4)}, {v(PP+40+2*p)}
            v_add_f32 {v(T+5)}, {v(T+5)}, {v(PP+41+2*p)}
            v_add_f32 {v(PP+2*p)}, {v(PP+2*p)}, {v(T+4)}
            v_add_f32 {v(PP+2*p+1)}, {v(PP+2*p+1)}, {v(T+5)}
            """)
        return L, P2
    def f_final(self):
        ACC = self.G2_ACC[1]; PP = self.F_PP
        XU, SU, T, X = self.F_XU, self.F_Y, self.F_T, self.F_X
        L = I(f's_mov_b32 {s(S_T0)}, {f2h(-1.4426950408889634)}')
        for ct in range(5):
            for h in range(2):
                p = 2 * ct + h
                U = T + 2 + 2 * (p & 1) + 4
                L += I(f"""
                v_pk_add_f32 {v(ACC+2*p,2)}, {v(ACC+2*p,2)}, {v(PP+2*p,2)}
                v_mul_f32 {v(U)}, {s(S_T0)}, {v(ACC+2*p)}
                v_mul_f32 {v(U+1)}, {s(S_T0)}, {v(ACC+2*p+1)}
                v_exp_f32 {v(U)}, {v(U)}
                v_exp_f32 {v(U+1)}, {v(U+1)}
                v_add_f32 {v(U)}, 1.0, {v(U)}
                v_add_f32 {v(U+1)}, 1.0, {v(U+1)}
                v_rcp_f32 {v(U)}, {v(U)}
                v_rcp_f32 {v(U+1)}, {v(U+1)}
                v_pk_mul_f32 {v(U,2)}, {v(U,2)}, {v(ACC+2*p,2)}
                v_pk_fma_f32 {v(U,2)}, {v(U,2)}, {v(SU+2*p,2)}, {v(XU+2*p,2)}
                v_cvt_pk_bf16_f32 {v(X+p)}, {v(U)}, {v(U+1)}
                """)
            L += I(f'buffer_store_dwordx2 {v(X+2*ct,2)}, v11, {s(SRD_OUT,4)}, 0 offen offset:{32*ct}')
        return L
    def f_pre_ct(self, ct):
        XU, SU, T, PP = self.F_XU, self.F_Y, self.F_T, self.F_PP
        X, B = self.F_X, self.F_B
        L = []
        for p in (2*ct, 2*ct + 1):
            L += I(f"""
            v_lshlrev_b32 {v(T+4)}, 16, {v(B+p)}
            v_and_b32 {v(T+5)}, 0xffff0000, {v(B+p)}
            v_add_f32 {v(PP+2*p)}, {v(PP+2*p)}, {v(PP+20+2*p)}
            v_add_f32 {v(PP+2*p+1)}, {v(PP+2*p+1)}, {v(PP+21+2*p)}
            v_add_f32 {v(T+4)}, {v(T+4)}, {v(PP+40+2*p)}
            v_add_f32 {v(T+5)}, {v(T+5)}, {v(PP+41+2*p)}
            v_add_f32 {v(PP+2*p)}, {v(PP+2*p)}, {v(T+4)}
            v_add_f32 {v(PP+2*p+1)}, {v(PP+2*p+1)}, {v(T+5)}
            """)
        return L
    def f_pre_x(self):
        XU, SU, T = self.F_XU, self.F_Y, self.F_T
        X, ST_ = self.F_X, self.F_ST
        L = I(f"""
        v_rcp_f32 {v(T)}, {v(ST_+1)}
        v_mul_f32 {v(T+1)}, {v(ST_)}, {v(T)}
        v_xor_b32 {v(T+1)}, 0x80000000, {v(T+1)}
        """)
        per = []
        for p in range(10):
            per.append(I(f"""
            v_lshlrev_b32 {v(XU+2*p)}, 16, {v(X+p)}
            v_and_b32 {v(XU+2*p+1)}, 0xffff0000, {v(X+p)}
            v_lshlrev_b32 {v(SU+2*p)}, 16, {v(SU+2*p)}
            v_lshlrev_b32 {v(SU+2*p+1)}, 16, {v(SU+2*p+1)}
            v_fma_f32 {v(T+2)}, {v(XU+2*p)}, {v(T)}, {v(T+1)}
            v_fma_f32 {v(T+3)}, {v(XU+2*p+1)}, {v(T)}, {v(T+1)}
            v_mul_f32 {v(SU+2*p)}, {v(SU+2*p)}, {v(T+2)}
            v_mul_f32 {v(SU+2*p+1)}, {v(SU+2*p+1)}, {v(T+3)}
            """))
        return L, per
    def f_fin_ct(self, ct):
        ACC = self.G2_ACC[1]; PP = self.F_PP
        XU, SU, T, X = self.F_XU, self.F_Y, self.F_T, self.F_X
        L = []
        for h in range(2):
            p = 2 * ct + h
            U = T + 6 + 2 * h
            L += I(f"""
            v_add_f32 {v(ACC+2*p)}, {v(ACC+2*p)}, {v(PP+2*p)}
            v_add_f32 {v(ACC+2*p+1)}, {v(ACC+2*p+1)}, {v(PP+2*p+1)}
            v_mul_f32 {v(U)}, {s(S_T0)}, {v(ACC+2*p)}
            v_mul_f32 {v(U+1)}, {s(S_T0)}, {v(ACC+2*p+1)}
            v_exp_f32 {v(U)}, {v(U)}
            v_exp_f32 {v(U+1)}, {v(U+1)}
            v_add_f32 {v(U)}, 1.0, {v(U)}
            v_add_f32 {v(U+1)}, 1.0, {v(U+1)}
            v_rcp_f32 {v(U)}, {v(U)}
            v_rcp_f32 {v(U+1)}, {v(U+1)}
            v_mul_f32 {v(U)}, {v(U)}, {v(ACC+2*p)}
            v_mul_f32 {v(U+1)}, {v(U+1)}, {v(ACC+2*p+1)}
            v_fma_f32 {v(U)}, {v(U)}, {v(SU+2*p)}, {v(XU+2*p)}
            v_fma_f32 {v(U+1)}, {v(U+1)}, {v(SU+2*p+1)}, {v(XU+2*p+1)}
            v_cvt_pk_bf16_f32 {v(X+p)}, {v(U)}, {v(U+1)}
            """)
        L += I(f'buffer_store_dwordx2 {v(X+2*ct,2)}, v11, {s(SRD_OUT,4)}, 0 offen offset:{32*ct}{OUTMOD}')
        return L
    def g2_main(self, first_unloaded, mid, last):
        out = []
        nxt = first_unloaded
        for sg in range(3):
            ACC = self.G2_ACC[sg & 1]
            for kk in range(12):
                n = sg * 12 + kk
                M = []
                for ct in range(5):
                    c = '0' if kk == 0 else v(ACC + 4 * ct, 4)
                    M.append(Ins(f'v_mfma_f32_16x16x32_bf16 {v(ACC+4*ct,4)}, {a_(20*kk+4*ct,4)}, {v(self.hreg(n),4)}, {c}'))
                B = []
                cnt = 0
                while nxt < 48 and nxt - self.G2_NR <= n - 1 and cnt < 1 and (nxt - first_unloaded) <= n:
                    B.append(self.g2_hload(nxt)); nxt += 1; cnt += 1
                B += mid.get(n, [])
                if sg >= 1 and kk == 1:
                    P = self.G2_ACC[(sg - 1) & 1]
                    B += [Ins(f'ds_write_b128 {v(self.G2_RA+sg-1)}, {v(P+4*ct,4)} offset:{1024*ct}') for ct in range(5)]
                if kk == 0 or n in (1, 4): out += self.ts('g2 n%d' % n)
                out += merge(M, B)
        assert nxt == 48, nxt
        out += self.ts('g2 n36')
        ACC = self.G2_ACC[1]
        P = self.G2_ACC[0]
        px0, pxp = self.f_pre_x()
        setup = I(f's_mov_b32 {s(S_T0)}, {f2h(-1.4426950408889634)}')
        for ct in range(5):
            M = []
            for kk in range(12):
                c = '0' if kk == 0 else v(ACC + 4 * ct, 4)
                M.append(Ins(f'v_mfma_f32_16x16x32_bf16 {v(ACC+4*ct,4)}, {a_(20*kk+4*ct,4)}, {v(self.hreg(36+kk),4)}, {c}'))
            B = []
            if ct == 0:
                B += [Ins(f'ds_write_b128 {v(self.G2_RA+2)}, {v(P+4*c2,4)} offset:{1024*c2}') for c2 in range(5)]
                B += last + [waitlds()] + I('s_barrier')
                for sp in range(3):
                    for c2 in range(2):
                        B.append(Ins(f'ds_read_b128 {v(self.F_PP + 4*(5*sp+c2), 4)}, v8 offset:{5120*sp + 1024*c2}'))
                B += px0 + setup
            else:
                if ct < 4:
                    c2 = ct + 1
                    for sp in range(3): B.append(Ins(f'ds_read_b128 {v(self.F_PP + 4*(5*sp+c2), 4)}, v8 offset:{5120*sp + 1024*c2}'))
                pc = ct - 1
                B += self.f_pre_ct(pc) + pxp[2*pc] + pxp[2*pc+1] + self.f_fin_ct(pc)
            out += merge(M, B)
        out += self.ts('G2 main done')
        out += self.f_pre_ct(4) + pxp[8] + pxp[9] + self.f_fin_ct(4)
        return out

TSNAMES = {}
def build_role(role, o):
    g = Gen(role, o)
    L = []
    def ts(name): return g.ts(name)
    L += ts('entry')
    if o.get('ts'): L += I('s_memrealtime s[6:7]\ns_waitcnt lgkmcnt(0)\nv_writelane_b32 v19, s6, 62')
    if o.get('pfcode'):
        L += I(f"""
        s_getpc_b64 s[6:7]
        """)
        L[-1].text += f'\nLpc_{role}:'
        L += I(f"""
        s_mov_b32 s8, Lend_{role}-Lpc_{role}-4
        v_and_b32 v3, 63, v0
        v_lshlrev_b32 v3, 7, v3
        v_lshrrev_b32 v4, 6, v0
        v_lshl_add_u32 v3, v4, 13, v3
        v_min_u32 v3, s8, v3
        global_load_dword a203, v3, s[6:7]
        """)
    L += g.prologue()
    first = [(SRD_K, P_K, S*D*2), (SRD_V, P_V, S*D*2), (SRD_H, P_SHK, D*4*2), (SRD_Q, P_Q, S*D*2), (SRD_WS, P_WS, WS_BYTES), (SRD_W1, P_W1, D*F*2)]
    if role == 'B': first += [(SRD_W2, P_W2, D*F*2)]
    rest = [(SRD_OUT, P_OUT, S*D*2)] + ([(SRD_H, P_SSMK, S*D*2)] if role == 'A' else [])
    L += g.srds(first)
    L += I(f's_load_dword {s(S_EPOCH)}, {s(P_WS,2)}, {WS_EPOCH}')
    L += ts('prologue')
    if role == 'A': L += g.c_dload()
    if o.get('pfmall'):
        L += I(f"""
        s_lshl_b32 {s(S_T0)}, {s(S_ID)}, 2
        s_add_u32 {s(S_T0)}, {s(S_T0)}, {s(S_WAVE)}
        s_mul_i32 {s(S_T1)}, {s(S_T0)}, 20
        v_min_u32 v20, 19, v1
        v_add_u32 v20, {s(S_T1)}, v20
        v_lshlrev_b32 v20, 7, v20
        buffer_load_dword a204, v20, {s(SRD_Q,4)}, 0 offen
        s_mul_i32 {s(S_T1)}, {s(S_T0)}, 15
        v_min_u32 v20, 14, v1
        v_add_u32 v20, {s(S_T1)}, v20
        v_lshlrev_b32 v20, 7, v20
        buffer_load_dword a205, v20, {s(SRD_W1,4)}, 0 offen
        """)
    L += g.g1_setup(20)
    L += g.g1_dma(0)
    L += g.p_kv_load()
    if role == 'B': L += g.p_w2_load(240)
    L += g.p_stat_load(214)
    L += ts('P loads')
    L += merge_time(g.srds(rest) + g.g1_setup2(20) + g.g1_init() + g.g1_ones() + g.make_tag(), g.g1_dma(1) + g.g1_dma(2), 0.0, 1.0)
    L += ts('P done')
    pk1, pk2 = g.p_kv_compute()
    st1, st2 = g.p_stat_compute(214, split=True)
    bg = {c: [] for c in range(10)}
    bgv = {c: [] for c in range(10)}
    for c in range(0, 7): bgv[c] += g.g1_dma(c + 3)
    bg[0] += st1 + [waitvm('kvdma')]
    stores = st2
    if role == 'B':
        w1_, w2_ = g.p_w2_store(240)
        bg[0] = w1_ + bg[0]
        stores = stores + w2_
    n1 = len(pk1)
    bg[1] += g.p_kv_fetch() + pk1[:n1 // 2]
    bg[2] += pk1[n1 // 2:]
    bg[3] += pk2 + stores
    bg[5] += I(f"""
        s_mul_i32 {s(S_T0)}, {s(S_FS)}, 192
        v_and_b32 v121, 31, v1
        v_lshl_add_u32 v121, v121, 1, {s(S_T0)}
        global_load_ushort v118, v121, {s(P_B1,2)}
        global_load_ushort v119, v121, {s(P_B1,2)} offset:64
        global_load_ushort v120, v121, {s(P_B1,2)} offset:128
        """)
    bg[4] += [waitvm('pstore')]
    bg[5] = g.set_flag(WS_FLAG_P, f's_mov_b32 {s(S_T0)}, {s(S_ID)}', 124, 125) + bg[5]
    comb = I(f"""
        s_mul_i32 {s(S_T0)}, {s(S_CS)}, 12
        s_mul_i32 {s(S_T1)}, {s(S_WAVE)}, 3
        s_add_u32 {s(S_T0)}, {s(S_T0)}, {s(S_T1)}
        s_add_u32 {s(S_T0)}, {s(S_T0)}, {NA}
        v_min_u32 v126, 2, v1
        v_add_u32 v126, {s(S_T0)}, v126
        s_lshl_b32 {s(S_T0)}, {s(S_T)}, 7
        s_lshl_b32 {s(S_T1)}, {s(S_WAVE)}, 5
        s_add_u32 {s(S_T0)}, {s(S_T0)}, {s(S_T1)}
        s_and_b32 {s(S_T1)}, {s(S_T0)}, 0xf8
        s_lshr_b32 {s(S_T0)}, {s(S_T0)}, 8
        s_add_u32 {s(S_T0)}, {s(S_T0)}, {s(S_T1)}
        v_and_b32 v127, 3, v1
        v_lshlrev_b32 v127, 3, v127
        v_add_u32 v127, {s(S_T0)}, v127
        v_lshrrev_b32 v125, 2, v1
        v_cmp_eq_u32 vcc, 1, v125
        v_cndmask_b32 v126, v126, v127, vcc
        """)
    if role == 'A':
        comb += I(f"""
        s_mul_i32 {s(S_T0)}, {s(S_ID)}, 3277
        s_lshr_b32 {s(S_T0)}, {s(S_T0)}, 16
        s_lshl_b32 {s(S_T0)}, {s(S_T0)}, 3
        v_and_b32 v127, 3, v1
        v_lshlrev_b32 v127, 6, v127
        v_bfe_u32 v125, v1, 2, 3
        v_add_u32 v127, v127, v125
        v_add_u32 v127, {s(S_T0)}, v127
        v_cmp_lt_u32 vcc, 31, v1
        v_cndmask_b32 v126, v126, v127, vcc
        """)
    comb += I(f"""
        v_lshlrev_b32 v126, 6, v126
        v_add_u32 v126, {WS_FLAG_P}, v126
        buffer_load_dword v127, v126, {s(SRD_WS,4)}, 0 offen sc1
        """)
    w2l = [g.w2_load(n, 139) for n in range(60)]
    k = 0
    stat_ld = I(f"""
        s_lshl_b32 {s(S_T0)}, {s(S_T)}, 7
        s_lshl_b32 {s(S_T1)}, {s(S_WAVE)}, 5
        s_add_u32 {s(S_T0)}, {s(S_T0)}, {s(S_T1)}
        v_and_b32 v126, 31, v1
        v_add_u32 v126, {s(S_T0)}, v126
        v_lshlrev_b32 v126, 3, v126
        v_add_u32 v126, {WS_STATS}, v126
        buffer_load_dwordx2 v[116:117], v126, {s(SRD_WS,4)}, 0 offen sc1
        """)
    if role == 'A':
        bg[5] = g.c_hload() + bg[5]
        pa = g.c_prep_addr()
        bg[5] += pa
        bg[7] = g.c_prep_regs() + bg[7]
    bg[7] = comb + bg[7]
    bg[8] += g.poll(127, 126, 'p') + g.w2_setup(139) + stat_ld
    if role == 'A':
        bg[8] += g.c_xload()
        bg[6] += g.g2_setup() if False else []
        bg[7] += g.g2_setup()
        cw = g.c_write_copies()
        bg[9] += cw
        per = {9: 5}
    else:
        per = {9: 7}
    for c in sorted(per):
        for _ in range(per[c]): bgv[c] += w2l[k]; k += 1
    if o.get('x_nobg'):
        for c in range(10): bg[c] = []
    if o.get('x_nopk'):
        for c in (2, 3, 4): bg[c] = [i for i in bg[c] if i.kind in ('waitvm',) or i.tag == 'flag']
    if o.get('x_stop'):
        L += g.g1_main(bg, bgv) + ts('G1 main done') + [waitvmall()] + ts('end')
        L += I(f"""
        s_lshl_b32 {s(S_T0)}, {s(S_ID)}, 10
        s_lshl_b32 {s(S_T1)}, {s(S_WAVE)}, 8
        s_add_u32 {s(S_T0)}, {s(S_T0)}, {s(S_T1)}
        s_add_u32 {s(S_T0)}, {s(S_T0)}, {WS_TS}
        v_lshlrev_b32 v2, 2, v1
        buffer_store_dword v19, v2, {s(SRD_WS,4)}, {s(S_T0)} offen
        s_endpgm
        """)
        TSNAMES[role] = g.tsnames
        st = Stream(); st.ins = L
        return render(finalize(st)) + ''.join(g.tail)
    L += g.g1_main(bg, bgv)
    L += ts('G1 main done')
    gflag = g.set_flag(WS_FLAG_G, f's_lshl_b32 {s(S_T0)}, {s(S_T)}, 4\ns_add_u32 {s(S_T0)}, {s(S_T0)}, {s(S_FS)}', 16, 17)
    hflag_idx = f's_lshr_b32 {s(S_T0)}, {s(S_T64)}, 1\ns_lshl_b32 {s(S_T0)}, {s(S_T0)}, 4\ns_lshl_b32 {s(S_T1)}, {s(S_WAVE)}, 2\ns_add_u32 {s(S_T0)}, {s(S_T0)}, {s(S_T1)}'
    if role == 'A':
        e_bg = []
        for _ in range(11): e_bg += w2l[k]; k += 1
        L += g.g1_epilogue(e_bg, g.c_xwrite())
        L += ts('G1 epilogue')
        cb = {q: [] for q in range(8)}
        cb[2] += [waitvm('hstore')] + I('s_barrier') + gflag
        rem = 60 - k
        qi = 0
        for j in range(rem):
            cb[j * 5 // rem] += w2l[k]; k += 1
        cb[4] = g.flag_load(WS_FLAG_G, hflag_idx, 'v_and_b32 v13, 3, v1', 13, 14) + cb[4]
        cb[5] += g.poll(14, 13, 'g1')
        NPRE = 20
        hp = [g.g2_hload(n) for n in range(NPRE)]
        cb[5] += hp[:6]; cb[6] += hp[6:13]; cb[7] += hp[13:]
        L += g.c_main(cb)
        L += ts('conv main')
        L += g.c_post()
        cflag = [waitvm('ystore')] + I('s_barrier') + g.set_flag(WS_FLAG_C, f's_mov_b32 {s(S_T0)}, {s(S_ID)}', 16, 17)
        first_unl = NPRE
    else:
        e_bg = []
        for _ in range(6): e_bg += w2l[k]; k += 1
        L += g.g1_epilogue(e_bg)
        L += ts('G1 epilogue')
        L += g.g2_setup()
        L += [waitvm('hstore')] + I('s_barrier') + gflag
        while k < 60: L += w2l[k]; k += 1
        L += g.flag_load(WS_FLAG_G, hflag_idx, 'v_and_b32 v13, 3, v1', 13, 14)
        L += g.poll(14, 13, 'g1')
        L += ts('G1 flags')
        L += [g.g2_hload(n) for n in range(38)]
        cflag = I('s_barrier')
        first_unl = 38
    L += ts('G2 start')
    mid = {}
    fl = g.f_loads()
    mid[3] = fl[:11]
    for j in range(4): mid[5 + 2*j] = [fl[11 + j]]
    for j in range(5): mid[13 + 2*j] = [fl[15 + j]]
    mid[23] = fl[20:]
    mid[10] = cflag
    mid[16] = I(f"""
        s_cmp_eq_u32 {s(S_ID)}, 0
        s_cselect_b32 {s(S_T4)}, {s(S_TAG)}, 0
        s_cselect_b32 {s(S_T5)}, 0, {OOB}
        s_lshl_b32 {s(S_T0)}, {s(S_WAVE)}, 6
        v_add_u32 v15, {s(S_T0)}, v1
        v_lshlrev_b32 v15, 6, v15
        v_add_u32 v15, {WS_FLAG_P}, v15
        v_or_b32 v15, {s(S_T5)}, v15
        buffer_load_dword v18, v15, {s(SRD_WS,4)}, 0 offen sc1
        """)
    mid[24] = g.poll(18, 15, 'tk', exp=S_T4)
    epoch_store = I(f"""
        v_mov_b32 v18, {OOB}
        v_mov_b32 v15, {s(S_T5)}
        v_cmp_eq_u32 vcc, 0, v0
        v_cndmask_b32 v15, v18, v15, vcc
        v_mov_b32 v18, {s(S_TAG)}
        buffer_store_dword v18, v15, {s(SRD_WS,4)}, 0 offen sc1
        """)
    mid[22] = g.flag_load(WS_FLAG_C, f's_mul_i32 {s(S_T0)}, {s(S_CS)}, 20', 'v_min_u32 v13, 19, v1', 13, 14)
    yl = g.f_yloads()
    mid[29] = g.poll(14, 13, 'y') + yl[:9]
    for j, n in enumerate(range(30, 35)): mid[n] = yl[9 + 7*j: 9 + 7*(j+1)]
    mid[35] = yl[9 + 35:]
    L += g.g2_main(first_unl, mid, [])
    L += epoch_store
    L += ts('F done')
    if o.get('ts'):
        L += [waitvmall()] + ts('end')
        L += I('s_memrealtime s[6:7]\ns_waitcnt lgkmcnt(0)\nv_writelane_b32 v19, s6, 63')
        L += I(f"""
        s_lshl_b32 {s(S_T0)}, {s(S_ID)}, 10
        s_lshl_b32 {s(S_T1)}, {s(S_WAVE)}, 8
        s_add_u32 {s(S_T0)}, {s(S_T0)}, {s(S_T1)}
        s_add_u32 {s(S_T0)}, {s(S_T0)}, {WS_TS}
        v_lshlrev_b32 v2, 2, v1
        buffer_store_dword v19, v2, {s(SRD_WS,4)}, {s(S_T0)} offen
        """)
        TSNAMES[role] = g.tsnames
    L += I('s_endpgm')
    st = Stream(); st.ins = L
    return render(finalize(st)) + ''.join(g.tail) + f'Lend_{role}:\n    s_endpgm\n'

HEADER = """; Kernarg layout (112 bytes, ptrs only): q k v shift_k ssm_k ssm_D B_x w1 b1 w2 b2 out debug ws
; @launch grid=(256,1,1) block=(256,1,1) lds=163840
.amdgcn_target "amdgcn-amd-amdhsa--gfx950"
.text
.globl {n}_kernel
.p2align 8
.type {n}_kernel,@function
{n}_kernel:
"""
FOOTER = """
.section .rodata,"a"
.p2align 6
.amdhsa_kernel {n}_kernel
  .amdhsa_next_free_vgpr 512
  .amdhsa_next_free_sgpr 102
  .amdhsa_accum_offset 256
  .amdhsa_group_segment_fixed_size 0
  .amdhsa_kernarg_size 112
  .amdhsa_user_sgpr_count 2
  .amdhsa_user_sgpr_kernarg_segment_ptr 1
  .amdhsa_system_sgpr_workgroup_id_x 1
.end_amdhsa_kernel
"""
def build(o):
    global NT, OUTMOD
    OUTMOD = ' sc1' if o.get('outsc1') else (' nt' if o.get('outnt') else '')
    NT = ' nt' if o.get('nt') else ''
    txt = HEADER.format(n=NAME)
    txt += f"""    s_cmp_ge_u32 s2, 256
    s_cbranch_scc1 L_exit
    s_cmp_ge_u32 s2, {NA}
    s_cbranch_scc1 L_roleB
"""
    txt += build_role('A', o)
    txt += "L_exit:\n    s_endpgm\n.p2align 6\nL_roleB:\n"
    txt += build_role('B', o)
    txt += FOOTER.format(n=NAME)
    return txt

if __name__ == '__main__':
    o = {k: True for k in sys.argv[2:]}
    out = sys.argv[1] if len(sys.argv) > 1 else 'k.s'
    open(out, 'w').write(build(o))
    if o.get('ts'): json.dump(TSNAMES, open(out + '.ts.json', 'w'))
    print("wrote", out)
```

```python
import sys, struct, json
from asmlib import *

NAME = "recurrent_scan__ssm_conv_h3__dense_activation_squared_relu__prompt"
S, D, F = 2048, 640, 1536
def f2h(x): return '0x%08x' % struct.unpack('<I', struct.pack('<f', x))[0]

WS_EPOCH = 0
WS_FLAG_P = 0x1000
WS_FLAG_G = 0x5000
WS_FLAG_C = 0x9000
WS_FLAG_W = 0xC000
WS_STATS = 0x10000
WS_KVT = 0x100000
WS_YT = 0x400000
WS_H = 0x800000
WS_W2T = 0x1000000
WS_TS = 0x1300000
WS_BYTES = 0x1400000
NA = 160

def v(a, n=1): return 'v%d' % a if n == 1 else 'v[%d:%d]' % (a, a + n - 1)
def a_(a, n=1): return 'a%d' % a if n == 1 else 'a[%d:%d]' % (a, a + n - 1)
def s(a, n=1): return 's%d' % a if n == 1 else 's[%d:%d]' % (a, a + n - 1)

S_ID, S_WAVE, S_TAG = 2, 4, 5
SRD_Q, SRD_K, SRD_V, SRD_W1, SRD_W2, SRD_H, SRD_OUT, SRD_WS = 8, 12, 16, 20, 24, 28, 32, 36
P_Q, P_K, P_V, P_SHK, P_SSMK, P_SSMD, P_BX, P_W1, P_B1, P_W2, P_B2, P_OUT, P_DBG, P_WS = [40 + 2 * i for i in range(14)]
S_T, S_FS, S_T64, S_CS = 68, 69, 70, 71
S_PK, S_DIS = 72, 77
S_XOFF, S_WOFF, S_XM0, S_WM0 = 73, 74, 75, 76
S_W2OFF = 78
S_SPIN = 79
S_T0, S_T1, S_T2, S_T3, S_T4, S_T5 = 80, 81, 82, 83, 84, 85
S_ONES, S_EPOCH = 86, 87
S_MASK = 88
S_DVAL = 90
S_CB = 91
S_HOFF = 92
SRD_DBG = 96
OOB = 0x80000000

def I(text, tag=None): return [Ins(l.strip(), tag=tag) for l in text.strip('\n').split('\n') if l.split(';')[0].strip()]
def waitvm(tag):
    w = Ins('; waitvm'); w.kind = 'waitvm'; w.tag = tag; return w
def waitlds():
    w = Ins('; waitlds'); w.kind = 'waitlds'; return w
def waitvmall():
    w = Ins('; waitvmall'); w.kind = 'waitvmall'; return w

def weight(i):
    if i.kind in ('vmem', 'vmem_st'):
        return 12 if ('x4' in i.op) else 4
    if i.kind in ('waitvm', 'waitlds', 'waitvmall', 'label'): return 0
    return 1

def merge(main, bg, lo=0.0, hi=1.0):
    if not bg: return list(main)
    pos = [k for k, i in enumerate(main) if i.is_mfma()]
    if not pos: pos = list(range(len(main)))
    n = len(pos)
    a, b = int(lo * n), max(int(hi * n), int(lo * n) + 1)
    slots = pos[a:b]
    tot = sum(weight(i) for i in bg) or 1
    after = {}
    cum = 0
    for i in bg:
        k = min(int(cum * len(slots) / tot), len(slots) - 1)
        after.setdefault(slots[k], []).append(i)
        cum += weight(i)
    out = []
    for k, i in enumerate(main):
        out.append(i)
        out += after.get(k, [])
    return out

def est_times(stream):
    t = 0; pipe = 0; out = []
    for i in stream:
        if i.is_mfma():
            t = max(t, pipe); out.append(t)
            pipe = t + (32 if i.kind == 'mfma32' else 16); t += 8
        elif i.kind in ('waitvm', 'waitlds', 'waitvmall', 'label'):
            out.append(t)
        else:
            out.append(t); t += 8 if i.kind == 'trans' else 4
    return out, max(t, pipe)

def merge_time(stream, vm, lo=0.0, hi=1.0):
    if not vm: return list(stream)
    groups = []; cur = []
    for i in vm:
        cur.append(i)
        if i.kind in ('vmem', 'vmem_st'):
            groups.append(cur); cur = []
    if cur:
        if groups: groups[-1] += cur
        else: groups.append(cur)
    times, total = est_times(stream)
    n = len(groups)
    tgt = [total * (lo + (hi - lo) * (k + 0.0) / n) for k in range(n)]
    out = []; k = 0
    for i, t in zip(stream, times):
        while k < n and t >= tgt[k]:
            out += groups[k]; k += 1
        out.append(i)
    while k < n:
        out += groups[k]; k += 1
    return out

NT = ''
OUTMOD = ''
class Gen:
    def __init__(self, role, o):
        self.rot = (role == 'B' and bool(o.get('rot')))
        self.role = role; self.o = o; self.lab = 0; self.tail = []; self.tsnames = []
    def label(self, base):
        self.lab += 1
        return 'L%s_%s%d' % (self.role, base, self.lab)
    def ts(self, name):
        if not self.o.get('ts') or len(self.tsnames) >= 62: return []
        if self.o.get('light') and name not in ('entry', 'prologue', 'P loads', 'pk1 done', 'P done', 'g1 c5', 'G1 main done', 'G1 epilogue', 'conv main', 'G1 flags', 'G2 start', 'g2 n24', 'G2 main done', 'end'): return []
        k = len(self.tsnames); self.tsnames.append(name)
        return I(f's_memtime s[6:7]\ns_waitcnt lgkmcnt(0)\nv_writelane_b32 v19, s6, {k}')

    def flag_load(self, base, sidx_code, lane_code, vaddr, vflag):
        return I(sidx_code) + I(lane_code) + I(f"""
        v_add_u32 {v(vaddr)}, {s(S_T0)}, {v(vaddr)}
        v_lshlrev_b32 {v(vaddr)}, 6, {v(vaddr)}
        v_add_u32 {v(vaddr)}, {base}, {v(vaddr)}
        buffer_load_dword {v(vflag)}, {v(vaddr)}, {s(SRD_WS,4)}, 0 offen sc1
        """)
    def poll(self, vflag, vaddr, nm, exp=None, srd=None):
        exp = S_TAG if exp is None else exp
        srd = SRD_WS if srd is None else srd
        L = self.label('slow' + nm); Lb = self.label('back' + nm)
        br = Ins('s_cbranch_vccnz %s' % L); br.text += '\n%s:' % Lb
        self.tail.append(f"""{L}:
    s_mov_b32 {s(S_SPIN)}, 0
{L}_l:
    s_sleep 1
    buffer_load_dword {v(vflag)}, {v(vaddr)}, {s(srd,4)}, 0 offen sc1
    s_add_u32 {s(S_SPIN)}, {s(S_SPIN)}, 1
    s_cmp_gt_u32 {s(S_SPIN)}, 0x8000
    s_cbranch_scc1 {L}_x
    s_waitcnt vmcnt(0)
    v_cmp_ne_u32 vcc, {s(exp)}, {v(vflag)}
    s_nop 4
    s_cbranch_vccnz {L}_l
{L}_x:
    s_waitcnt vmcnt(0)
    s_nop 7
    s_branch {Lb}
""")
        return I('v_cmp_ne_u32 vcc, %s, %s' % (s(exp), v(vflag))) + [br]
    def set_flag(self, base, idx_code, t1, t2):
        return I(idx_code) + I(f"""
        s_lshl_b32 {s(S_T0)}, {s(S_T0)}, 6
        s_add_u32 {s(S_T0)}, {s(S_T0)}, {base}
        v_mov_b32 {v(t1)}, {s(S_T0)}
        v_mov_b32 {v(t2)}, {OOB}
        v_cmp_eq_u32 vcc, 0, v0
        v_cndmask_b32 {v(t1)}, {v(t2)}, {v(t1)}, vcc
        v_mov_b32 {v(t2)}, {s(S_TAG)}
        buffer_store_dword {v(t2)}, {v(t1)}, {s(SRD_WS,4)}, 0 offen sc1
        """, tag='flag')

    def prologue(self):
        L = I(f"""
        s_load_dwordx16 s[40:55], s[0:1], 0
        s_load_dwordx8 s[56:63], s[0:1], 64
        s_load_dwordx4 s[64:67], s[0:1], 96
        v_and_b32 v1, 63, v0
        v_lshrrev_b32 v2, 6, v0
        s_and_b32 {s(S_T0)}, {s(S_ID)}, 7
        s_lshr_b32 {s(S_T1)}, {s(S_ID)}, 3
        v_readfirstlane_b32 {s(S_WAVE)}, v2
        s_lshr_b32 {s(S_T2)}, {s(S_T0)}, 1
        s_lshl_b32 {s(S_T2)}, {s(S_T2)}, 2
        s_lshr_b32 {s(S_T3)}, {s(S_T1)}, 3
        s_add_u32 {s(S_T)}, {s(S_T2)}, {s(S_T3)}
        s_and_b32 {s(S_T2)}, {s(S_T0)}, 1
        s_lshl_b32 {s(S_T2)}, {s(S_T2)}, 3
        s_and_b32 {s(S_CS)}, {s(S_T1)}, 7
        s_add_u32 {s(S_FS)}, {s(S_T2)}, {s(S_CS)}
        s_lshl_b32 {s(S_T64)}, {s(S_T0)}, 2
        s_add_u32 {s(S_T64)}, {s(S_T64)}, {s(S_T3)}
        s_mov_b32 {s(S_ONES)}, 0x3f803f80
        """)
        return L
    def srds(self, lst):
        L = []
        for srd, p, n in lst:
            L += I(f"""
            s_mov_b32 {s(srd)}, {s(p)}
            s_mov_b32 {s(srd+1)}, {s(p+1)}
            s_mov_b32 {s(srd+2)}, {n}
            s_mov_b32 {s(srd+3)}, 0x20000
            """)
        return L
    def make_tag(self):
        return I(f"""
        s_mul_i32 {s(S_TAG)}, {s(S_EPOCH)}, 0x9e3779b1
        s_add_u32 {s(S_TAG)}, {s(S_TAG)}, 0x7f4a7c15
        """)

    def p_stat_load(self, R):
        return I(f"""
        s_and_b32 {s(S_T0)}, {s(S_ID)}, 7
        s_lshl_b32 {s(S_T0)}, {s(S_T0)}, 8
        s_and_b32 {s(S_T1)}, {s(S_ID)}, -8
        s_add_u32 {s(S_T0)}, {s(S_T0)}, {s(S_T1)}
        s_lshl_b32 {s(S_T1)}, {s(S_WAVE)}, 1
        s_add_u32 {s(S_T0)}, {s(S_T0)}, {s(S_T1)}
        v_lshrrev_b32 {v(R+12)}, 5, v1
        v_add_u32 {v(R+12)}, {s(S_T0)}, {v(R+12)}
        v_and_b32 {v(R+13)}, 31, v1
        v_mul_u32_u24 {v(R+10)}, 1280, {v(R+12)}
        v_lshl_add_u32 {v(R+11)}, {v(R+13)}, 3, {v(R+10)}
        v_lshl_add_u32 {v(R+10)}, {v(R+13)}, 4, {v(R+10)}
        buffer_load_dwordx4 {v(R,4)}, {v(R+10)}, {s(SRD_Q,4)}, 0 offen
        buffer_load_dwordx4 {v(R+4,4)}, {v(R+10)}, {s(SRD_Q,4)}, 0 offen offset:512
        buffer_load_dwordx2 {v(R+8,2)}, {v(R+11)}, {s(SRD_Q,4)}, 0 offen offset:1024
        """)
    def p_stat_compute(self, R, split=False):
        A, B, T, U = R + 14, R + 15, R + 16, R + 17
        assert A % 2 == 0
        L = I(f'v_mov_b32 {v(A)}, 0\nv_mov_b32 {v(B)}, 0')
        for i in range(10):
            L += I(f'v_dot2c_f32_bf16 {v(A)}, {s(S_ONES)}, {v(R+i)}\nv_dot2c_f32_bf16 {v(B)}, {v(R+i)}, {v(R+i)}')
        for rot in (8, 4, 2, 1):
            L += I(f'v_add_f32_dpp {v(A)}, {v(A)}, {v(A)} row_ror:{rot} row_mask:0xf bank_mask:0xf')
            L += I(f'v_add_f32_dpp {v(B)}, {v(B)}, {v(B)} row_ror:{rot} row_mask:0xf bank_mask:0xf')
        L += I(f"""
        v_mov_b32 {v(T)}, {v(A)}
        v_mov_b32 {v(U)}, {v(B)}
        v_permlane16_swap_b32 {v(A)}, {v(T)}
        v_permlane16_swap_b32 {v(B)}, {v(U)}
        v_add_f32 {v(A)}, {v(A)}, {v(T)}
        v_add_f32 {v(B)}, {v(B)}, {v(U)}
        v_mul_f32 {v(A)}, {f2h(1.0/640)}, {v(A)}
        v_mul_f32 {v(B)}, {f2h(1.0/640)}, {v(B)}
        v_fma_f32 {v(B)}, -{v(A)}, {v(A)}, {v(B)}
        v_max_f32 {v(B)}, 0, {v(B)}
        v_cvt_pk_bf16_f32 {v(A)}, {v(A)}, {v(B)}
        v_and_b32 {v(B)}, 0xffff0000, {v(A)}
        v_lshlrev_b32 {v(A)}, 16, {v(A)}
        v_add_f32 {v(B)}, {f2h(1e-5)}, {v(B)}
        v_cvt_pk_bf16_f32 {v(B)}, {v(B)}, {v(B)}
        v_lshlrev_b32 {v(B)}, 16, {v(B)}
        v_sqrt_f32 {v(B)}, {v(B)}
        v_cvt_pk_bf16_f32 {v(B)}, {v(B)}, {v(B)}
        v_lshlrev_b32 {v(B)}, 16, {v(B)}
        v_lshlrev_b32 {v(T)}, 3, {v(R+12)}
        v_add_u32 {v(T)}, {WS_STATS}, {v(T)}
        v_mov_b32 {v(U)}, {OOB}
        v_cmp_eq_u32 vcc, 0, {v(R+13)}
        v_cndmask_b32 {v(T)}, {v(U)}, {v(T)}, vcc
        """)
        if split:
            L += I(f'v_mov_b32 v116, {v(A)}\nv_mov_b32 v117, {v(A+1)}\nv_mov_b32 v122, {v(T)}')
            return L, I(f'buffer_store_dwordx2 v[116:117], v122, {s(SRD_WS,4)}, 0 offen sc1', tag='pstore')
        L += I(f'buffer_store_dwordx2 {v(A,2)}, {v(T)}, {s(SRD_WS,4)}, 0 offen sc1', tag='wstore')
        return L

    PK_K, PK_V, PK_W, PK_A, PK_T, PK_OUT = 144, 172, 188, 204, 214, 128
    PT = 114688
    PKL_K, PKL_V, PKL_W = 114688, 126976, 139264
    def p_kv_load(self):
        A = self.PK_A
        L = I(f"""
        s_lshl_b32 {s(S_T0)}, {s(S_T64)}, 6
        s_sub_u32 {s(S_T1)}, {s(S_T0)}, 3
        s_mul_i32 {s(S_T1)}, {s(S_T1)}, 1280
        s_mul_i32 {s(S_T0)}, {s(S_T0)}, 1280
        s_mul_i32 {s(S_T2)}, {s(S_CS)}, 160
        s_mov_b32 {s(S_T3)}, 0x1999999a
        s_lshl_b32 {s(S_T4)}, {s(S_WAVE)}, 6
        s_lshl_b32 {s(S_T5)}, {s(S_WAVE)}, 10
        """)
        for j in range(3):
            L += I(f"""
            v_add_u32 {v(A)}, {s(S_T4)}, v1
            v_add_u32 {v(A)}, {256*j}, {v(A)}
            v_mul_hi_u32 {v(A+1)}, {v(A)}, {s(S_T3)}
            v_mul_u32_u24 {v(A+2)}, 10, {v(A+1)}
            v_sub_u32 {v(A+2)}, {v(A)}, {v(A+2)}
            v_mul_u32_u24 {v(A+1)}, 1280, {v(A+1)}
            v_lshl_add_u32 {v(A+1)}, {v(A+2)}, 4, {v(A+1)}
            v_add_u32 {v(A+1)}, {s(S_T2)}, {v(A+1)}
            v_add_u32 {v(A+3)}, {s(S_T1)}, {v(A+1)}
            v_add_u32 {v(A+4)}, {s(S_T0)}, {v(A+1)}
            v_mov_b32 {v(A+5)}, {OOB}
            v_cmp_gt_u32 vcc, 670, {v(A)}
            v_cndmask_b32 {v(A+3)}, {v(A+5)}, {v(A+3)}, vcc
            v_cmp_gt_u32 vcc, 640, {v(A)}
            v_cndmask_b32 {v(A+4)}, {v(A+5)}, {v(A+4)}, vcc
            s_add_u32 m0, {s(S_T5)}, {self.PKL_K + 4096*j}
            """)
            L += I(f'buffer_load_dwordx4 {v(A+3)}, {s(SRD_K,4)}, 0 offen{NT} lds', tag='kvdma')
            L += I(f's_add_u32 m0, {s(S_T5)}, {self.PKL_V + 4096*j}')
            L += I(f'buffer_load_dwordx4 {v(A+4)}, {s(SRD_V,4)}, 0 offen{NT} lds', tag='kvdma')
        L += I(f"""
        s_mul_i32 {s(S_T2)}, {s(S_CS)}, 640
        v_lshl_add_u32 {v(A)}, v1, 4, {s(S_T2)}
        v_mov_b32 {v(A+5)}, {OOB}
        v_cmp_gt_u32 vcc, 40, v1
        v_cndmask_b32 {v(A)}, {v(A+5)}, {v(A)}, vcc
        s_mov_b32 m0, {self.PKL_W}
        """)
        L += I(f'buffer_load_dwordx4 {v(A)}, {s(SRD_H,4)}, 0 offen lds', tag='kvdma')
        return L
    def p_kv_fetch(self):
        K, V_, W, A = self.PK_K, self.PK_V, self.PK_W, self.PK_A
        L = I(f"""
        v_mul_u32_u24 {v(A+9)}, 6554, v0
        v_lshrrev_b32 {v(A+9)}, 16, {v(A+9)}
        v_mul_u32_u24 {v(A+8)}, 10, {v(A+9)}
        v_sub_u32 {v(A+8)}, v0, {v(A+8)}
        v_min_u32 {v(A)}, 15, {v(A+9)}
        v_mul_u32_u24 {v(A)}, 640, {v(A)}
        v_lshl_add_u32 {v(A)}, {v(A+8)}, 4, {v(A)}
        v_add_u32 {v(A+1)}, {self.PKL_V}, {v(A)}
        v_add_u32 {v(A)}, {self.PKL_K}, {v(A)}
        v_lshlrev_b32 {v(A+2)}, 6, {v(A+8)}
        v_add_u32 {v(A+2)}, {self.PKL_W}, {v(A+2)}
        """)
        for i in range(7): L += I(f'ds_read_b128 {v(K+4*i,4)}, {v(A)} offset:{160*i}')
        for i in range(4): L += I(f'ds_read_b128 {v(W+4*i,4)}, {v(A+2)} offset:{16*i}')
        for i in range(4): L += I(f'ds_read_b128 {v(V_+4*i,4)}, {v(A+1)} offset:{160*i}')
        return L
    def p_kv_compute(self, packed=True):
        K, V_, W, A, T = self.PK_K, self.PK_V, self.PK_W, self.PK_A, self.PK_T
        KU, VU, WU, AC, OUT = T, T + 14, T + 22, T + 30, self.PK_OUT
        L = []
        for dd in range(4):
            for r in range(7):
                L += I(f'v_lshlrev_b32 {v(KU+2*r)}, 16, {v(K+4*r+dd)}\nv_and_b32 {v(KU+2*r+1)}, 0xffff0000, {v(K+4*r+dd)}')
            for j in range(4):
                for h in range(2):
                    src = W + 4 * dd + 2 * h + (j >> 1)
                    L += I(f'v_and_b32 {v(WU+2*j+h)}, 0xffff0000, {v(src)}' if j & 1 else f'v_lshlrev_b32 {v(WU+2*j+h)}, 16, {v(src)}')
            for r in range(4):
                L += I(f'v_lshlrev_b32 {v(VU+2*r)}, 16, {v(V_+4*r+dd)}\nv_and_b32 {v(VU+2*r+1)}, 0xffff0000, {v(V_+4*r+dd)}')
            for t in range(4):
                for h in range(2): L += I(f'v_mul_f32 {v(AC+2*t+h)}, {v(KU+2*t+h)}, {v(WU+6+h)}')
            for j in (2, 1, 0):
                for t in range(4):
                    for h in range(2): L += I(f'v_fmac_f32 {v(AC+2*t+h)}, {v(KU+2*(t+3-j)+h)}, {v(WU+2*j+h)}')
            for t in range(4):
                for h in range(2): L += I(f'v_mul_f32 {v(AC+2*t+h)}, {v(AC+2*t+h)}, {v(VU+2*t+h)}')
            for h in range(2):
                ch = 2 * dd + h
                L += I(f'v_cvt_pk_bf16_f32 {v(OUT+2*ch)}, {v(AC+h)}, {v(AC+2+h)}\nv_cvt_pk_bf16_f32 {v(OUT+2*ch+1)}, {v(AC+4+h)}, {v(AC+6+h)}')
        L += I(f"""
        v_and_b32 {v(T)}, 14, {v(A+8)}
        v_xor_b32 {v(T)}, {v(T)}, {v(A+9)}
        v_lshlrev_b32 {v(T)}, 3, {v(T)}
        v_lshl_add_u32 {v(T)}, {v(A+8)}, 10, {v(T)}
        v_mov_b32 {v(T+1)}, 12288
        v_cmp_gt_u32 vcc, 160, v0
        v_cndmask_b32 {v(T)}, {v(T+1)}, {v(T)}, vcc
        v_add_u32 {v(T)}, {self.PT}, {v(T)}
        """)
        for i in range(8): L += I(f'ds_write_b64 {v(T)}, {v(OUT+2*i,2)} offset:{128*i}')
        L1 = L
        L = I(f"""
        v_lshrrev_b32 {v(T)}, 3, v0
        v_and_b32 {v(T+1)}, 7, v0
        v_lshrrev_b32 {v(T+2)}, 6, v0
        v_lshlrev_b32 {v(T+4)}, 1, {v(T+1)}
        v_lshlrev_b32 {v(T+5)}, 7, {v(T)}
        v_add_u32 {v(T+5)}, {self.PT}, {v(T+5)}
        """)
        for i in range(3):
            L += I(f"""
            v_add_u32 {v(T+3)}, {4*i}, {v(T+2)}
            v_and_b32 {v(T+3)}, 14, {v(T+3)}
            v_xor_b32 {v(T+3)}, {v(T+3)}, {v(T+4)}
            v_lshl_add_u32 {v(T+3)}, {v(T+3)}, 3, {v(T+5)}
            ds_read_b128 {v(OUT+4*i,4)}, {v(T+3)} offset:{4096*i}
            """)
        L += I(f"""
        s_mul_i32 {s(S_T0)}, {s(S_CS)}, {80*4096}
        s_lshl_b32 {s(S_T1)}, {s(S_T64)}, 7
        s_add_u32 {s(S_T0)}, {s(S_T0)}, {s(S_T1)}
        s_add_u32 {s(S_T0)}, {s(S_T0)}, {WS_KVT}
        v_lshlrev_b32 {v(T+6)}, 12, {v(T)}
        v_lshl_add_u32 {v(T+6)}, {v(T+1)}, 4, {v(T+6)}
        v_add_u32 {v(T+7)}, {32*4096}, {v(T+6)}
        v_add_u32 {v(T+8)}, {64*4096}, {v(T+6)}
        v_mov_b32 {v(T+9)}, {OOB}
        v_cmp_gt_u32 vcc, 128, v0
        v_cndmask_b32 {v(T+8)}, {v(T+9)}, {v(T+8)}, vcc
        """)
        for i in range(3):
            L += I(f'buffer_store_dwordx4 {v(OUT+4*i,4)}, {v(T+6+i)}, {s(SRD_WS,4)}, {s(S_T0)} offen sc1', tag='pstore')
        return L1, L

    W2STG = 140288
    def p_w2_load(self, T):
        L = I(f"""
        s_mov_b32 {s(S_DIS)}, 0
        s_sub_u32 {s(S_T0)}, {s(S_ID)}, {NA}
        s_lshl_b32 {s(S_T0)}, {s(S_T0)}, 2
        s_add_u32 {s(S_T0)}, {s(S_T0)}, {s(S_WAVE)}
        s_mul_i32 {s(S_T1)}, {s(S_T0)}, 1366
        s_lshr_b32 {s(S_T1)}, {s(S_T1)}, 16
        s_mul_i32 {s(S_T2)}, {s(S_T1)}, 48
        s_sub_u32 {s(S_T2)}, {s(S_T0)}, {s(S_T2)}
        s_mul_i32 {s(S_T2)}, {s(S_T2)}, {32*1280}
        s_mul_i32 {s(S_T1)}, {s(S_T1)}, 160
        s_add_u32 {s(S_T2)}, {s(S_T2)}, {s(S_T1)}
        s_mul_i32 {s(S_W2OFF)}, {s(S_T0)}, 5120
        s_add_u32 {s(S_W2OFF)}, {s(S_W2OFF)}, {WS_W2T}
        s_mul_i32 {s(S_T3)}, {s(S_WAVE)}, 5120
        s_add_u32 {s(S_T3)}, {s(S_T3)}, {self.W2STG}
        s_mov_b32 {s(S_T1)}, 0x1999999a
        """)
        for n in range(5):
            comp = 1024 * n if n < 4 else 0
            L += I(f"""
            v_add_u32 {v(T)}, {64*n}, v1
            v_mul_hi_u32 {v(T+1)}, {v(T)}, {s(S_T1)}
            v_mul_u32_u24 {v(T+2)}, 10, {v(T+1)}
            v_sub_u32 {v(T+2)}, {v(T)}, {v(T+2)}
            v_mul_u32_u24 {v(T+1)}, 1280, {v(T+1)}
            v_lshl_add_u32 {v(T+1)}, {v(T+2)}, 4, {v(T+1)}
            v_subrev_u32 {v(T+8+n)}, {comp}, {v(T+1)}
            v_or_b32 {v(T+8+n)}, {s(S_DIS)}, {v(T+8+n)}
            """)
        L += I(f's_mov_b32 m0, {s(S_T3)}')
        for n in range(4): L += I(f'buffer_load_dwordx4 {v(T+8+n)}, {s(SRD_W2,4)}, {s(S_T2)} offen offset:{1024*n}{NT} lds', tag='w2slab')
        L += I(f's_add_u32 m0, {s(S_T3)}, 4096')
        L += I(f'buffer_load_dwordx4 {v(T+12)}, {s(SRD_W2,4)}, {s(S_T2)} offen{NT} lds', tag='w2slab')
        L += I(f"""
        v_bfe_u32 {v(T)}, v1, 5, 1
        v_lshlrev_b32 {v(T)}, 4, {v(T)}
        v_bfe_u32 {v(T+1)}, v1, 4, 1
        v_lshl_add_u32 {v(T)}, {v(T+1)}, 2, {v(T)}
        v_bfe_u32 {v(T+1)}, v1, 2, 2
        v_add_u32 {v(T)}, {v(T)}, {v(T+1)}
        v_mul_u32_u24 {v(T)}, 160, {v(T)}
        v_and_b32 {v(T+1)}, 3, v1
        v_lshl_add_u32 {v(T)}, {v(T+1)}, 3, {v(T)}
        v_add_u32 {v(T+13)}, {s(S_T3)}, {v(T)}
        v_lshlrev_b32 {v(T+14)}, 4, v1
        v_or_b32 {v(T+14)}, {s(S_DIS)}, {v(T+14)}
        """)
        return L
    def p_w2_store(self, T):
        L = [waitvm('w2slab')]
        for ct in range(5):
            for al in range(2): L += I(f'ds_read_b64_tr_b16 {a_(4*ct+2*al,2)}, {v(T+13)} offset:{al*1280 + ct*32}')
        L += I(f'v_mov_b32 v123, {v(T+14)}')
        S_ = []
        for ct in range(5):
            if ct == 4:
                S_ += I(f's_add_u32 {s(S_W2OFF)}, {s(S_W2OFF)}, 4096')
                S_ += I(f'buffer_store_dwordx4 {a_(4*ct,4)}, v123, {s(SRD_WS,4)}, {s(S_W2OFF)} offen sc1', tag='pstore')
            else:
                S_ += I(f'buffer_store_dwordx4 {a_(4*ct,4)}, v123, {s(SRD_WS,4)}, {s(S_W2OFF)} offen offset:{1024*ct} sc1', tag='pstore')
        return L, S_

    XST, WST, CSA = 0, 65536, 160768
    NST = 4
    G_XD, G_WD, G_XA, G_XB, G_WA, G_WC = 2, 6, 9, 13, 17, 18
    G_ACC, G_XF, G_WF, G_CSF, G_CS = 20, 68, 76, 100, 112
    G_ONE = 156
    def g1_setup(self, T):
        XD, WD, XA, XB, WA, WC = self.G_XD, self.G_WD, self.G_XA, self.G_XB, self.G_WA, self.G_WC
        L = I(f"""
        v_lshrrev_b32 {v(T)}, 3, v1
        v_and_b32 {v(T+1)}, 7, v1
        v_lshrrev_b32 {v(T+2)}, 4, v1
        s_lshl_b32 {s(S_T0)}, {s(S_WAVE)}, 5
        v_add_u32 {v(T)}, {s(S_T0)}, {v(T)}
        v_mul_u32_u24 {v(T)}, 1280, {v(T)}
        v_xor_b32 {v(T+3)}, {v(T+1)}, {v(T+2)}
        v_add_u32 {v(T+4)}, 4, {v(T+2)}
        v_xor_b32 {v(T+4)}, {v(T+1)}, {v(T+4)}
        v_lshl_add_u32 {v(XD)}, {v(T+3)}, 4, {v(T)}
        v_lshl_add_u32 {v(T+4)}, {v(T+4)}, 4, {v(T)}
        v_add_u32 {v(XD+1)}, {10240-1024}, {v(T+4)}
        v_add_u32 {v(XD+2)}, {20480-2048}, {v(XD)}
        v_add_u32 {v(XD+3)}, {30720-3072}, {v(T+4)}
        s_mul_i32 {s(S_XOFF)}, {s(S_T)}, 163840
        s_lshl_b32 {s(S_XM0)}, {s(S_WAVE)}, 12
        s_mul_i32 {s(S_WOFF)}, {s(S_FS)}, 192
        s_mul_i32 {s(S_WM0)}, {s(S_WAVE)}, 3072
        s_add_u32 {s(S_WM0)}, {s(S_WM0)}, {self.WST}
        s_mul_i32 {s(S_T0)}, {s(S_WAVE)}, 192
        s_mov_b32 {s(S_T1)}, 0x15555556
        """)
        for i in range(3):
            L += I(f"""
            v_add_u32 {v(T)}, {s(S_T0)}, v1
            v_add_u32 {v(T)}, {64*i}, {v(T)}
            v_mul_hi_u32 {v(T+1)}, {v(T)}, {s(S_T1)}
            v_mul_u32_u24 {v(T+2)}, 12, {v(T+1)}
            v_sub_u32 {v(T+2)}, {v(T)}, {v(T+2)}
            v_mul_u32_u24 {v(T+1)}, 3072, {v(T+1)}
            v_lshl_add_u32 {v(T+1)}, {v(T+2)}, 4, {v(T+1)}
            v_subrev_u32 {v(WD+i)}, {1024*i}, {v(T+1)}
            """)
        return L
    def g1_setup2(self, T):
        XA, XB, WA, WC = self.G_XA, self.G_XB, self.G_WA, self.G_WC
        L = I(f"""
        v_and_b32 {v(T)}, 31, v1
        v_lshrrev_b32 {v(T+1)}, 5, v1
        v_bfe_u32 {v(T+2)}, v1, 1, 3
        v_lshlrev_b32 {v(T)}, 7, {v(T)}
        v_add_u32 {v(T)}, {s(S_XM0)}, {v(T)}
        """)
        for ks in range(4):
            L += I(f"""
            v_add_u32 {v(T+3)}, {2*ks}, {v(T+1)}
            v_xor_b32 {v(T+3)}, {v(T+3)}, {v(T+2)}
            v_lshl_add_u32 {v(XA+ks)}, {v(T+3)}, 4, {v(T)}
            """)
        L += I(f"""
        v_lshrrev_b32 {v(T)}, 5, v1
        v_lshlrev_b32 {v(T)}, 3, {v(T)}
        v_bfe_u32 {v(T+1)}, v1, 2, 2
        v_add_u32 {v(T)}, {v(T)}, {v(T+1)}
        v_mul_u32_u24 {v(T)}, 192, {v(T)}
        v_bfe_u32 {v(T+1)}, v1, 4, 1
        v_lshl_add_u32 {v(T)}, {v(T+1)}, 5, {v(T)}
        v_and_b32 {v(T+1)}, 3, v1
        v_lshl_add_u32 {v(T)}, {v(T+1)}, 3, {v(T)}
        v_add_u32 {v(WA)}, {self.WST}, {v(T)}
        s_mul_i32 {s(S_T0)}, {s(S_WAVE)}, 3072
        v_add_u32 {v(WC)}, {s(S_T0)}, {v(WA)}
        """)
        return L
    def g1_dma(self, c):
        XD, WD = self.G_XD, self.G_WD
        stg = c % self.NST
        L = [f's_add_u32 m0, {s(S_XM0)}, {self.XST + stg*16384}']
        for i in range(4): L.append(f'buffer_load_dwordx4 {v(XD+i)}, {s(SRD_Q,4)}, {s(S_XOFF)} offen offset:{1024*i} lds')
        L.append(f's_add_u32 {s(S_XOFF)}, {s(S_XOFF)}, 128')
        L.append(f's_add_u32 m0, {s(S_WM0)}, {stg*12288}')
        for i in range(3): L.append(f'buffer_load_dwordx4 {v(WD+i)}, {s(SRD_W1,4)}, {s(S_WOFF)} offen offset:{1024*i} lds')
        L.append(f's_add_u32 {s(S_WOFF)}, {s(S_WOFF)}, {64*3072}')
        return [Ins(t, tag='g1c%d' % c) for t in L]
    def g1_reads(self, n):
        c, ks = n >> 2, n & 3
        stg = c % self.NST; b = n & 1
        XF, WF = self.G_XF + 4 * b, self.G_WF + 12 * b
        L = [f'ds_read_b128 {v(XF,4)}, {v(self.G_XA+ks)} offset:{stg*16384}']
        for ft in range(3):
            for al in range(2):
                L.append(f'ds_read_b64_tr_b16 {v(WF+4*ft+2*al,2)}, {v(self.G_WA)} offset:{stg*12288 + (16*ks+4*al)*192 + ft*64}')
        return [Ins(t) for t in L]
    def g1_cs_reads(self, c):
        stg = c % self.NST
        return [Ins(f'ds_read_b64_tr_b16 {v(self.G_CSF+4*ft+2*al,2)}, {v(self.G_WC)} offset:{stg*12288 + (4*al)*192 + ft*64}') for ft in range(3) for al in range(2)]
    def g1_cs_mfma(self, first):
        if self.o.get('csdot'):
            out = []
            for ft in range(3):
                grp = [Ins(f'v_dot2c_f32_bf16 {v(self.G_CS+ft)}, {s(S_ONES)}, {v(self.G_CSF+4*ft+i)}') for i in range(4)]
                out.append(grp)
            return out
        return [Ins(f'v_mfma_f32_32x32x16_bf16 {a_(208+16*ft,16)}, {a_(196,4)}, {v(self.G_CSF+4*ft,4)}, ' + ('0' if first else a_(208+16*ft,16))) for ft in range(3)]
    def g1_init(self):
        L = []
        for i in range(48): L += I(f'v_mov_b32 {v(self.G_ACC+i)}, 0')
        if self.o.get('csdot'):
            for i in range(3): L += I(f'v_mov_b32 {v(self.G_CS+i)}, 0')
        return L
    def g1_ones(self):
        return I(f'v_mov_b32 v121, {s(S_ONES)}') + [Ins(f'v_accvgpr_write_b32 {a_(196+i)}, v121') for i in range(4)]
    A_SX, A_SQ = 100, 116
    def g1_stat(self, n):
        XF = self.G_XF + 4 * (n & 1)
        c1 = '0' if n == 0 else a_(self.A_SX, 16); c2 = '0' if n == 0 else a_(self.A_SQ, 16)
        return [Ins(f'v_mfma_f32_32x32x16_bf16 {a_(self.A_SX,16)}, {a_(196,4)}, {v(XF,4)}, {c1}'),
                Ins(f'v_mfma_f32_32x32x16_bf16 {a_(self.A_SQ,16)}, {v(XF,4)}, {v(XF,4)}, {c2}')]
    def g1_stat_final(self):
        L = I(f"""
        v_bfe_u32 v126, v1, 3, 2
        v_lshlrev_b32 v126, 2, v126
        v_and_b32 v127, 3, v1
        v_add_u32 v126, v126, v127
        v_mov_b32 v117, 0
        """)
        for r in range(16):
            L += I(f'v_accvgpr_read_b32 v125, {a_(self.A_SQ+r)}\nv_cmp_eq_u32 vcc, {r}, v126\nv_cndmask_b32 v117, v117, v125, vcc')
        L += I(f"""
        v_bfe_u32 v126, v1, 2, 1
        v_lshrrev_b32 v127, 5, v1
        v_cmp_eq_u32 vcc, v126, v127
        v_cndmask_b32 v117, 0, v117, vcc
        v_mov_b32 v127, v117
        v_accvgpr_read_b32 v116, {a_(self.A_SX)}
        v_permlane32_swap_b32 v117, v127
        v_add_f32 v117, v117, v127
        v_mul_f32 v116, {f2h(1.0/640)}, v116
        v_mul_f32 v117, {f2h(1.0/640)}, v117
        v_fma_f32 v117, -v116, v116, v117
        v_max_f32 v117, 0, v117
        v_cvt_pk_bf16_f32 v116, v116, v117
        v_and_b32 v117, 0xffff0000, v116
        v_lshlrev_b32 v116, 16, v116
        v_add_f32 v117, {f2h(1e-5)}, v117
        v_cvt_pk_bf16_f32 v117, v117, v117
        v_lshlrev_b32 v117, 16, v117
        v_sqrt_f32 v117, v117
        v_cvt_pk_bf16_f32 v117, v117, v117
        v_lshlrev_b32 v117, 16, v117
        s_lshl_b32 {s(S_T0)}, {s(S_T)}, 7
        s_lshl_b32 {s(S_T1)}, {s(S_WAVE)}, 5
        s_add_u32 {s(S_T0)}, {s(S_T0)}, {s(S_T1)}
        v_and_b32 v126, 31, v1
        v_add_u32 v126, {s(S_T0)}, v126
        v_lshlrev_b32 v126, 3, v126
        v_add_u32 v126, {WS_STATS}, v126
        v_mov_b32 v127, {OOB}
        v_cmp_gt_u32 vcc, 32, v1
        v_cndmask_b32 v126, v127, v126, vcc
        """)
        return L + I(f'buffer_store_dwordx2 v[116:117], v126, {s(SRD_WS,4)}, 0 offen sc1', tag='hstore')
    def g1_main(self, bg, bgv):
        ACC = self.G_ACC
        out = [waitvm('g1c0'), waitlds()] + I('s_barrier') + self.g1_reads(0)
        for c in range(10):
            main = []
            csr = self.g1_cs_reads(c); csm = self.g1_cs_mfma(c == 0)
            for ks in range(4):
                n = 4 * c + ks
                b = n & 1
                M = [Ins(f'v_mfma_f32_32x32x16_bf16 {v(ACC+16*ft,16)}, {v(self.G_WF+12*b+4*ft,4)}, {v(self.G_XF+4*b,4)}, {v(ACC+16*ft,16)}') for ft in range(3)]
                R = self.g1_reads(n + 1) if n + 1 < 40 else [None] * 7
                R = [r for r in R]
                def RR(a, b_): return [r for r in R[a:b_] if r is not None]
                C2 = csr[2*ks:2*ks+2] if ks < 3 else []
                if self.o.get('mstat'):
                    ST = self.g1_stat(n)
                    if ks == 0:
                        main += [M[0]] + RR(0, 2) + [M[1]] + RR(2, 4) + [M[2]] + RR(4, 6) + [ST[0]] + RR(6, 7) + C2[:1] + [ST[1]] + C2[1:]
                    elif ks < 3:
                        main += [M[0]] + RR(0, 2) + [M[1]] + RR(2, 4) + [M[2]] + RR(4, 6) + [ST[0]] + RR(6, 7) + [ST[1]] + C2[:1] + [csm[ks-1]] + C2[1:]
                    else:
                        pre = ([waitvm('g1c%d' % (c + 1)), waitlds()] + I('s_barrier')) if n + 1 < 40 else []
                        main += [M[0]] + pre + RR(0, 2) + [csm[2]] + RR(2, 4) + [M[1]] + RR(4, 6) + [ST[0]] + RR(6, 7) + [M[2], ST[1]]
                elif ks == 0:
                    main += [M[0]] + RR(0, 3) + [M[1]] + RR(3, 5) + C2[:1] + [M[2]] + RR(5, 7) + C2[1:]
                elif ks < 3:
                    main += [M[0]] + RR(0, 3) + [M[1]] + RR(3, 5) + [M[2]] + RR(5, 7) + [csm[ks-1]] + C2
                else:
                    pre = ([waitvm('g1c%d' % (c + 1)), waitlds()] + I('s_barrier')) if n + 1 < 40 else []
                    main += [M[0]] + pre + RR(0, 3) + [csm[2]] + RR(3, 5) + [M[1]] + RR(5, 7) + [M[2]]
            flat = []
            for i in main:
                if isinstance(i, list): flat += i
                else: flat.append(i)
            main = flat
            B = list(bg.get(c, []))
            out += self.ts('g1 c%d' % c)
            m1 = merge(main, B, 0.0, 0.7 if self.o.get('mstat') else (0.75 if self.o.get('csdot') else 0.74))
            bar = [k for k, i in enumerate(m1) if i.op == 's_barrier']
            if bar:
                cut = bar[-1]
                while m1[cut - 1].kind in ('waitvm', 'waitlds'): cut -= 1
                out += merge_time(m1[:cut], bgv.get(c, []), 0.5 if c == 0 else 0.02, 0.98) + m1[cut:]
            else:
                out += merge_time(m1, bgv.get(c, []), 0.02, 0.98)
        return out
    def g1_epilogue(self, bg, ldsbg=None):
        ACC = self.G_ACC
        ST_, B1, AX, BX, RS, AD = 116, 118, 76, 88, 92, 94
        CS = self.G_CS
        L = I(f"""
        v_and_b32 {v(AD)}, 31, v1
        v_lshlrev_b32 {v(AD)}, 2, {v(AD)}
        v_add_u32 {v(AD)}, {self.CSA}, {v(AD)}
        s_mul_i32 {s(S_T0)}, {s(S_WAVE)}, 384
        v_add_u32 {v(AD+1)}, {s(S_T0)}, {v(AD)}
        """)
        if self.o.get('csdot'):
            for ft in range(3): L += I(f'v_mov_b32 {v(100+ft)}, {v(CS+ft)}')
            for ft in range(3): L += I(f'v_permlane32_swap_b32 {v(CS+ft)}, {v(100+ft)}')
            for ft in range(3): L += I(f'v_add_f32 {v(CS+ft)}, {v(CS+ft)}, {v(100+ft)}')
        else:
            for ft in range(3): L += I(f'v_accvgpr_read_b32 {v(CS+ft)}, {a_(208+16*ft)}')
        for ft in range(3): L += I(f'ds_write_b32 {v(AD+1)}, {v(CS+ft)} offset:{128*ft}')
        L += [waitlds()] + I('s_barrier') + self.ts('ep: barrier')
        for w in range(4):
            for ft in range(3): L += I(f'ds_read_b32 {v(100+3*w+ft)}, {v(AD)} offset:{384*w + 128*ft}')
        L += I(f"""
        v_cmp_gt_u32 vcc, 32, v1
        v_rcp_f32 {v(RS)}, {v(ST_+1)}
        v_xor_b32 {v(BX)}, 0x80000000, {v(ST_)}
        v_lshrrev_b32 {v(BX+1)}, 16, {v(BX)}
        v_or_b32 {v(BX)}, {v(BX)}, {v(BX+1)}
        v_lshrrev_b32 {v(BX+1)}, 16, {v(ST_+1)}
        v_mov_b32 {v(BX+2)}, 0
        v_mov_b32 {v(BX+3)}, 0
        """)
        for ft in range(3):
            a = AX + 4 * ft; cs = CS + ft
            L += I(f"""
            v_add_f32 {v(cs)}, {v(100+ft)}, {v(103+ft)}
            v_add_f32 {v(a)}, {v(106+ft)}, {v(109+ft)}
            v_add_f32 {v(cs)}, {v(cs)}, {v(a)}
            v_cvt_pk_bf16_f32 {v(a)}, {v(cs)}, {v(cs)}
            v_lshlrev_b32 {v(a+1)}, 16, {v(a)}
            v_sub_f32 {v(a+1)}, {v(cs)}, {v(a+1)}
            v_cvt_pk_bf16_f32 {v(a)}, {v(cs)}, {v(a+1)}
            v_cndmask_b32 {v(a)}, 0, {v(a)}, vcc
            v_cndmask_b32 {v(a+1)}, 0, {v(B1+ft)}, vcc
            v_mov_b32 {v(a+2)}, 0
            v_mov_b32 {v(a+3)}, 0
            v_mfma_f32_32x32x16_bf16 {v(ACC+16*ft,16)}, {v(a,4)}, {v(BX,4)}, {v(ACC+16*ft,16)}
            """)
        L += I(f"""
        s_lshl_b32 {s(S_T0)}, {s(S_T)}, 3
        s_lshl_b32 {s(S_T1)}, {s(S_WAVE)}, 1
        s_add_u32 {s(S_T0)}, {s(S_T0)}, {s(S_T1)}
        s_mul_i32 {s(S_T0)}, {s(S_T0)}, {48*1024}
        s_mul_i32 {s(S_T1)}, {s(S_FS)}, 3072
        s_add_u32 {s(S_T0)}, {s(S_T0)}, {s(S_T1)}
        s_add_u32 {s(S_T4)}, {s(S_T0)}, {WS_H}
        v_bfe_u32 {v(AD)}, v1, 4, 1
        v_mul_u32_u24 {v(AD)}, {48*1024}, {v(AD)}
        v_lshrrev_b32 {v(AD+1)}, 5, v1
        v_lshl_add_u32 {v(AD)}, {v(AD+1)}, 8, {v(AD)}
        v_and_b32 {v(AD+1)}, 15, v1
        v_lshl_add_u32 {v(AD)}, {v(AD+1)}, 4, {v(AD)}
        """)
        E = []
        for ft in range(3):
            A = ACC + 16 * ft
            for cc in range(2):
                for p in range(4 * cc, 4 * cc + 4):
                    r = A + 2 * p
                    E += I(f"""
                    v_max_f32 {v(r)}, 0, {v(r)}
                    v_max_f32 {v(r+1)}, 0, {v(r+1)}
                    v_pk_mul_f32 {v(r,2)}, {v(r,2)}, {v(RS,2)} op_sel_hi:[1,0]
                    v_pk_mul_f32 {v(r,2)}, {v(r,2)}, {v(r,2)}
                    """)
                for d in range(4):
                    r = A + 8 * cc + 2 * d
                    E += I(f'v_cvt_pk_bf16_f32 {v(A+8*cc+d)}, {v(r)}, {v(r+1)}')
                E += I(f'buffer_store_dwordx4 {v(A+8*cc,4)}, {v(AD)}, {s(SRD_WS,4)}, {s(S_T4)} offen offset:{1024*ft + 512*cc} sc1', tag='hstore')
        if ldsbg: E = merge(E, ldsbg)
        return L + self.ts('ep: xmfma') + merge_time(E, bg)

    def w2_setup(self, vaddr):
        return I(f"""
        s_mul_i32 {s(S_W2OFF)}, {s(S_CS)}, {48*5120}
        s_mul_i32 {s(S_T0)}, {s(S_WAVE)}, {12*5120}
        s_add_u32 {s(S_W2OFF)}, {s(S_W2OFF)}, {s(S_T0)}
        s_add_u32 {s(S_W2OFF)}, {s(S_W2OFF)}, {WS_W2T + (20480 if self.rot else 0)}
        v_lshlrev_b32 {v(vaddr)}, 4, v1
        """)
    def w2_load(self, n, vaddr):
        L = I(f'buffer_load_dwordx4 {a_(4*n,4)}, {v(vaddr)}, {s(SRD_WS,4)}, {s(S_W2OFF)} offen offset:{1024*(n%4)} sc1', tag='w2')
        if n % 4 == 3:
            if self.rot and n == 39: L += I(f's_sub_u32 {s(S_W2OFF)}, {s(S_W2OFF)}, {61440 - 4096}')
            else: L += I(f's_add_u32 {s(S_W2OFF)}, {s(S_W2OFF)}, 4096')
        return L

    CWS = 21248
    C_S0, C_S1, C_S2 = 208, 224, 240
    C_ACC, C_XF, C_HF, C_HD, C_XB, C_HB = 20, 52, 116, 132, 136, 137
    def c_dload(self):
        return I(f"""
        s_lshl_b32 {s(S_T0)}, {s(S_ID)}, 2
        s_add_u32 {s(S_T0)}, {s(S_T0)}, {s(S_WAVE)}
        s_lshl_b32 {s(S_T1)}, {s(S_T0)}, 1
        s_and_b32 {s(S_T1)}, {s(S_T1)}, -4
        s_load_dword {s(S_DVAL)}, {s(P_SSMD,2)}, {s(S_T1)}
        """)
    def c_hload(self):
        A = 202
        L = I(f"""
        s_lshl_b32 {s(S_T0)}, {s(S_ID)}, 2
        s_add_u32 {s(S_T0)}, {s(S_T0)}, {s(S_WAVE)}
        s_lshl_b32 {s(S_T0)}, {s(S_T0)}, 12
        v_lshlrev_b32 {v(A)}, 4, v1
        """)
        for i in range(4):
            L += I(f'buffer_load_dwordx4 {v(self.C_S0+4*i,4)}, {v(A)}, {s(SRD_H,4)}, {s(S_T0)} offen offset:{1024*i}{NT}')
        return L
    def c_prep_regs(self):
        S0, S1, S2 = self.C_S0, self.C_S1, self.C_S2
        L = []
        DP = 'row_mask:0xf bank_mask:0xf'
        for i in range(4):
            s0, q2, q3, q1, p2 = S0 + 4*i, S1 + 4*i, S2 + 4*i, 160 + 4*i, 203
            if i == 0:
                L += I(f'v_mov_b32 {v(q2)}, 0\nv_mov_b32 {v(p2)}, 0')
            else:
                L += I(f'v_mov_b32_dpp {v(q2)}, {v(s0-1)} wave_ror:1 {DP}\nv_mov_b32_dpp {v(p2)}, {v(s0-2)} wave_ror:1 {DP}')
            L += I(f"""
            v_mov_b32 {v(q2+1)}, {v(s0)}
            v_mov_b32 {v(q2+2)}, {v(s0+1)}
            v_mov_b32_dpp {v(q2)}, {v(s0+3)} wave_shr:1 {DP}
            v_mov_b32_dpp {v(p2)}, {v(s0+2)} wave_shr:1 {DP}
            v_mov_b32 {v(q2+3)}, {v(s0+2)}
            v_alignbit_b32 {v(q1+1)}, {v(s0+1)}, {v(s0)}, 16
            v_alignbit_b32 {v(q1+2)}, {v(s0+2)}, {v(s0+1)}, 16
            v_alignbit_b32 {v(q1+3)}, {v(s0+3)}, {v(s0+2)}, 16
            v_alignbit_b32 {v(q1)}, {v(s0)}, {v(q2)}, 16
            v_alignbit_b32 {v(q3)}, {v(q2)}, {v(p2)}, 16
            v_mov_b32 {v(q3+2)}, {v(q1+1)}
            v_mov_b32 {v(q3+3)}, {v(q1+2)}
            v_mov_b32 {v(q3+1)}, {v(q1)}
            """)
        return L
    def c_prep_addr(self):
        L = []
        L += I(f"""
        s_mul_i32 {s(S_T0)}, {s(S_WAVE)}, {self.CWS}
        s_add_u32 {s(S_T0)}, {s(S_T0)}, 90112
        s_cmp_eq_u32 {s(S_WAVE)}, 3
        s_cselect_b32 {s(S_T0)}, 32768, {s(S_T0)}
        v_lshlrev_b32 v176, 4, v1
        v_add_u32 v176, {s(S_T0)}, v176
        v_bfe_u32 v177, v1, 1, 2
        v_mul_u32_u24 v177, 4160, v177
        v_and_b32 v178, 1, v1
        v_lshl_add_u32 v177, v178, 4, v177
        v_add_u32 v177, {s(S_T0)}, v177
        v_min_u32 v179, 29, v1
        v_lshlrev_b32 v179, 4, v179
        s_add_u32 {s(S_T0)}, {s(S_T0)}, 16640
        v_add_u32 v179, {s(S_T0)}, v179
        v_mov_b32 v180, 0
        v_mov_b32 v181, 0
        v_mov_b32 v182, 0
        v_mov_b32 v183, 0
        """)
        XB, HB, HD = self.C_XB, self.C_HB, self.C_HD
        L += I(f"""
        v_and_b32 v184, 15, v1
        v_lshrrev_b32 v185, 4, v1
        v_lshlrev_b32 {v(XB)}, 5, v184
        v_lshlrev_b32 v186, 4, v185
        v_sub_u32 {v(XB)}, {v(XB)}, v186
        v_add_u32 {v(XB)}, 48, {v(XB)}
        v_add_u32 {v(XB)}, {s(S_T0)}, {v(XB)}
        v_bfe_u32 v187, v1, 2, 2
        v_mul_u32_u24 {v(HB)}, 4160, v187
        v_add_u32 {v(HB)}, {v(HB)}, v186
        v_and_b32 v187, 3, v1
        v_lshl_add_u32 {v(HB)}, v187, 3, {v(HB)}
        s_sub_u32 {s(S_T0)}, {s(S_T0)}, {16640 - 8}
        v_add_u32 {v(HB)}, {s(S_T0)}, {v(HB)}
        s_and_b32 {s(S_T1)}, {s(S_WAVE)}, 1
        s_lshl_b32 {s(S_T1)}, {s(S_T1)}, 4
        s_lshr_b32 {s(S_DVAL)}, {s(S_DVAL)}, {s(S_T1)}
        s_and_b32 {s(S_DVAL)}, {s(S_DVAL)}, 0xffff
        v_lshrrev_b32 v186, 3, v184
        v_add_u32 v186, v186, v185
        v_and_b32 v187, 1, v184
        v_lshlrev_b32 v187, 4, v187
        v_lshlrev_b32 v187, v187, {s(S_DVAL)}
        v_bfe_u32 v188, v184, 1, 2
        v_mov_b32 v189, 99
        v_cmp_eq_u32 vcc, 1, v186
        v_cndmask_b32 v188, v189, v188, vcc
        """)
        for w in range(4): L += I(f'v_cmp_eq_u32 vcc, {w}, v188\nv_cndmask_b32 {v(HD+w)}, 0, v187, vcc')
        return L
    def c_write_copies(self):
        S0, S1, S2 = self.C_S0, self.C_S1, self.C_S2
        L = I('ds_write_b128 v177, v[180:183]\nds_write_b128 v179, v[180:183]')
        for i in range(4):
            L += I(f'ds_write_b128 v176, {v(S0+4*i,4)} offset:{32 + 1024*i}')
            L += I(f'ds_write_b128 v176, {v(160+4*i,4)} offset:{32 + 4160 + 1024*i}')
            L += I(f'ds_write_b128 v176, {v(S1+4*i,4)} offset:{32 + 2*4160 + 1024*i}')
            L += I(f'ds_write_b128 v176, {v(S2+4*i,4)} offset:{32 + 3*4160 + 1024*i}')
        return L
    C_XL = 140
    def c_xload(self):
        L = I(f"""
        s_lshl_b32 {s(S_T0)}, {s(S_ID)}, 2
        s_add_u32 {s(S_T0)}, {s(S_T0)}, {s(S_WAVE)}
        s_lshl_b32 {s(S_T0)}, {s(S_T0)}, 12
        s_add_u32 {s(S_T0)}, {s(S_T0)}, {WS_KVT}
        v_lshlrev_b32 v138, 4, v1
        """)
        for i in range(4): L += I(f'buffer_load_dwordx4 {v(self.C_XL+4*i,4)}, v138, {s(SRD_WS,4)}, {s(S_T0)} offen offset:{1024*i} sc1')
        return L
    def c_xwrite(self):
        return [Ins(f'ds_write_b128 v176, {v(self.C_XL+4*i,4)} offset:{16640 + 480 + 1024*i}') for i in range(4)]
    def c_xread(self, q, b):
        return Ins(f'ds_read_b128 {v(self.C_XF + 32*(q&1) + 4*b, 4)}, {v(self.C_XB)} offset:{512*b + 64*(7-q)}')
    C_AORD = (0, 7, 1, 6, 2, 5, 3, 4)
    def c_hread(self, idx):
        q, a = idx // 8, self.C_AORD[idx % 8]
        r = self.C_HF + 4 * (idx % 4)
        return [Ins(f'ds_read_b64_tr_b16 {v(r+2*al,2)}, {v(self.C_HB)} offset:{512*a + 64*q + 8*(1-al)}') for al in range(2)]
    def c_main(self, bg):
        ACC = self.C_ACC
        out = [self.c_xread(0, b) for b in range(8)]
        for idx in range(3): out += self.c_hread(idx)
        for b in range(8): out += I(f'v_mfma_f32_16x16x32_bf16 {v(ACC+4*b,4)}, {v(self.C_HD,4)}, {v(self.C_XF+4*b,4)}, 0')
        for q in range(8):
            main = []
            for ai, a in enumerate(self.C_AORD):
                idx = 8 * q + ai
                hr = self.C_HF + 4 * (idx % 4)
                first = True
                for b in range(7 - a, -1, -1):
                    main.append(Ins(f'v_mfma_f32_16x16x32_bf16 {v(ACC+4*(a+b),4)}, {v(hr,4)}, {v(self.C_XF+32*(q&1)+4*b,4)}, {v(ACC+4*(a+b),4)}'))
                    if first and idx + 3 < 64: main += self.c_hread(idx + 3)
                    first = False
            xr = [self.c_xread(q + 1, b) for b in range(8)] if q < 7 else []
            if q in (0, 2, 4, 6, 7): out += self.ts('conv q%d' % q)
            m1 = merge(main, xr, 0.0, 0.7)
            out += merge(m1, bg.get(q, []), 0.0, 1.0)
        return out
    def c_post(self):
        ACC = self.C_ACC
        L = I(f"""
        s_lshl_b32 {s(S_T0)}, {s(S_ID)}, 2
        s_add_u32 {s(S_T0)}, {s(S_T0)}, {s(S_WAVE)}
        s_lshl_b32 {s(S_T0)}, {s(S_T0)}, 12
        s_add_u32 {s(S_T0)}, {s(S_T0)}, {WS_YT}
        v_and_b32 v52, 15, v1
        v_lshlrev_b32 v52, 5, v52
        v_bfe_u32 v53, v1, 4, 1
        v_lshl_add_u32 v52, v53, 9, v52
        v_bfe_u32 v53, v1, 5, 1
        v_lshl_add_u32 v52, v53, 4, v52
        """)
        for p in range(4):
            Q = 56 + 4 * p
            a0, a1 = ACC + 8 * p, ACC + 8 * p + 4
            L += I(f"""
            v_cvt_pk_bf16_f32 {v(Q)}, {v(a0)}, {v(a0+1)}
            v_cvt_pk_bf16_f32 {v(Q+1)}, {v(a0+2)}, {v(a0+3)}
            v_cvt_pk_bf16_f32 {v(Q+2)}, {v(a1)}, {v(a1+1)}
            v_cvt_pk_bf16_f32 {v(Q+3)}, {v(a1+2)}, {v(a1+3)}
            v_permlane16_swap_b32 {v(Q)}, {v(Q+2)}
            v_permlane16_swap_b32 {v(Q+1)}, {v(Q+3)}
            """)
            L += I(f'buffer_store_dwordx4 {v(Q,4)}, v52, {s(SRD_WS,4)}, {s(S_T0)} offen offset:{1024*p} sc1', tag='ystore')
        return L

    G2_ACC = (20, 40)
    G2_HR, G2_NR, G2_OFF = 104, 38, 11
    G2_HV = 2
    G2_RA = 5
    F_X, F_B, F_ST, F_Y = 60, 70, 80, 82
    F_PP, F_XU, F_T = 188, 104, 124
    def hreg(self, n): return self.G2_HR + 4 * ((n + self.G2_OFF) % self.G2_NR)
    def g2_setup(self):
        L = I(f"""
        v_lshlrev_b32 v8, 4, v1
        v_add_u32 v2, {4096 if self.rot else 0}, v8
        v_add_u32 v3, {8192 if self.rot else 4096}, v8
        v_add_u32 v4, {0 if self.rot else 8192}, v8
        s_mul_i32 {s(S_T0)}, {s(S_WAVE)}, {12*1024}
        s_add_u32 {s(S_T0)}, {s(S_T0)}, {WS_H}
        s_lshl_b32 {s(S_T1)}, {s(S_T64)}, 2
        """)
        for sg in range(4):
            L += I(f"""
            s_add_u32 {s(S_T2)}, {s(S_WAVE)}, {1+sg}
            s_and_b32 {s(S_T2)}, {s(S_T2)}, 3
            s_add_u32 {s(S_T3)}, {s(S_T1)}, {s(S_T2)}
            s_mul_i32 {s(S_T3)}, {s(S_T3)}, {48*1024}
            s_add_u32 {s(S_HOFF+sg)}, {s(S_T3)}, {s(S_T0)}
            """)
            if sg < 3:
                L += I(f"""
                s_mul_i32 {s(S_T2)}, {s(S_T2)}, 15360
                s_add_u32 {s(S_T2)}, {s(S_T2)}, {5120*sg}
                v_add_u32 {v(self.G2_RA+sg)}, {s(S_T2)}, v8
                """)
        L += I(f's_mul_i32 {s(S_T2)}, {s(S_WAVE)}, 15360\nv_add_u32 v8, {s(S_T2)}, v8')
        return L
    def g2_hload(self, n):
        sg, kk = n // 12, n % 12
        return Ins(f'buffer_load_dwordx4 {v(self.hreg(n),4)}, {v(self.G2_HV + kk//4)}, {s(SRD_WS,4)}, {s(S_HOFF+sg)} offen offset:{1024*(kk%4)} sc1')
    def f_loads(self):
        L = I(f"""
        s_lshl_b32 {s(S_T0)}, {s(S_T64)}, 6
        s_lshl_b32 {s(S_T1)}, {s(S_WAVE)}, 4
        s_add_u32 {s(S_T0)}, {s(S_T0)}, {s(S_T1)}
        v_and_b32 v9, 15, v1
        v_add_u32 v9, {s(S_T0)}, v9
        v_lshrrev_b32 v10, 4, v1
        s_mul_i32 {s(S_T2)}, {s(S_CS)}, 160
        v_lshl_add_u32 v10, v10, 3, {s(S_T2)}
        v_mul_u32_u24 v11, 1280, v9
        v_add_u32 v11, v11, v10
        """)
        for ct in range(5): L += I(f'buffer_load_dwordx2 {v(self.F_X+2*ct,2)}, v11, {s(SRD_Q,4)}, 0 offen offset:{32*ct}')
        for ct in range(5): L += I(f'global_load_dwordx2 {v(self.F_B+2*ct,2)}, v10, {s(P_B2,2)} offset:{32*ct}')
        L += I(f"""
        v_lshlrev_b32 v12, 3, v9
        v_add_u32 v12, {WS_STATS}, v12
        buffer_load_dwordx2 {v(self.F_ST,2)}, v12, {s(SRD_WS,4)}, 0 offen sc1
        """)
        return L
    def f_yloads(self):
        L = I(f"""
        v_lshlrev_b32 v12, 11, v10
        v_lshl_add_u32 v12, v9, 1, v12
        v_add_u32 v12, {WS_YT}, v12
        """)
        for ct in range(5):
            for r in range(4):
                L += I(f's_mov_b32 {s(S_T0)}, {(16*ct + r)*4096}')
                L += I(f'buffer_load_ushort {v(self.F_Y+4*ct+r)}, v12, {s(SRD_WS,4)}, {s(S_T0)} offen sc1')
        return L
    def f_pre(self):
        XU, SU, T, PP = self.F_XU, self.F_Y, self.F_T, self.F_PP
        X, B, ST_ = self.F_X, self.F_B, self.F_ST
        L = I(f"""
        v_rcp_f32 {v(T)}, {v(ST_+1)}
        v_mul_f32 {v(T+1)}, {v(ST_)}, {v(T)}
        v_xor_b32 {v(T+1)}, 0x80000000, {v(T+1)}
        """)
        for p in range(10):
            L += I(f"""
            v_lshlrev_b32 {v(XU+2*p)}, 16, {v(X+p)}
            v_and_b32 {v(XU+2*p+1)}, 0xffff0000, {v(X+p)}
            v_lshlrev_b32 {v(SU+2*p)}, 16, {v(SU+2*p)}
            v_lshlrev_b32 {v(SU+2*p+1)}, 16, {v(SU+2*p+1)}
            v_fma_f32 {v(T+2)}, {v(XU+2*p)}, {v(T)}, {v(T+1)}
            v_fma_f32 {v(T+3)}, {v(XU+2*p+1)}, {v(T)}, {v(T+1)}
            v_mul_f32 {v(SU+2*p)}, {v(SU+2*p)}, {v(T+2)}
            v_mul_f32 {v(SU+2*p+1)}, {v(SU+2*p+1)}, {v(T+3)}
            """)
        P2 = []
        for p in range(10):
            P2 += I(f"""
            v_lshlrev_b32 {v(T+4)}, 16, {v(B+p)}
            v_and_b32 {v(T+5)}, 0xffff0000, {v(B+p)}
            v_add_f32 {v(PP+2*p)}, {v(PP+2*p)}, {v(PP+20+2*p)}
            v_add_f32 {v(PP+2*p+1)}, {v(PP+2*p+1)}, {v(PP+21+2*p)}
            v_add_f32 {v(T+4)}, {v(T+4)}, {v(PP+40+2*p)}
            v_add_f32 {v(T+5)}, {v(T+5)}, {v(PP+41+2*p)}
            v_add_f32 {v(PP+2*p)}, {v(PP+2*p)}, {v(T+4)}
            v_add_f32 {v(PP+2*p+1)}, {v(PP+2*p+1)}, {v(T+5)}
            """)
        return L, P2
    def f_final(self):
        ACC = self.G2_ACC[1]; PP = self.F_PP
        XU, SU, T, X = self.F_XU, self.F_Y, self.F_T, self.F_X
        L = I(f's_mov_b32 {s(S_T0)}, {f2h(-1.4426950408889634)}')
        for ct in range(5):
            for h in range(2):
                p = 2 * ct + h
                U = T + 2 + 2 * (p & 1) + 4
                L += I(f"""
                v_pk_add_f32 {v(ACC+2*p,2)}, {v(ACC+2*p,2)}, {v(PP+2*p,2)}
                v_mul_f32 {v(U)}, {s(S_T0)}, {v(ACC+2*p)}
                v_mul_f32 {v(U+1)}, {s(S_T0)}, {v(ACC+2*p+1)}
                v_exp_f32 {v(U)}, {v(U)}
                v_exp_f32 {v(U+1)}, {v(U+1)}
                v_add_f32 {v(U)}, 1.0, {v(U)}
                v_add_f32 {v(U+1)}, 1.0, {v(U+1)}
                v_rcp_f32 {v(U)}, {v(U)}
                v_rcp_f32 {v(U+1)}, {v(U+1)}
                v_pk_mul_f32 {v(U,2)}, {v(U,2)}, {v(ACC+2*p,2)}
                v_pk_fma_f32 {v(U,2)}, {v(U,2)}, {v(SU+2*p,2)}, {v(XU+2*p,2)}
                v_cvt_pk_bf16_f32 {v(X+p)}, {v(U)}, {v(U+1)}
                """)
            L += I(f'buffer_store_dwordx2 {v(X+2*ct,2)}, v11, {s(SRD_OUT,4)}, 0 offen offset:{32*ct}')
        return L
    def f_pre_ct(self, ct):
        XU, SU, T, PP = self.F_XU, self.F_Y, self.F_T, self.F_PP
        X, B = self.F_X, self.F_B
        L = []
        for p in (2*ct, 2*ct + 1):
            L += I(f"""
            v_lshlrev_b32 {v(T+4)}, 16, {v(B+p)}
            v_and_b32 {v(T+5)}, 0xffff0000, {v(B+p)}
            v_add_f32 {v(PP+2*p)}, {v(PP+2*p)}, {v(PP+20+2*p)}
            v_add_f32 {v(PP+2*p+1)}, {v(PP+2*p+1)}, {v(PP+21+2*p)}
            v_add_f32 {v(T+4)}, {v(T+4)}, {v(PP+40+2*p)}
            v_add_f32 {v(T+5)}, {v(T+5)}, {v(PP+41+2*p)}
            v_add_f32 {v(PP+2*p)}, {v(PP+2*p)}, {v(T+4)}
            v_add_f32 {v(PP+2*p+1)}, {v(PP+2*p+1)}, {v(T+5)}
            """)
        return L
    def f_pre_x(self):
        XU, SU, T = self.F_XU, self.F_Y, self.F_T
        X, ST_ = self.F_X, self.F_ST
        L = I(f"""
        v_rcp_f32 {v(T)}, {v(ST_+1)}
        v_mul_f32 {v(T+1)}, {v(ST_)}, {v(T)}
        v_xor_b32 {v(T+1)}, 0x80000000, {v(T+1)}
        """)
        per = []
        for p in range(10):
            per.append(I(f"""
            v_lshlrev_b32 {v(XU+2*p)}, 16, {v(X+p)}
            v_and_b32 {v(XU+2*p+1)}, 0xffff0000, {v(X+p)}
            v_lshlrev_b32 {v(SU+2*p)}, 16, {v(SU+2*p)}
            v_lshlrev_b32 {v(SU+2*p+1)}, 16, {v(SU+2*p+1)}
            v_fma_f32 {v(T+2)}, {v(XU+2*p)}, {v(T)}, {v(T+1)}
            v_fma_f32 {v(T+3)}, {v(XU+2*p+1)}, {v(T)}, {v(T+1)}
            v_mul_f32 {v(SU+2*p)}, {v(SU+2*p)}, {v(T+2)}
            v_mul_f32 {v(SU+2*p+1)}, {v(SU+2*p+1)}, {v(T+3)}
            """))
        return L, per
    def f_fin_ct(self, ct):
        ACC = self.G2_ACC[1]; PP = self.F_PP
        XU, SU, T, X = self.F_XU, self.F_Y, self.F_T, self.F_X
        L = []
        for h in range(2):
            p = 2 * ct + h
            U = T + 6 + 2 * h
            L += I(f"""
            v_add_f32 {v(ACC+2*p)}, {v(ACC+2*p)}, {v(PP+2*p)}
            v_add_f32 {v(ACC+2*p+1)}, {v(ACC+2*p+1)}, {v(PP+2*p+1)}
            v_mul_f32 {v(U)}, {s(S_T0)}, {v(ACC+2*p)}
            v_mul_f32 {v(U+1)}, {s(S_T0)}, {v(ACC+2*p+1)}
            v_exp_f32 {v(U)}, {v(U)}
            v_exp_f32 {v(U+1)}, {v(U+1)}
            v_add_f32 {v(U)}, 1.0, {v(U)}
            v_add_f32 {v(U+1)}, 1.0, {v(U+1)}
            v_rcp_f32 {v(U)}, {v(U)}
            v_rcp_f32 {v(U+1)}, {v(U+1)}
            v_mul_f32 {v(U)}, {v(U)}, {v(ACC+2*p)}
            v_mul_f32 {v(U+1)}, {v(U+1)}, {v(ACC+2*p+1)}
            v_fma_f32 {v(U)}, {v(U)}, {v(SU+2*p)}, {v(XU+2*p)}
            v_fma_f32 {v(U+1)}, {v(U+1)}, {v(SU+2*p+1)}, {v(XU+2*p+1)}
            v_cvt_pk_bf16_f32 {v(X+p)}, {v(U)}, {v(U+1)}
            """)
        L += I(f'buffer_store_dwordx2 {v(X+2*ct,2)}, v11, {s(SRD_OUT,4)}, 0 offen offset:{32*ct}{OUTMOD}')
        return L
    def g2_main(self, first_unloaded, mid, last):
        out = []
        nxt = first_unloaded
        for sg in range(3):
            ACC = self.G2_ACC[sg & 1]
            for kk in range(12):
                n = sg * 12 + kk
                M = []
                for ct in range(5):
                    c = '0' if kk == 0 else v(ACC + 4 * ct, 4)
                    M.append(Ins(f'v_mfma_f32_16x16x32_bf16 {v(ACC+4*ct,4)}, {a_(20*kk+4*ct,4)}, {v(self.hreg(n),4)}, {c}'))
                B = []
                cnt = 0
                while nxt < 48 and nxt - self.G2_NR <= n - 1 and cnt < 1 and (nxt - first_unloaded) <= n:
                    B.append(self.g2_hload(nxt)); nxt += 1; cnt += 1
                B += mid.get(n, [])
                if sg >= 1 and kk == 1:
                    P = self.G2_ACC[(sg - 1) & 1]
                    B += [Ins(f'ds_write_b128 {v(self.G2_RA+sg-1)}, {v(P+4*ct,4)} offset:{1024*ct}') for ct in range(5)]
                if kk == 0 or n in (1, 4): out += self.ts('g2 n%d' % n)
                out += merge(M, B)
        assert nxt == 48, nxt
        out += self.ts('g2 n36')
        ACC = self.G2_ACC[1]
        P = self.G2_ACC[0]
        px0, pxp = self.f_pre_x()
        setup = I(f's_mov_b32 {s(S_T0)}, {f2h(-1.4426950408889634)}')
        for ct in range(5):
            M = []
            for kk in range(12):
                c = '0' if kk == 0 else v(ACC + 4 * ct, 4)
                M.append(Ins(f'v_mfma_f32_16x16x32_bf16 {v(ACC+4*ct,4)}, {a_(20*kk+4*ct,4)}, {v(self.hreg(36+kk),4)}, {c}'))
            B = []
            if ct == 0:
                B += [Ins(f'ds_write_b128 {v(self.G2_RA+2)}, {v(P+4*c2,4)} offset:{1024*c2}') for c2 in range(5)]
                B += last + [waitlds()] + I('s_barrier')
                for sp in range(3):
                    for c2 in range(2):
                        B.append(Ins(f'ds_read_b128 {v(self.F_PP + 4*(5*sp+c2), 4)}, v8 offset:{5120*sp + 1024*c2}'))
                B += px0 + setup
            else:
                if ct < 4:
                    c2 = ct + 1
                    for sp in range(3): B.append(Ins(f'ds_read_b128 {v(self.F_PP + 4*(5*sp+c2), 4)}, v8 offset:{5120*sp + 1024*c2}'))
                pc = ct - 1
                B += self.f_pre_ct(pc) + pxp[2*pc] + pxp[2*pc+1] + self.f_fin_ct(pc)
            out += merge(M, B)
        out += self.ts('G2 main done')
        out += self.f_pre_ct(4) + pxp[8] + pxp[9] + self.f_fin_ct(4)
        return out

TSNAMES = {}
def build_role(role, o):
    g = Gen(role, o)
    L = []
    def ts(name): return g.ts(name)
    L += ts('entry')
    if o.get('ts'): L += I('s_memrealtime s[6:7]\ns_waitcnt lgkmcnt(0)\nv_writelane_b32 v19, s6, 62')
    if o.get('pfcode'):
        L += I(f"""
        s_getpc_b64 s[6:7]
        """)
        L[-1].text += f'\nLpc_{role}:'
        L += I(f"""
        s_mov_b32 s8, Lend_{role}-Lpc_{role}-4
        v_and_b32 v3, 63, v0
        v_lshlrev_b32 v3, 7, v3
        v_lshrrev_b32 v4, 6, v0
        v_lshl_add_u32 v3, v4, 13, v3
        v_min_u32 v3, s8, v3
        global_load_dword a203, v3, s[6:7]
        """)
    L += g.prologue()
    first = [(SRD_K, P_K, S*D*2), (SRD_V, P_V, S*D*2), (SRD_H, P_SHK, D*4*2), (SRD_Q, P_Q, S*D*2), (SRD_WS, P_WS, WS_BYTES), (SRD_W1, P_W1, D*F*2)]
    if role == 'B': first += [(SRD_W2, P_W2, D*F*2)]
    rest = [(SRD_OUT, P_OUT, S*D*2)] + ([(SRD_H, P_SSMK, S*D*2)] if role == 'A' else [])
    L += g.srds(first)
    L += I(f's_load_dword {s(S_EPOCH)}, {s(P_WS,2)}, {WS_EPOCH}')
    L += ts('prologue')
    if role == 'A': L += g.c_dload()
    if o.get('pfmall'):
        L += I(f"""
        s_lshl_b32 {s(S_T0)}, {s(S_ID)}, 2
        s_add_u32 {s(S_T0)}, {s(S_T0)}, {s(S_WAVE)}
        s_mul_i32 {s(S_T1)}, {s(S_T0)}, 20
        v_min_u32 v20, 19, v1
        v_add_u32 v20, {s(S_T1)}, v20
        v_lshlrev_b32 v20, 7, v20
        buffer_load_dword a204, v20, {s(SRD_Q,4)}, 0 offen
        s_mul_i32 {s(S_T1)}, {s(S_T0)}, 15
        v_min_u32 v20, 14, v1
        v_add_u32 v20, {s(S_T1)}, v20
        v_lshlrev_b32 v20, 7, v20
        buffer_load_dword a205, v20, {s(SRD_W1,4)}, 0 offen
        """)
    L += g.g1_setup(20)
    L += g.g1_dma(0)
    if not o.get('x_g1only'):
        L += g.p_kv_load()
        if role == 'B': L += g.p_w2_load(240)
        if not o.get('mstat'): L += g.p_stat_load(214)
    L += ts('P loads')
    L += merge_time(g.srds(rest) + g.g1_setup2(20) + g.g1_init() + g.g1_ones() + g.make_tag(), g.g1_dma(1) + g.g1_dma(2), 0.0, 1.0)
    L += ts('P done')
    pk1, pk2 = g.p_kv_compute()
    st1, st2 = g.p_stat_compute(214, split=True)
    bg = {c: [] for c in range(10)}
    bgv = {c: [] for c in range(10)}
    for c in range(0, 7): bgv[c] += g.g1_dma(c + 3)
    if o.get('mstat'): st1, st2 = [], []
    bg[0] += st1 + [waitvm('kvdma')]
    stores = st2
    if role == 'B':
        w1_, w2_ = g.p_w2_store(240)
        bg[0] = w1_ + bg[0]
        stores = stores + w2_
    n1 = len(pk1)
    bg[1] += g.p_kv_fetch() + pk1[:n1 // 2]
    bg[2] += pk1[n1 // 2:]
    bg[3] += pk2 + stores
    bg[5] += I(f"""
        s_mul_i32 {s(S_T0)}, {s(S_FS)}, 192
        v_and_b32 v121, 31, v1
        v_lshl_add_u32 v121, v121, 1, {s(S_T0)}
        global_load_ushort v118, v121, {s(P_B1,2)}
        global_load_ushort v119, v121, {s(P_B1,2)} offset:64
        global_load_ushort v120, v121, {s(P_B1,2)} offset:128
        """)
    PW = int(o.get('pw') or 5)
    bg[PW] += [waitvm('pstore')]
    pflag = g.set_flag(WS_FLAG_P, f's_mov_b32 {s(S_T0)}, {s(S_ID)}', 124, 125)
    comb = I(f"""
        s_mul_i32 {s(S_T0)}, {s(S_CS)}, 12
        s_mul_i32 {s(S_T1)}, {s(S_WAVE)}, 3
        s_add_u32 {s(S_T0)}, {s(S_T0)}, {s(S_T1)}
        s_add_u32 {s(S_T0)}, {s(S_T0)}, {NA}
        v_min_u32 v126, 2, v1
        v_add_u32 v126, {s(S_T0)}, v126
        s_lshl_b32 {s(S_T0)}, {s(S_T)}, 7
        s_lshl_b32 {s(S_T1)}, {s(S_WAVE)}, 5
        s_add_u32 {s(S_T0)}, {s(S_T0)}, {s(S_T1)}
        s_and_b32 {s(S_T1)}, {s(S_T0)}, 0xf8
        s_lshr_b32 {s(S_T0)}, {s(S_T0)}, 8
        s_add_u32 {s(S_T0)}, {s(S_T0)}, {s(S_T1)}
        v_and_b32 v127, 3, v1
        v_lshlrev_b32 v127, 3, v127
        v_add_u32 v127, {s(S_T0)}, v127
        v_lshrrev_b32 v125, 2, v1
        v_cmp_eq_u32 vcc, 1, v125
        v_cndmask_b32 v126, v126, v127, vcc
        """)
    if o.get('mstat'): comb = comb[:6]
    if role == 'A':
        comb += I(f"""
        s_mul_i32 {s(S_T0)}, {s(S_ID)}, 3277
        s_lshr_b32 {s(S_T0)}, {s(S_T0)}, 16
        s_lshl_b32 {s(S_T0)}, {s(S_T0)}, 3
        v_and_b32 v127, 3, v1
        v_lshlrev_b32 v127, 6, v127
        v_bfe_u32 v125, v1, 2, 3
        v_add_u32 v127, v127, v125
        v_add_u32 v127, {s(S_T0)}, v127
        v_cmp_lt_u32 vcc, 31, v1
        v_cndmask_b32 v126, v126, v127, vcc
        """)
    comb += I(f"""
        v_lshlrev_b32 v126, 6, v126
        v_add_u32 v126, {WS_FLAG_P}, v126
        buffer_load_dword v127, v126, {s(SRD_WS,4)}, 0 offen sc1
        """)
    w2l = [g.w2_load(n, 139) for n in range(60)]
    k = 0
    stat_ld = I(f"""
        s_lshl_b32 {s(S_T0)}, {s(S_T)}, 7
        s_lshl_b32 {s(S_T1)}, {s(S_WAVE)}, 5
        s_add_u32 {s(S_T0)}, {s(S_T0)}, {s(S_T1)}
        v_and_b32 v126, 31, v1
        v_add_u32 v126, {s(S_T0)}, v126
        v_lshlrev_b32 v126, 3, v126
        v_add_u32 v126, {WS_STATS}, v126
        buffer_load_dwordx2 v[116:117], v126, {s(SRD_WS,4)}, 0 offen sc1
        """)
    if role == 'A':
        bg[5] = g.c_hload() + bg[5]
        pa = g.c_prep_addr()
        bg[5] += pa
        bg[7] = g.c_prep_regs() + bg[7]
    PC = int(o.get('pc') or min(PW + 3, 9))
    bg[PC - 1] += comb
    if o.get('x_w2early'):
        bg[6] += g.w2_setup(139)
        bg[PC] += g.poll(127, 126, 'p') + stat_ld
    else:
        bg[PC] += g.poll(127, 126, 'p') + g.w2_setup(139) + ([] if o.get('mstat') else stat_ld)
    if role == 'A':
        bg[PC] += g.c_xload()
        bg[7] += g.g2_setup()
        cw = g.c_write_copies()
        bg[9] += cw
        per = {9: 5} if PC < 9 else {}
    else:
        per = {9: 7} if PC < 9 else {}
    if o.get('x_w2early'):
        ne = int(o.get('x_w2early'))
        per = {7: ne, 8: ne, 9: ne}
    bg[PW + 1] = pflag + bg[PW + 1]
    for c in sorted(per):
        for _ in range(per[c]): bgv[c] += w2l[k]; k += 1
    if o.get('x_nobg') or o.get('x_g1only'):
        for c in range(10): bg[c] = []
        bgv[9] = []
        g.tail = []
    if o.get('x_nopk'):
        for c in (2, 3, 4): bg[c] = [i for i in bg[c] if i.kind in ('waitvm',) or i.tag == 'flag']
    if o.get('x_stop'):
        L += g.g1_main(bg, bgv) + ts('G1 main done') + [waitvmall()] + ts('end')
        L += I(f"""
        s_lshl_b32 {s(S_T0)}, {s(S_ID)}, 10
        s_lshl_b32 {s(S_T1)}, {s(S_WAVE)}, 8
        s_add_u32 {s(S_T0)}, {s(S_T0)}, {s(S_T1)}
        s_add_u32 {s(S_T0)}, {s(S_T0)}, {WS_TS}
        v_lshlrev_b32 v2, 2, v1
        buffer_store_dword v19, v2, {s(SRD_WS,4)}, {s(S_T0)} offen
        s_endpgm
        """)
        TSNAMES[role] = g.tsnames
        st = Stream(); st.ins = L
        return render(finalize(st)) + ''.join(g.tail) + f'Lend_{role}:\n    s_endpgm\n'
    L += g.g1_main(bg, bgv)
    L += ts('G1 main done')
    if o.get('mstat'): L += g.g1_stat_final()
    gflag = g.set_flag(WS_FLAG_G, f's_lshl_b32 {s(S_T0)}, {s(S_T)}, 4\ns_add_u32 {s(S_T0)}, {s(S_T0)}, {s(S_FS)}', 16, 17)
    hflag_idx = f's_lshr_b32 {s(S_T0)}, {s(S_T64)}, 1\ns_lshl_b32 {s(S_T0)}, {s(S_T0)}, 4\ns_lshl_b32 {s(S_T1)}, {s(S_WAVE)}, 2\ns_add_u32 {s(S_T0)}, {s(S_T0)}, {s(S_T1)}'
    if role == 'A':
        e_bg = []
        for _ in range(11): e_bg += w2l[k]; k += 1
        L += g.g1_epilogue(e_bg, g.c_xwrite())
        L += ts('G1 epilogue')
        cb = {q: [] for q in range(8)}
        cb[2] += [waitvm('hstore')] + I('s_barrier') + gflag
        rem = 60 - k
        qi = 0
        for j in range(rem):
            cb[j * 5 // rem] += w2l[k]; k += 1
        cb[4] = g.flag_load(WS_FLAG_G, hflag_idx, 'v_and_b32 v13, 3, v1', 13, 14) + cb[4]
        cb[5] += g.poll(14, 13, 'g1')
        NPRE = 20
        hp = [g.g2_hload(n) for n in range(NPRE)]
        cb[5] += hp[:6]; cb[6] += hp[6:13]; cb[7] += hp[13:]
        L += g.c_main(cb)
        L += ts('conv main')
        L += g.c_post()
        cflag = [waitvm('ystore')] + I('s_barrier') + g.set_flag(WS_FLAG_C, f's_mov_b32 {s(S_T0)}, {s(S_ID)}', 16, 17)
        first_unl = NPRE
    else:
        e_bg = []
        for _ in range(6): e_bg += w2l[k]; k += 1
        L += g.g1_epilogue(e_bg)
        L += ts('G1 epilogue')
        L += g.g2_setup()
        L += [waitvm('hstore')] + I('s_barrier') + gflag
        while k < 60: L += w2l[k]; k += 1
        L += g.flag_load(WS_FLAG_G, hflag_idx, 'v_and_b32 v13, 3, v1', 13, 14)
        L += g.poll(14, 13, 'g1')
        L += ts('G1 flags')
        L += [g.g2_hload(n) for n in range(38)]
        cflag = I('s_barrier')
        first_unl = 38
    L += ts('G2 start')
    mid = {}
    fl = g.f_loads()
    mid[3] = fl[:11]
    for j in range(4): mid[5 + 2*j] = [fl[11 + j]]
    for j in range(5): mid[13 + 2*j] = [fl[15 + j]]
    mid[23] = fl[20:]
    mid[10] = cflag
    mid[16] = I(f"""
        s_cmp_eq_u32 {s(S_ID)}, 0
        s_cselect_b32 {s(S_T4)}, {s(S_TAG)}, 0
        s_cselect_b32 {s(S_T5)}, 0, {OOB}
        s_lshl_b32 {s(S_T0)}, {s(S_WAVE)}, 6
        v_add_u32 v15, {s(S_T0)}, v1
        v_lshlrev_b32 v15, 6, v15
        v_add_u32 v15, {WS_FLAG_P}, v15
        v_or_b32 v15, {s(S_T5)}, v15
        buffer_load_dword v18, v15, {s(SRD_WS,4)}, 0 offen sc1
        """)
    mid[24] = g.poll(18, 15, 'tk', exp=S_T4)
    epoch_store = I(f"""
        v_mov_b32 v18, {OOB}
        v_mov_b32 v15, {s(S_T5)}
        v_cmp_eq_u32 vcc, 0, v0
        v_cndmask_b32 v15, v18, v15, vcc
        v_mov_b32 v18, {s(S_TAG)}
        buffer_store_dword v18, v15, {s(SRD_WS,4)}, 0 offen sc1
        """)
    mid[22] = g.flag_load(WS_FLAG_C, f's_mul_i32 {s(S_T0)}, {s(S_CS)}, 20', 'v_min_u32 v13, 19, v1', 13, 14)
    yl = g.f_yloads()
    mid[29] = g.poll(14, 13, 'y') + yl[:9]
    for j, n in enumerate(range(30, 35)): mid[n] = yl[9 + 7*j: 9 + 7*(j+1)]
    mid[35] = yl[9 + 35:]
    L += g.g2_main(first_unl, mid, [])
    L += epoch_store
    L += ts('F done')
    if o.get('ts'):
        L += [waitvmall()] + ts('end')
        L += I('s_memrealtime s[6:7]\ns_waitcnt lgkmcnt(0)\nv_writelane_b32 v19, s6, 63')
        L += I(f"""
        s_lshl_b32 {s(S_T0)}, {s(S_ID)}, 10
        s_lshl_b32 {s(S_T1)}, {s(S_WAVE)}, 8
        s_add_u32 {s(S_T0)}, {s(S_T0)}, {s(S_T1)}
        s_add_u32 {s(S_T0)}, {s(S_T0)}, {WS_TS}
        v_lshlrev_b32 v2, 2, v1
        buffer_store_dword v19, v2, {s(SRD_WS,4)}, {s(S_T0)} offen
        """)
        TSNAMES[role] = g.tsnames
    L += I('s_endpgm')
    st = Stream(); st.ins = L
    return render(finalize(st)) + ''.join(g.tail) + f'Lend_{role}:\n    s_endpgm\n'

HEADER = """; Kernarg layout (112 bytes, ptrs only): q k v shift_k ssm_k ssm_D B_x w1 b1 w2 b2 out debug ws
; @launch grid=(256,1,1) block=(256,1,1) lds=163840
.amdgcn_target "amdgcn-amd-amdhsa--gfx950"
.text
.globl {n}_kernel
.p2align 8
.type {n}_kernel,@function
{n}_kernel:
"""
FOOTER = """
.section .rodata,"a"
.p2align 6
.amdhsa_kernel {n}_kernel
  .amdhsa_next_free_vgpr 512
  .amdhsa_next_free_sgpr 102
  .amdhsa_accum_offset 256
  .amdhsa_group_segment_fixed_size 0
  .amdhsa_kernarg_size 112
  .amdhsa_user_sgpr_count 2
  .amdhsa_user_sgpr_kernarg_segment_ptr 1
  .amdhsa_system_sgpr_workgroup_id_x 1
.end_amdhsa_kernel
"""
def build(o):
    global NT, OUTMOD
    OUTMOD = ' sc1' if o.get('outsc1') else (' nt' if o.get('outnt') else '')
    NT = ' nt' if o.get('nt') else ''
    txt = HEADER.format(n=NAME)
    txt += f"""    s_cmp_ge_u32 s2, 256
    s_cbranch_scc1 L_exit
    s_cmp_ge_u32 s2, {NA}
    s_cbranch_scc1 L_roleB
"""
    txt += build_role('A', o)
    txt += "L_exit:\n    s_endpgm\n.p2align 6\nL_roleB:\n"
    txt += build_role('B', o)
    txt += FOOTER.format(n=NAME)
    return txt

if __name__ == '__main__':
    o = {}
    for k in sys.argv[2:]:
        if '=' in k: a, b = k.split('='); o[a] = b
        else: o[k] = True
    out = sys.argv[1] if len(sys.argv) > 1 else 'k.s'
    open(out, 'w').write(build(o))
    if o.get('ts'): json.dump(TSNAMES, open(out + '.ts.json', 'w'))
    print("wrote", out)
```

```python
import sys, struct, json
from asmlib import *

NAME = "recurrent_scan__ssm_conv_h3__dense_activation_squared_relu__prompt"
S, D, F = 2048, 640, 1536
def f2h(x): return '0x%08x' % struct.unpack('<I', struct.pack('<f', x))[0]

WS_EPOCH = 0
WS_FLAG_P = 0x1000
WS_FLAG_G = 0x5000
WS_FLAG_C = 0x9000
WS_FLAG_W = 0xC000
WS_STATS = 0x10000
WS_KVT = 0x100000
WS_YT = 0x400000
WS_H = 0x800000
WS_W2T = 0x1000000
WS_TS = 0x1300000
WS_BYTES = 0x1400000
NA = 160

def v(a, n=1): return 'v%d' % a if n == 1 else 'v[%d:%d]' % (a, a + n - 1)
def a_(a, n=1): return 'a%d' % a if n == 1 else 'a[%d:%d]' % (a, a + n - 1)
def s(a, n=1): return 's%d' % a if n == 1 else 's[%d:%d]' % (a, a + n - 1)

S_ID, S_WAVE, S_TAG = 2, 4, 5
SRD_Q, SRD_K, SRD_V, SRD_W1, SRD_W2, SRD_H, SRD_OUT, SRD_WS = 8, 12, 16, 20, 24, 28, 32, 36
P_Q, P_K, P_V, P_SHK, P_SSMK, P_SSMD, P_BX, P_W1, P_B1, P_W2, P_B2, P_OUT, P_DBG, P_WS = [40 + 2 * i for i in range(14)]
S_T, S_FS, S_T64, S_CS = 68, 69, 70, 71
S_PK, S_DIS = 72, 77
S_XOFF, S_WOFF, S_XM0, S_WM0 = 73, 74, 75, 76
S_W2OFF = 78
S_SPIN = 79
S_T0, S_T1, S_T2, S_T3, S_T4, S_T5 = 80, 81, 82, 83, 84, 85
S_ONES, S_EPOCH = 86, 87
S_MASK = 88
S_DVAL = 90
S_CB = 91
S_HOFF = 92
SRD_DBG = 96
OOB = 0x80000000

def I(text, tag=None): return [Ins(l.strip(), tag=tag) for l in text.strip('\n').split('\n') if l.split(';')[0].strip()]
def waitvm(tag):
    w = Ins('; waitvm'); w.kind = 'waitvm'; w.tag = tag; return w
def waitlds():
    w = Ins('; waitlds'); w.kind = 'waitlds'; return w
def waitvmall():
    w = Ins('; waitvmall'); w.kind = 'waitvmall'; return w

def weight(i):
    if i.kind in ('vmem', 'vmem_st'):
        return 12 if ('x4' in i.op) else 4
    if i.kind in ('waitvm', 'waitlds', 'waitvmall', 'label'): return 0
    return 1

def merge(main, bg, lo=0.0, hi=1.0):
    if not bg: return list(main)
    pos = [k for k, i in enumerate(main) if i.is_mfma()]
    if not pos: pos = list(range(len(main)))
    n = len(pos)
    a, b = int(lo * n), max(int(hi * n), int(lo * n) + 1)
    slots = pos[a:b]
    tot = sum(weight(i) for i in bg) or 1
    after = {}
    cum = 0
    for i in bg:
        k = min(int(cum * len(slots) / tot), len(slots) - 1)
        after.setdefault(slots[k], []).append(i)
        cum += weight(i)
    out = []
    for k, i in enumerate(main):
        out.append(i)
        out += after.get(k, [])
    return out

def est_times(stream):
    t = 0; pipe = 0; out = []
    for i in stream:
        if i.is_mfma():
            t = max(t, pipe); out.append(t)
            pipe = t + (32 if i.kind == 'mfma32' else 16); t += 8
        elif i.kind in ('waitvm', 'waitlds', 'waitvmall', 'label'):
            out.append(t)
        else:
            out.append(t); t += 8 if i.kind == 'trans' else 4
    return out, max(t, pipe)

def merge_time(stream, vm, lo=0.0, hi=1.0):
    if not vm: return list(stream)
    groups = []; cur = []
    for i in vm:
        cur.append(i)
        if i.kind in ('vmem', 'vmem_st'):
            groups.append(cur); cur = []
    if cur:
        if groups: groups[-1] += cur
        else: groups.append(cur)
    times, total = est_times(stream)
    n = len(groups)
    tgt = [total * (lo + (hi - lo) * (k + 0.0) / n) for k in range(n)]
    out = []; k = 0
    for i, t in zip(stream, times):
        while k < n and t >= tgt[k]:
            out += groups[k]; k += 1
        out.append(i)
    while k < n:
        out += groups[k]; k += 1
    return out

NT = ''
OUTMOD = ''
class Gen:
    def __init__(self, role, o):
        self.rot = (role == 'B' and bool(o.get('rot')))
        self.role = role; self.o = o; self.lab = 0; self.tail = []; self.tsnames = []
    def label(self, base):
        self.lab += 1
        return 'L%s_%s%d' % (self.role, base, self.lab)
    def ts(self, name):
        if not self.o.get('ts') or len(self.tsnames) >= 62: return []
        if self.o.get('light') and name not in ('entry', 'prologue', 'P loads', 'pk1 done', 'P done', 'g1 c5', 'G1 main done', 'G1 epilogue', 'conv main', 'G1 flags', 'G2 start', 'g2 n24', 'G2 main done', 'end', 'P stores'): return []
        k = len(self.tsnames); self.tsnames.append(name)
        return I(f's_memtime s[6:7]\ns_waitcnt lgkmcnt(0)\nv_writelane_b32 v19, s6, {k}')

    def flag_load(self, base, sidx_code, lane_code, vaddr, vflag):
        return I(sidx_code) + I(lane_code) + I(f"""
        v_add_u32 {v(vaddr)}, {s(S_T0)}, {v(vaddr)}
        v_lshlrev_b32 {v(vaddr)}, 6, {v(vaddr)}
        v_add_u32 {v(vaddr)}, {base}, {v(vaddr)}
        buffer_load_dword {v(vflag)}, {v(vaddr)}, {s(SRD_WS,4)}, 0 offen sc1
        """)
    def poll(self, vflag, vaddr, nm, exp=None, srd=None):
        exp = S_TAG if exp is None else exp
        srd = SRD_WS if srd is None else srd
        L = self.label('slow' + nm); Lb = self.label('back' + nm)
        br = Ins('s_cbranch_vccnz %s' % L); br.text += '\n%s:' % Lb
        self.tail.append(f"""{L}:
    s_mov_b32 {s(S_SPIN)}, 0
{L}_l:
    s_sleep 1
    buffer_load_dword {v(vflag)}, {v(vaddr)}, {s(srd,4)}, 0 offen sc1
    s_add_u32 {s(S_SPIN)}, {s(S_SPIN)}, 1
    s_cmp_gt_u32 {s(S_SPIN)}, 0x8000
    s_cbranch_scc1 {L}_x
    s_waitcnt vmcnt(0)
    v_cmp_ne_u32 vcc, {s(exp)}, {v(vflag)}
    s_nop 4
    s_cbranch_vccnz {L}_l
{L}_x:
    s_waitcnt vmcnt(0)
    s_nop 7
    s_branch {Lb}
""")
        return I('v_cmp_ne_u32 vcc, %s, %s' % (s(exp), v(vflag))) + [br]
    def set_flag(self, base, idx_code, t1, t2):
        return I(idx_code) + I(f"""
        s_lshl_b32 {s(S_T0)}, {s(S_T0)}, 6
        s_add_u32 {s(S_T0)}, {s(S_T0)}, {base}
        v_mov_b32 {v(t1)}, {s(S_T0)}
        v_mov_b32 {v(t2)}, {OOB}
        v_cmp_eq_u32 vcc, 0, v0
        v_cndmask_b32 {v(t1)}, {v(t2)}, {v(t1)}, vcc
        v_mov_b32 {v(t2)}, {s(S_TAG)}
        buffer_store_dword {v(t2)}, {v(t1)}, {s(SRD_WS,4)}, 0 offen sc1
        """, tag='flag')

    def prologue(self):
        L = I(f"""
        s_load_dwordx16 s[40:55], s[0:1], 0
        s_load_dwordx8 s[56:63], s[0:1], 64
        s_load_dwordx4 s[64:67], s[0:1], 96
        v_and_b32 v1, 63, v0
        v_lshrrev_b32 v2, 6, v0
        s_and_b32 {s(S_T0)}, {s(S_ID)}, 7
        s_lshr_b32 {s(S_T1)}, {s(S_ID)}, 3
        v_readfirstlane_b32 {s(S_WAVE)}, v2
        s_lshr_b32 {s(S_T2)}, {s(S_T0)}, 1
        s_lshl_b32 {s(S_T2)}, {s(S_T2)}, 2
        s_lshr_b32 {s(S_T3)}, {s(S_T1)}, 3
        s_add_u32 {s(S_T)}, {s(S_T2)}, {s(S_T3)}
        s_and_b32 {s(S_T2)}, {s(S_T0)}, 1
        s_lshl_b32 {s(S_T2)}, {s(S_T2)}, 3
        s_and_b32 {s(S_CS)}, {s(S_T1)}, 7
        s_add_u32 {s(S_FS)}, {s(S_T2)}, {s(S_CS)}
        s_lshl_b32 {s(S_T64)}, {s(S_T0)}, 2
        s_add_u32 {s(S_T64)}, {s(S_T64)}, {s(S_T3)}
        s_mov_b32 {s(S_ONES)}, 0x3f803f80
        """)
        return L
    def srds(self, lst):
        L = []
        for srd, p, n in lst:
            L += I(f"""
            s_mov_b32 {s(srd)}, {s(p)}
            s_mov_b32 {s(srd+1)}, {s(p+1)}
            s_mov_b32 {s(srd+2)}, {n}
            s_mov_b32 {s(srd+3)}, 0x20000
            """)
        return L
    def make_tag(self):
        return I(f"""
        s_mul_i32 {s(S_TAG)}, {s(S_EPOCH)}, 0x9e3779b1
        s_add_u32 {s(S_TAG)}, {s(S_TAG)}, 0x7f4a7c15
        """)

    def p_stat_load(self, R):
        return I(f"""
        s_and_b32 {s(S_T0)}, {s(S_ID)}, 7
        s_lshl_b32 {s(S_T0)}, {s(S_T0)}, 8
        s_and_b32 {s(S_T1)}, {s(S_ID)}, -8
        s_add_u32 {s(S_T0)}, {s(S_T0)}, {s(S_T1)}
        s_lshl_b32 {s(S_T1)}, {s(S_WAVE)}, 1
        s_add_u32 {s(S_T0)}, {s(S_T0)}, {s(S_T1)}
        v_lshrrev_b32 {v(R+12)}, 5, v1
        v_add_u32 {v(R+12)}, {s(S_T0)}, {v(R+12)}
        v_and_b32 {v(R+13)}, 31, v1
        v_mul_u32_u24 {v(R+10)}, 1280, {v(R+12)}
        v_lshl_add_u32 {v(R+11)}, {v(R+13)}, 3, {v(R+10)}
        v_lshl_add_u32 {v(R+10)}, {v(R+13)}, 4, {v(R+10)}
        buffer_load_dwordx4 {v(R,4)}, {v(R+10)}, {s(SRD_Q,4)}, 0 offen
        buffer_load_dwordx4 {v(R+4,4)}, {v(R+10)}, {s(SRD_Q,4)}, 0 offen offset:512
        buffer_load_dwordx2 {v(R+8,2)}, {v(R+11)}, {s(SRD_Q,4)}, 0 offen offset:1024
        """)
    def p_stat_compute(self, R, split=False):
        A, B, T, U = R + 14, R + 15, R + 16, R + 17
        assert A % 2 == 0
        L = I(f'v_mov_b32 {v(A)}, 0\nv_mov_b32 {v(B)}, 0')
        for i in range(10):
            L += I(f'v_dot2c_f32_bf16 {v(A)}, {s(S_ONES)}, {v(R+i)}\nv_dot2c_f32_bf16 {v(B)}, {v(R+i)}, {v(R+i)}')
        for rot in (8, 4, 2, 1):
            L += I(f'v_add_f32_dpp {v(A)}, {v(A)}, {v(A)} row_ror:{rot} row_mask:0xf bank_mask:0xf')
            L += I(f'v_add_f32_dpp {v(B)}, {v(B)}, {v(B)} row_ror:{rot} row_mask:0xf bank_mask:0xf')
        L += I(f"""
        v_mov_b32 {v(T)}, {v(A)}
        v_mov_b32 {v(U)}, {v(B)}
        v_permlane16_swap_b32 {v(A)}, {v(T)}
        v_permlane16_swap_b32 {v(B)}, {v(U)}
        v_add_f32 {v(A)}, {v(A)}, {v(T)}
        v_add_f32 {v(B)}, {v(B)}, {v(U)}
        v_mul_f32 {v(A)}, {f2h(1.0/640)}, {v(A)}
        v_mul_f32 {v(B)}, {f2h(1.0/640)}, {v(B)}
        v_fma_f32 {v(B)}, -{v(A)}, {v(A)}, {v(B)}
        v_max_f32 {v(B)}, 0, {v(B)}
        v_cvt_pk_bf16_f32 {v(A)}, {v(A)}, {v(B)}
        v_and_b32 {v(B)}, 0xffff0000, {v(A)}
        v_lshlrev_b32 {v(A)}, 16, {v(A)}
        v_add_f32 {v(B)}, {f2h(1e-5)}, {v(B)}
        v_cvt_pk_bf16_f32 {v(B)}, {v(B)}, {v(B)}
        v_lshlrev_b32 {v(B)}, 16, {v(B)}
        v_sqrt_f32 {v(B)}, {v(B)}
        v_cvt_pk_bf16_f32 {v(B)}, {v(B)}, {v(B)}
        v_lshlrev_b32 {v(B)}, 16, {v(B)}
        v_lshlrev_b32 {v(T)}, 3, {v(R+12)}
        v_add_u32 {v(T)}, {WS_STATS}, {v(T)}
        v_mov_b32 {v(U)}, {OOB}
        v_cmp_eq_u32 vcc, 0, {v(R+13)}
        v_cndmask_b32 {v(T)}, {v(U)}, {v(T)}, vcc
        """)
        if split:
            L += I(f'v_mov_b32 v116, {v(A)}\nv_mov_b32 v117, {v(A+1)}\nv_mov_b32 v122, {v(T)}')
            return L, I(f'buffer_store_dwordx2 v[116:117], v122, {s(SRD_WS,4)}, 0 offen sc1', tag='pstore')
        L += I(f'buffer_store_dwordx2 {v(A,2)}, {v(T)}, {s(SRD_WS,4)}, 0 offen sc1', tag='wstore')
        return L

    PK_K, PK_V, PK_W, PK_A, PK_T, PK_OUT = 144, 172, 188, 204, 214, 128
    PT = 114688
    PKL_K, PKL_V, PKL_W = 114688, 126976, 139264
    def p_kv_load(self):
        A = self.PK_A
        L = I(f"""
        s_lshl_b32 {s(S_T0)}, {s(S_T64)}, 6
        s_sub_u32 {s(S_T1)}, {s(S_T0)}, 3
        s_mul_i32 {s(S_T1)}, {s(S_T1)}, 1280
        s_mul_i32 {s(S_T0)}, {s(S_T0)}, 1280
        s_mul_i32 {s(S_T2)}, {s(S_CS)}, 160
        s_mov_b32 {s(S_T3)}, 0x1999999a
        s_lshl_b32 {s(S_T4)}, {s(S_WAVE)}, 6
        s_lshl_b32 {s(S_T5)}, {s(S_WAVE)}, 10
        """)
        for j in range(3):
            L += I(f"""
            v_add_u32 {v(A)}, {s(S_T4)}, v1
            v_add_u32 {v(A)}, {256*j}, {v(A)}
            v_mul_hi_u32 {v(A+1)}, {v(A)}, {s(S_T3)}
            v_mul_u32_u24 {v(A+2)}, 10, {v(A+1)}
            v_sub_u32 {v(A+2)}, {v(A)}, {v(A+2)}
            v_mul_u32_u24 {v(A+1)}, 1280, {v(A+1)}
            v_lshl_add_u32 {v(A+1)}, {v(A+2)}, 4, {v(A+1)}
            v_add_u32 {v(A+1)}, {s(S_T2)}, {v(A+1)}
            v_add_u32 {v(A+3)}, {s(S_T1)}, {v(A+1)}
            v_add_u32 {v(A+4)}, {s(S_T0)}, {v(A+1)}
            v_mov_b32 {v(A+5)}, {OOB}
            v_cmp_gt_u32 vcc, 670, {v(A)}
            v_cndmask_b32 {v(A+3)}, {v(A+5)}, {v(A+3)}, vcc
            v_cmp_gt_u32 vcc, 640, {v(A)}
            v_cndmask_b32 {v(A+4)}, {v(A+5)}, {v(A+4)}, vcc
            s_add_u32 m0, {s(S_T5)}, {self.PKL_K + 4096*j}
            """)
            L += I(f'buffer_load_dwordx4 {v(A+3)}, {s(SRD_K,4)}, 0 offen{NT} lds', tag='kvdma')
            L += I(f's_add_u32 m0, {s(S_T5)}, {self.PKL_V + 4096*j}')
            L += I(f'buffer_load_dwordx4 {v(A+4)}, {s(SRD_V,4)}, 0 offen{NT} lds', tag='kvdma')
        L += I(f"""
        s_mul_i32 {s(S_T2)}, {s(S_CS)}, 640
        v_lshl_add_u32 {v(A)}, v1, 4, {s(S_T2)}
        v_mov_b32 {v(A+5)}, {OOB}
        v_cmp_gt_u32 vcc, 40, v1
        v_cndmask_b32 {v(A)}, {v(A+5)}, {v(A)}, vcc
        s_mov_b32 m0, {self.PKL_W}
        """)
        L += I(f'buffer_load_dwordx4 {v(A)}, {s(SRD_H,4)}, 0 offen lds', tag='kvdma')
        return L
    def p_kv_fetch(self):
        K, V_, W, A = self.PK_K, self.PK_V, self.PK_W, self.PK_A
        L = I(f"""
        v_mul_u32_u24 {v(A+9)}, 6554, v0
        v_lshrrev_b32 {v(A+9)}, 16, {v(A+9)}
        v_mul_u32_u24 {v(A+8)}, 10, {v(A+9)}
        v_sub_u32 {v(A+8)}, v0, {v(A+8)}
        v_min_u32 {v(A)}, 15, {v(A+9)}
        v_mul_u32_u24 {v(A)}, 640, {v(A)}
        v_lshl_add_u32 {v(A)}, {v(A+8)}, 4, {v(A)}
        v_add_u32 {v(A+1)}, {self.PKL_V}, {v(A)}
        v_add_u32 {v(A)}, {self.PKL_K}, {v(A)}
        v_lshlrev_b32 {v(A+2)}, 6, {v(A+8)}
        v_add_u32 {v(A+2)}, {self.PKL_W}, {v(A+2)}
        """)
        for i in range(7): L += I(f'ds_read_b128 {v(K+4*i,4)}, {v(A)} offset:{160*i}')
        for i in range(4): L += I(f'ds_read_b128 {v(W+4*i,4)}, {v(A+2)} offset:{16*i}')
        for i in range(4): L += I(f'ds_read_b128 {v(V_+4*i,4)}, {v(A+1)} offset:{160*i}')
        return L
    def p_kv_compute(self, packed=True):
        K, V_, W, A, T = self.PK_K, self.PK_V, self.PK_W, self.PK_A, self.PK_T
        KU, VU, WU, AC, OUT = T, T + 14, T + 22, T + 30, self.PK_OUT
        L = []
        for dd in range(4):
            for r in range(7):
                L += I(f'v_lshlrev_b32 {v(KU+2*r)}, 16, {v(K+4*r+dd)}\nv_and_b32 {v(KU+2*r+1)}, 0xffff0000, {v(K+4*r+dd)}')
            for j in range(4):
                for h in range(2):
                    src = W + 4 * dd + 2 * h + (j >> 1)
                    L += I(f'v_and_b32 {v(WU+2*j+h)}, 0xffff0000, {v(src)}' if j & 1 else f'v_lshlrev_b32 {v(WU+2*j+h)}, 16, {v(src)}')
            for r in range(4):
                L += I(f'v_lshlrev_b32 {v(VU+2*r)}, 16, {v(V_+4*r+dd)}\nv_and_b32 {v(VU+2*r+1)}, 0xffff0000, {v(V_+4*r+dd)}')
            for t in range(4):
                for h in range(2): L += I(f'v_mul_f32 {v(AC+2*t+h)}, {v(KU+2*t+h)}, {v(WU+6+h)}')
            for j in (2, 1, 0):
                for t in range(4):
                    for h in range(2): L += I(f'v_fmac_f32 {v(AC+2*t+h)}, {v(KU+2*(t+3-j)+h)}, {v(WU+2*j+h)}')
            for t in range(4):
                for h in range(2): L += I(f'v_mul_f32 {v(AC+2*t+h)}, {v(AC+2*t+h)}, {v(VU+2*t+h)}')
            for h in range(2):
                ch = 2 * dd + h
                L += I(f'v_cvt_pk_bf16_f32 {v(OUT+2*ch)}, {v(AC+h)}, {v(AC+2+h)}\nv_cvt_pk_bf16_f32 {v(OUT+2*ch+1)}, {v(AC+4+h)}, {v(AC+6+h)}')
        L += I(f"""
        v_and_b32 {v(T)}, 14, {v(A+8)}
        v_xor_b32 {v(T)}, {v(T)}, {v(A+9)}
        v_lshlrev_b32 {v(T)}, 3, {v(T)}
        v_lshl_add_u32 {v(T)}, {v(A+8)}, 10, {v(T)}
        v_mov_b32 {v(T+1)}, 12288
        v_cmp_gt_u32 vcc, 160, v0
        v_cndmask_b32 {v(T)}, {v(T+1)}, {v(T)}, vcc
        v_add_u32 {v(T)}, {self.PT}, {v(T)}
        """)
        for i in range(8): L += I(f'ds_write_b64 {v(T)}, {v(OUT+2*i,2)} offset:{128*i}')
        L1 = L
        L = I(f"""
        v_lshrrev_b32 {v(T)}, 3, v0
        v_and_b32 {v(T+1)}, 7, v0
        v_lshrrev_b32 {v(T+2)}, 6, v0
        v_lshlrev_b32 {v(T+4)}, 1, {v(T+1)}
        v_lshlrev_b32 {v(T+5)}, 7, {v(T)}
        v_add_u32 {v(T+5)}, {self.PT}, {v(T+5)}
        """)
        for i in range(3):
            L += I(f"""
            v_add_u32 {v(T+3)}, {4*i}, {v(T+2)}
            v_and_b32 {v(T+3)}, 14, {v(T+3)}
            v_xor_b32 {v(T+3)}, {v(T+3)}, {v(T+4)}
            v_lshl_add_u32 {v(T+3)}, {v(T+3)}, 3, {v(T+5)}
            ds_read_b128 {v(OUT+4*i,4)}, {v(T+3)} offset:{4096*i}
            """)
        L += I(f"""
        s_mul_i32 {s(S_T0)}, {s(S_CS)}, {80*4096}
        s_lshl_b32 {s(S_T1)}, {s(S_T64)}, 7
        s_add_u32 {s(S_T0)}, {s(S_T0)}, {s(S_T1)}
        s_add_u32 {s(S_T0)}, {s(S_T0)}, {WS_KVT}
        v_lshlrev_b32 {v(T+6)}, 12, {v(T)}
        v_lshl_add_u32 {v(T+6)}, {v(T+1)}, 4, {v(T+6)}
        v_add_u32 {v(T+7)}, {32*4096}, {v(T+6)}
        v_add_u32 {v(T+8)}, {64*4096}, {v(T+6)}
        v_mov_b32 {v(T+9)}, {OOB}
        v_cmp_gt_u32 vcc, 128, v0
        v_cndmask_b32 {v(T+8)}, {v(T+9)}, {v(T+8)}, vcc
        """)
        for i in range(3):
            L += I(f'buffer_store_dwordx4 {v(OUT+4*i,4)}, {v(T+6+i)}, {s(SRD_WS,4)}, {s(S_T0)} offen sc1', tag='pstore')
        return L1, L

    BP_K, BP_V, BP_W, BP_T = 90112, 122880, 155648, 32768
    S_BT, S_BP = 91, 72
    def bp_setup(self):
        return I(f"""
        s_sub_u32 {s(S_T0)}, {s(S_ID)}, {NA}
        s_mul_i32 {s(self.S_BT)}, {s(S_T0)}, 21846
        s_lshr_b32 {s(self.S_BT)}, {s(self.S_BT)}, 16
        s_mul_i32 {s(S_T1)}, {s(self.S_BT)}, 3
        s_sub_u32 {s(self.S_BP)}, {s(S_T0)}, {s(S_T1)}
        """)
    def bp_kv_load(self, A):
        L = I(f"""
        s_lshl_b32 {s(S_T0)}, {s(self.S_BT)}, 6
        s_sub_u32 {s(S_T1)}, {s(S_T0)}, 3
        s_mul_i32 {s(S_T1)}, {s(S_T1)}, 1280
        s_mul_i32 {s(S_T0)}, {s(S_T0)}, 1280
        s_mul_i32 {s(S_T2)}, {s(self.S_BP)}, 480
        s_mov_b32 {s(S_T3)}, 0x08888889
        s_lshl_b32 {s(S_T4)}, {s(S_WAVE)}, 6
        s_lshl_b32 {s(S_T5)}, {s(S_WAVE)}, 10
        """)
        for j in range(8):
            L += I(f"""
            v_add_u32 {v(A)}, {s(S_T4)}, v1
            v_add_u32 {v(A)}, {256*j}, {v(A)}
            v_mul_hi_u32 {v(A+1)}, {v(A)}, {s(S_T3)}
            v_mul_u32_u24 {v(A+2)}, 30, {v(A+1)}
            v_sub_u32 {v(A+2)}, {v(A)}, {v(A+2)}
            v_mul_u32_u24 {v(A+1)}, 1280, {v(A+1)}
            v_lshl_add_u32 {v(A+1)}, {v(A+2)}, 4, {v(A+1)}
            v_add_u32 {v(A+1)}, {s(S_T2)}, {v(A+1)}
            v_add_u32 {v(A+3)}, {s(S_T1)}, {v(A+1)}
            v_add_u32 {v(A+4)}, {s(S_T0)}, {v(A+1)}
            v_mov_b32 {v(A+5)}, {OOB}
            v_cmp_gt_u32 vcc, 2010, {v(A)}
            v_cndmask_b32 {v(A+3)}, {v(A+5)}, {v(A+3)}, vcc
            v_cmp_gt_u32 vcc, 1920, {v(A)}
            v_cndmask_b32 {v(A+4)}, {v(A+5)}, {v(A+4)}, vcc
            s_add_u32 m0, {s(S_T5)}, {self.BP_K + 4096*j}
            """)
            L += I(f'buffer_load_dwordx4 {v(A+3)}, {s(SRD_K,4)}, 0 offen{NT} lds', tag='kvdma')
            if j < 8:
                L += I(f's_add_u32 m0, {s(S_T5)}, {self.BP_V + 4096*j}')
                L += I(f'buffer_load_dwordx4 {v(A+4)}, {s(SRD_V,4)}, 0 offen{NT} lds', tag='kvdma')
        L += I(f"""
        s_and_b32 {s(S_T0)}, {s(S_WAVE)}, 1
        s_lshl_b32 {s(S_T0)}, {s(S_T0)}, 10
        s_mul_i32 {s(S_T2)}, {s(self.S_BP)}, 1920
        s_add_u32 {s(S_T2)}, {s(S_T2)}, {s(S_T0)}
        v_lshl_add_u32 {v(A)}, v1, 4, {s(S_T2)}
        s_add_u32 m0, {s(S_T0)}, {self.BP_W}
        """)
        L += I(f'buffer_load_dwordx4 {v(A)}, {s(SRD_H,4)}, 0 offen lds', tag='kvdma')
        return L
    def bp_fetch(self, ps, K, V_, W, A):
        L = I(f"""
        v_add_u32 {v(A+7)}, {256*ps}, v0
        v_mul_u32_u24 {v(A+9)}, 2185, {v(A+7)}
        v_lshrrev_b32 {v(A+9)}, 16, {v(A+9)}
        v_mul_u32_u24 {v(A+8)}, 30, {v(A+9)}
        v_sub_u32 {v(A+8)}, {v(A+7)}, {v(A+8)}
        v_min_u32 {v(A)}, 15, {v(A+9)}
        v_mul_u32_u24 {v(A)}, 1920, {v(A)}
        v_lshl_add_u32 {v(A)}, {v(A+8)}, 4, {v(A)}
        v_add_u32 {v(A+1)}, {self.BP_V}, {v(A)}
        v_add_u32 {v(A)}, {self.BP_K}, {v(A)}
        v_lshlrev_b32 {v(A+2)}, 6, {v(A+8)}
        v_add_u32 {v(A+2)}, {self.BP_W}, {v(A+2)}
        """)
        R = []
        for i in range(7): R += I(f'ds_read_b128 {v(K+4*i,4)}, {v(A)} offset:{480*i}')
        for i in range(4): R += I(f'ds_read_b128 {v(W+4*i,4)}, {v(A+2)} offset:{16*i}')
        for i in range(4): R += I(f'ds_read_b128 {v(V_+4*i,4)}, {v(A+1)} offset:{480*i}')
        return L, R
    def bp_compute(self, K, V_, W, A, T, OUT):
        KU, VU, WU, AC = T, T + 14, T + 22, T + 30
        L = []
        for dd in range(4):
            for r in range(7):
                L += I(f'v_lshlrev_b32 {v(KU+2*r)}, 16, {v(K+4*r+dd)}\nv_and_b32 {v(KU+2*r+1)}, 0xffff0000, {v(K+4*r+dd)}')
            for j in range(4):
                for h in range(2):
                    src_ = W + 4 * dd + 2 * h + (j >> 1)
                    L += I(f'v_and_b32 {v(WU+2*j+h)}, 0xffff0000, {v(src_)}' if j & 1 else f'v_lshlrev_b32 {v(WU+2*j+h)}, 16, {v(src_)}')
            for r in range(4):
                L += I(f'v_lshlrev_b32 {v(VU+2*r)}, 16, {v(V_+4*r+dd)}\nv_and_b32 {v(VU+2*r+1)}, 0xffff0000, {v(V_+4*r+dd)}')
            for t in range(4): L += I(f'v_pk_mul_f32 {v(AC+2*t,2)}, {v(KU+2*t,2)}, {v(WU+6,2)}')
            for j in (2, 1, 0):
                for t in range(4): L += I(f'v_pk_fma_f32 {v(AC+2*t,2)}, {v(KU+2*(t+3-j),2)}, {v(WU+2*j,2)}, {v(AC+2*t,2)}')
            for t in range(4): L += I(f'v_pk_mul_f32 {v(AC+2*t,2)}, {v(AC+2*t,2)}, {v(VU+2*t,2)}')
            for h in range(2):
                ch = 2 * dd + h
                L += I(f'v_cvt_pk_bf16_f32 {v(OUT+2*ch)}, {v(AC+h)}, {v(AC+2+h)}\nv_cvt_pk_bf16_f32 {v(OUT+2*ch+1)}, {v(AC+4+h)}, {v(AC+6+h)}')
        Wr = I(f"""
        v_and_b32 {v(T)}, 14, {v(A+8)}
        v_xor_b32 {v(T)}, {v(T)}, {v(A+9)}
        v_and_b32 {v(T)}, 15, {v(T)}
        v_lshlrev_b32 {v(T)}, 3, {v(T)}
        v_lshl_add_u32 {v(T)}, {v(A+8)}, 10, {v(T)}
        v_mov_b32 {v(T+1)}, 30720
        v_cmp_gt_u32 vcc, 16, {v(A+9)}
        v_cndmask_b32 {v(T)}, {v(T+1)}, {v(T)}, vcc
        v_add_u32 {v(T)}, {self.BP_T}, {v(T)}
        """)
        for i in range(8): Wr += I(f'ds_write_b64 {v(T)}, {v(OUT+2*i,2)} offset:{128*i}')
        return L, Wr
    def bp_store(self, T, R):
        L = I(f"""
        v_lshrrev_b32 {v(T)}, 3, v0
        v_and_b32 {v(T+1)}, 7, v0
        v_lshrrev_b32 {v(T+2)}, 6, v0
        v_lshlrev_b32 {v(T+4)}, 1, {v(T+1)}
        v_lshlrev_b32 {v(T+5)}, 7, {v(T)}
        v_add_u32 {v(T+5)}, {self.BP_T}, {v(T+5)}
        """)
        for i in range(8):
            L += I(f"""
            v_add_u32 {v(T+3)}, {4*i}, {v(T+2)}
            v_and_b32 {v(T+3)}, 14, {v(T+3)}
            v_xor_b32 {v(T+3)}, {v(T+3)}, {v(T+4)}
            v_lshl_add_u32 {v(T+3)}, {v(T+3)}, 3, {v(T+5)}
            ds_read_b128 {v(R+4*i,4)}, {v(T+3)} offset:{4096*i}
            """)
        L += I(f"""
        s_mul_i32 {s(S_T0)}, {s(self.S_BP)}, {240*4096}
        s_lshl_b32 {s(S_T1)}, {s(self.S_BT)}, 7
        s_add_u32 {s(S_T0)}, {s(S_T0)}, {s(S_T1)}
        s_add_u32 {s(S_T0)}, {s(S_T0)}, {WS_KVT}
        s_cmp_eq_u32 {s(self.S_BP)}, 2
        s_mov_b32 {s(S_T1)}, 240
        s_cselect_b32 {s(S_T1)}, 160, {s(S_T1)}
        v_lshlrev_b32 {v(T+6)}, 12, {v(T)}
        v_lshl_add_u32 {v(T+6)}, {v(T+1)}, 4, {v(T+6)}
        v_mov_b32 {v(T+9)}, {OOB}
        """)
        for i in range(8):
            L += I(f"""
            v_add_u32 {v(T+7)}, {32*i}, {v(T)}
            v_add_u32 {v(T+8)}, {32*4096*i}, {v(T+6)}
            v_cmp_gt_u32 vcc, {s(S_T1)}, {v(T+7)}
            v_cndmask_b32 {v(T+8)}, {v(T+9)}, {v(T+8)}, vcc
            """)
            L += I(f'buffer_store_dwordx4 {v(R+4*i,4)}, {v(T+8)}, {s(SRD_WS,4)}, {s(S_T0)} offen sc1', tag='pstore')
        return L
    def bp_stat_load(self, R, ps):
        return I(f"""
        s_mul_i32 {s(S_T0)}, {s(S_WAVE)}, 6
        s_add_u32 {s(S_T0)}, {s(S_T0)}, {2*ps}
        v_lshrrev_b32 {v(R+12)}, 5, v1
        v_add_u32 {v(R+12)}, {s(S_T0)}, {v(R+12)}
        s_cmp_eq_u32 {s(self.S_BP)}, 0
        s_cselect_b32 {s(S_T1)}, 22, 21
        s_mul_i32 {s(S_T2)}, {s(self.S_BP)}, 21
        s_min_u32 {s(S_T3)}, {s(self.S_BP)}, 1
        s_add_u32 {s(S_T2)}, {s(S_T2)}, {s(S_T3)}
        s_lshl_b32 {s(S_T3)}, {s(self.S_BT)}, 6
        s_add_u32 {s(S_T2)}, {s(S_T2)}, {s(S_T3)}
        v_cmp_gt_u32 vcc, {s(S_T1)}, {v(R+12)}
        v_add_u32 {v(R+12)}, {s(S_T2)}, {v(R+12)}
        v_and_b32 {v(R+13)}, 31, v1
        v_lshlrev_b32 {v(R+10)}, 8, {v(R+12)}
        v_lshl_add_u32 {v(R+10)}, {v(R+12)}, 10, {v(R+10)}
        v_lshl_add_u32 {v(R+11)}, {v(R+13)}, 3, {v(R+10)}
        v_lshl_add_u32 {v(R+10)}, {v(R+13)}, 4, {v(R+10)}
        v_cndmask_b32 {v(R+13)}, 1, {v(R+13)}, vcc
        buffer_load_dwordx4 {v(R,4)}, {v(R+10)}, {s(SRD_Q,4)}, 0 offen
        buffer_load_dwordx4 {v(R+4,4)}, {v(R+10)}, {s(SRD_Q,4)}, 0 offen offset:512
        buffer_load_dwordx2 {v(R+8,2)}, {v(R+11)}, {s(SRD_Q,4)}, 0 offen offset:1024
        """)

    def ap_stat_load(self, R, ps):
        return I(f"""
        s_lshl_b32 {s(S_T0)}, {s(S_WAVE)}, 2
        s_add_u32 {s(S_T0)}, {s(S_T0)}, {2*ps}
        v_lshrrev_b32 {v(R+12)}, 5, v1
        v_add_u32 {v(R+12)}, {s(S_T0)}, {v(R+12)}
        s_mul_i32 {s(S_T2)}, {s(S_ID)}, 13
        v_cmp_gt_u32 vcc, 13, {v(R+12)}
        v_add_u32 {v(R+12)}, {s(S_T2)}, {v(R+12)}
        v_and_b32 {v(R+13)}, 31, v1
        v_lshlrev_b32 {v(R+10)}, 8, {v(R+12)}
        v_lshl_add_u32 {v(R+10)}, {v(R+12)}, 10, {v(R+10)}
        v_lshl_add_u32 {v(R+11)}, {v(R+13)}, 3, {v(R+10)}
        v_lshl_add_u32 {v(R+10)}, {v(R+13)}, 4, {v(R+10)}
        v_cndmask_b32 {v(R+13)}, 1, {v(R+13)}, vcc
        s_movk_i32 {s(S_T0)}, 0x800
        v_cmp_gt_u32 vcc, {s(S_T0)}, {v(R+12)}
        v_cndmask_b32 {v(R+13)}, 1, {v(R+13)}, vcc
        buffer_load_dwordx4 {v(R,4)}, {v(R+10)}, {s(SRD_Q,4)}, 0 offen
        buffer_load_dwordx4 {v(R+4,4)}, {v(R+10)}, {s(SRD_Q,4)}, 0 offen offset:512
        buffer_load_dwordx2 {v(R+8,2)}, {v(R+11)}, {s(SRD_Q,4)}, 0 offen offset:1024
        """)

    W2STG = 140288
    def p_w2_load(self, T):
        if self.o.get('bp2'):
            slabsel = f's_cmp_lt_u32 {s(S_ID)}, 96\ns_cselect_b32 {s(S_DIS)}, 0, {OOB}\ns_min_u32 {s(S_T0)}, {s(S_ID)}, 95'
        else:
            slabsel = f's_mov_b32 {s(S_DIS)}, 0\ns_sub_u32 {s(S_T0)}, {s(S_ID)}, {NA}'
        L = I(f"""
        {slabsel}
        s_lshl_b32 {s(S_T0)}, {s(S_T0)}, 2
        s_add_u32 {s(S_T0)}, {s(S_T0)}, {s(S_WAVE)}
        s_mul_i32 {s(S_T1)}, {s(S_T0)}, 1366
        s_lshr_b32 {s(S_T1)}, {s(S_T1)}, 16
        s_mul_i32 {s(S_T2)}, {s(S_T1)}, 48
        s_sub_u32 {s(S_T2)}, {s(S_T0)}, {s(S_T2)}
        s_mul_i32 {s(S_T2)}, {s(S_T2)}, {32*1280}
        s_mul_i32 {s(S_T1)}, {s(S_T1)}, 160
        s_add_u32 {s(S_T2)}, {s(S_T2)}, {s(S_T1)}
        s_mul_i32 {s(S_W2OFF)}, {s(S_T0)}, 5120
        s_add_u32 {s(S_W2OFF)}, {s(S_W2OFF)}, {WS_W2T}
        s_mul_i32 {s(S_T3)}, {s(S_WAVE)}, 5120
        s_add_u32 {s(S_T3)}, {s(S_T3)}, {self.W2STG}
        s_mov_b32 {s(S_T1)}, 0x1999999a
        """)
        for n in range(5):
            comp = 1024 * n if n < 4 else 0
            L += I(f"""
            v_add_u32 {v(T)}, {64*n}, v1
            v_mul_hi_u32 {v(T+1)}, {v(T)}, {s(S_T1)}
            v_mul_u32_u24 {v(T+2)}, 10, {v(T+1)}
            v_sub_u32 {v(T+2)}, {v(T)}, {v(T+2)}
            v_mul_u32_u24 {v(T+1)}, 1280, {v(T+1)}
            v_lshl_add_u32 {v(T+1)}, {v(T+2)}, 4, {v(T+1)}
            v_subrev_u32 {v(T+8+n)}, {comp}, {v(T+1)}
            v_or_b32 {v(T+8+n)}, {s(S_DIS)}, {v(T+8+n)}
            """)
        L += I(f's_mov_b32 m0, {s(S_T3)}')
        for n in range(4): L += I(f'buffer_load_dwordx4 {v(T+8+n)}, {s(SRD_W2,4)}, {s(S_T2)} offen offset:{1024*n}{NT} lds', tag='w2slab')
        L += I(f's_add_u32 m0, {s(S_T3)}, 4096')
        L += I(f'buffer_load_dwordx4 {v(T+12)}, {s(SRD_W2,4)}, {s(S_T2)} offen{NT} lds', tag='w2slab')
        L += I(f"""
        v_bfe_u32 {v(T)}, v1, 5, 1
        v_lshlrev_b32 {v(T)}, 4, {v(T)}
        v_bfe_u32 {v(T+1)}, v1, 4, 1
        v_lshl_add_u32 {v(T)}, {v(T+1)}, 2, {v(T)}
        v_bfe_u32 {v(T+1)}, v1, 2, 2
        v_add_u32 {v(T)}, {v(T)}, {v(T+1)}
        v_mul_u32_u24 {v(T)}, 160, {v(T)}
        v_and_b32 {v(T+1)}, 3, v1
        v_lshl_add_u32 {v(T)}, {v(T+1)}, 3, {v(T)}
        v_add_u32 {v(T+13)}, {s(S_T3)}, {v(T)}
        v_lshlrev_b32 {v(T+14)}, 4, v1
        v_or_b32 {v(T+14)}, {s(S_DIS)}, {v(T+14)}
        """)
        return L
    def p_w2_store(self, T):
        L = [waitvm('w2slab')]
        for ct in range(5):
            for al in range(2): L += I(f'ds_read_b64_tr_b16 {a_(4*ct+2*al,2)}, {v(T+13)} offset:{al*1280 + ct*32}')
        L += I(f'v_mov_b32 v123, {v(T+14)}')
        S_ = []
        for ct in range(5):
            if ct == 4:
                S_ += I(f's_add_u32 {s(S_W2OFF)}, {s(S_W2OFF)}, 4096')
                S_ += I(f'buffer_store_dwordx4 {a_(4*ct,4)}, v123, {s(SRD_WS,4)}, {s(S_W2OFF)} offen sc1', tag='pstore')
            else:
                S_ += I(f'buffer_store_dwordx4 {a_(4*ct,4)}, v123, {s(SRD_WS,4)}, {s(S_W2OFF)} offen offset:{1024*ct} sc1', tag='pstore')
        return L, S_

    XST, WST, CSA = 0, 65536, 160768
    NST = 4
    G_XD, G_WD, G_XA, G_XB, G_WA, G_WC = 2, 6, 9, 13, 17, 18
    G_ACC, G_XF, G_WF, G_CSF, G_CS = 20, 68, 76, 100, 112
    G_ONE = 156
    def g1_setup(self, T):
        XD, WD, XA, XB, WA, WC = self.G_XD, self.G_WD, self.G_XA, self.G_XB, self.G_WA, self.G_WC
        L = I(f"""
        v_lshrrev_b32 {v(T)}, 3, v1
        v_and_b32 {v(T+1)}, 7, v1
        v_lshrrev_b32 {v(T+2)}, 4, v1
        s_lshl_b32 {s(S_T0)}, {s(S_WAVE)}, 5
        v_add_u32 {v(T)}, {s(S_T0)}, {v(T)}
        v_mul_u32_u24 {v(T)}, 1280, {v(T)}
        v_xor_b32 {v(T+3)}, {v(T+1)}, {v(T+2)}
        v_add_u32 {v(T+4)}, 4, {v(T+2)}
        v_xor_b32 {v(T+4)}, {v(T+1)}, {v(T+4)}
        v_lshl_add_u32 {v(XD)}, {v(T+3)}, 4, {v(T)}
        v_lshl_add_u32 {v(T+4)}, {v(T+4)}, 4, {v(T)}
        v_add_u32 {v(XD+1)}, {10240-1024}, {v(T+4)}
        v_add_u32 {v(XD+2)}, {20480-2048}, {v(XD)}
        v_add_u32 {v(XD+3)}, {30720-3072}, {v(T+4)}
        s_mul_i32 {s(S_XOFF)}, {s(S_T)}, 163840
        s_lshl_b32 {s(S_XM0)}, {s(S_WAVE)}, 12
        s_mul_i32 {s(S_WOFF)}, {s(S_FS)}, 192
        s_mul_i32 {s(S_WM0)}, {s(S_WAVE)}, 3072
        s_add_u32 {s(S_WM0)}, {s(S_WM0)}, {self.WST}
        s_mul_i32 {s(S_T0)}, {s(S_WAVE)}, 192
        s_mov_b32 {s(S_T1)}, 0x15555556
        """)
        for i in range(3):
            L += I(f"""
            v_add_u32 {v(T)}, {s(S_T0)}, v1
            v_add_u32 {v(T)}, {64*i}, {v(T)}
            v_mul_hi_u32 {v(T+1)}, {v(T)}, {s(S_T1)}
            v_mul_u32_u24 {v(T+2)}, 12, {v(T+1)}
            v_sub_u32 {v(T+2)}, {v(T)}, {v(T+2)}
            v_mul_u32_u24 {v(T+1)}, 3072, {v(T+1)}
            v_lshl_add_u32 {v(T+1)}, {v(T+2)}, 4, {v(T+1)}
            v_subrev_u32 {v(WD+i)}, {1024*i}, {v(T+1)}
            """)
        return L
    def g1_setup2(self, T):
        XA, XB, WA, WC = self.G_XA, self.G_XB, self.G_WA, self.G_WC
        L = I(f"""
        v_and_b32 {v(T)}, 31, v1
        v_lshrrev_b32 {v(T+1)}, 5, v1
        v_bfe_u32 {v(T+2)}, v1, 1, 3
        v_lshlrev_b32 {v(T)}, 7, {v(T)}
        v_add_u32 {v(T)}, {s(S_XM0)}, {v(T)}
        """)
        for ks in range(4):
            L += I(f"""
            v_add_u32 {v(T+3)}, {2*ks}, {v(T+1)}
            v_xor_b32 {v(T+3)}, {v(T+3)}, {v(T+2)}
            v_lshl_add_u32 {v(XA+ks)}, {v(T+3)}, 4, {v(T)}
            """)
        L += I(f"""
        v_lshrrev_b32 {v(T)}, 5, v1
        v_lshlrev_b32 {v(T)}, 3, {v(T)}
        v_bfe_u32 {v(T+1)}, v1, 2, 2
        v_add_u32 {v(T)}, {v(T)}, {v(T+1)}
        v_mul_u32_u24 {v(T)}, 192, {v(T)}
        v_bfe_u32 {v(T+1)}, v1, 4, 1
        v_lshl_add_u32 {v(T)}, {v(T+1)}, 5, {v(T)}
        v_and_b32 {v(T+1)}, 3, v1
        v_lshl_add_u32 {v(T)}, {v(T+1)}, 3, {v(T)}
        v_add_u32 {v(WA)}, {self.WST}, {v(T)}
        s_mul_i32 {s(S_T0)}, {s(S_WAVE)}, 3072
        v_add_u32 {v(WC)}, {s(S_T0)}, {v(WA)}
        """)
        return L
    def g1_dma(self, c):
        XD, WD = self.G_XD, self.G_WD
        stg = c % self.NST
        L = [f's_add_u32 m0, {s(S_XM0)}, {self.XST + stg*16384}']
        for i in range(4): L.append(f'buffer_load_dwordx4 {v(XD+i)}, {s(SRD_Q,4)}, {s(S_XOFF)} offen offset:{1024*i}' + (' nt' if self.o.get('ntx') else '') + ' lds')
        L.append(f's_add_u32 {s(S_XOFF)}, {s(S_XOFF)}, 128')
        L.append(f's_add_u32 m0, {s(S_WM0)}, {stg*12288}')
        for i in range(3): L.append(f'buffer_load_dwordx4 {v(WD+i)}, {s(SRD_W1,4)}, {s(S_WOFF)} offen offset:{1024*i}' + (' nt' if self.o.get('ntw') else '') + ' lds')
        L.append(f's_add_u32 {s(S_WOFF)}, {s(S_WOFF)}, {64*3072}')
        return [Ins(t, tag='g1c%d' % c) for t in L]
    def g1_reads(self, n):
        c, ks = n >> 2, n & 3
        stg = c % self.NST; b = n & 1
        XF, WF = self.G_XF + 4 * b, self.G_WF + 12 * b
        L = [f'ds_read_b128 {v(XF,4)}, {v(self.G_XA+ks)} offset:{stg*16384}']
        for ft in range(3):
            for al in range(2):
                L.append(f'ds_read_b64_tr_b16 {v(WF+4*ft+2*al,2)}, {v(self.G_WA)} offset:{stg*12288 + (16*ks+4*al)*192 + ft*64}')
        return [Ins(t) for t in L]
    def g1_cs_reads(self, c):
        stg = c % self.NST
        return [Ins(f'ds_read_b64_tr_b16 {v(self.G_CSF+4*ft+2*al,2)}, {v(self.G_WC)} offset:{stg*12288 + (4*al)*192 + ft*64}') for ft in range(3) for al in range(2)]
    def g1_cs_mfma(self, first):
        if self.o.get('csdot'):
            out = []
            for ft in range(3):
                grp = [Ins(f'v_dot2c_f32_bf16 {v(self.G_CS+ft)}, {s(S_ONES)}, {v(self.G_CSF+4*ft+i)}') for i in range(4)]
                out.append(grp)
            return out
        return [Ins(f'v_mfma_f32_32x32x16_bf16 {a_(208+16*ft,16)}, {a_(196,4)}, {v(self.G_CSF+4*ft,4)}, ' + ('0' if first else a_(208+16*ft,16))) for ft in range(3)]
    def g1_init(self):
        L = []
        for i in range(48): L += I(f'v_mov_b32 {v(self.G_ACC+i)}, 0')
        if self.o.get('csdot'):
            for i in range(3): L += I(f'v_mov_b32 {v(self.G_CS+i)}, 0')
        return L
    def g1_ones(self):
        return I(f'v_mov_b32 v121, {s(S_ONES)}') + [Ins(f'v_accvgpr_write_b32 {a_(196+i)}, v121') for i in range(4)]
    A_SX, A_SQ = 100, 116
    def g1_stat(self, n):
        XF = self.G_XF + 4 * (n & 1)
        c1 = '0' if n == 0 else a_(self.A_SX, 16); c2 = '0' if n == 0 else a_(self.A_SQ, 16)
        return [Ins(f'v_mfma_f32_32x32x16_bf16 {a_(self.A_SX,16)}, {a_(196,4)}, {v(XF,4)}, {c1}'),
                Ins(f'v_mfma_f32_32x32x16_bf16 {a_(self.A_SQ,16)}, {v(XF,4)}, {v(XF,4)}, {c2}')]
    def g1_stat_final(self):
        L = I(f"""
        v_bfe_u32 v126, v1, 3, 2
        v_lshlrev_b32 v126, 2, v126
        v_and_b32 v127, 3, v1
        v_add_u32 v126, v126, v127
        v_mov_b32 v117, 0
        """)
        for r in range(16):
            L += I(f'v_accvgpr_read_b32 v125, {a_(self.A_SQ+r)}\nv_cmp_eq_u32 vcc, {r}, v126\nv_cndmask_b32 v117, v117, v125, vcc')
        L += I(f"""
        v_bfe_u32 v126, v1, 2, 1
        v_lshrrev_b32 v127, 5, v1
        v_cmp_eq_u32 vcc, v126, v127
        v_cndmask_b32 v117, 0, v117, vcc
        v_mov_b32 v127, v117
        v_accvgpr_read_b32 v116, {a_(self.A_SX)}
        v_permlane32_swap_b32 v117, v127
        v_add_f32 v117, v117, v127
        v_mul_f32 v116, {f2h(1.0/640)}, v116
        v_mul_f32 v117, {f2h(1.0/640)}, v117
        v_fma_f32 v117, -v116, v116, v117
        v_max_f32 v117, 0, v117
        v_cvt_pk_bf16_f32 v116, v116, v117
        v_and_b32 v117, 0xffff0000, v116
        v_lshlrev_b32 v116, 16, v116
        v_add_f32 v117, {f2h(1e-5)}, v117
        v_cvt_pk_bf16_f32 v117, v117, v117
        v_lshlrev_b32 v117, 16, v117
        v_sqrt_f32 v117, v117
        v_cvt_pk_bf16_f32 v117, v117, v117
        v_lshlrev_b32 v117, 16, v117
        s_lshl_b32 {s(S_T0)}, {s(S_T)}, 7
        s_lshl_b32 {s(S_T1)}, {s(S_WAVE)}, 5
        s_add_u32 {s(S_T0)}, {s(S_T0)}, {s(S_T1)}
        v_and_b32 v126, 31, v1
        v_add_u32 v126, {s(S_T0)}, v126
        v_lshlrev_b32 v126, 3, v126
        v_add_u32 v126, {WS_STATS}, v126
        v_mov_b32 v127, {OOB}
        v_cmp_gt_u32 vcc, 32, v1
        v_cndmask_b32 v126, v127, v126, vcc
        """)
        return L + I(f'buffer_store_dwordx2 v[116:117], v126, {s(SRD_WS,4)}, 0 offen sc1', tag='hstore')
    def g1_main(self, bg, bgv):
        ACC = self.G_ACC
        out = [waitvm('g1c0'), waitlds()] + I('s_barrier') + self.g1_reads(0)
        for c in range(10):
            main = []
            csr = self.g1_cs_reads(c); csm = self.g1_cs_mfma(c == 0)
            for ks in range(4):
                n = 4 * c + ks
                b = n & 1
                M = [Ins(f'v_mfma_f32_32x32x16_bf16 {v(ACC+16*ft,16)}, {v(self.G_WF+12*b+4*ft,4)}, {v(self.G_XF+4*b,4)}, {v(ACC+16*ft,16)}') for ft in range(3)]
                R = self.g1_reads(n + 1) if n + 1 < 40 else [None] * 7
                R = [r for r in R]
                def RR(a, b_): return [r for r in R[a:b_] if r is not None]
                C2 = csr[2*ks:2*ks+2] if ks < 3 else []
                if self.o.get('mstat'):
                    ST = self.g1_stat(n)
                    if ks == 0:
                        main += [M[0]] + RR(0, 2) + [M[1]] + RR(2, 4) + [M[2]] + RR(4, 6) + [ST[0]] + RR(6, 7) + C2[:1] + [ST[1]] + C2[1:]
                    elif ks < 3:
                        main += [M[0]] + RR(0, 2) + [M[1]] + RR(2, 4) + [M[2]] + RR(4, 6) + [ST[0]] + RR(6, 7) + [ST[1]] + C2[:1] + [csm[ks-1]] + C2[1:]
                    else:
                        pre = ([waitvm('g1c%d' % (c + 1)), waitlds()] + I('s_barrier')) if n + 1 < 40 else []
                        main += [M[0]] + pre + RR(0, 2) + [csm[2]] + RR(2, 4) + [M[1]] + RR(4, 6) + [ST[0]] + RR(6, 7) + [M[2], ST[1]]
                elif ks == 0:
                    main += [M[0]] + RR(0, 3) + [M[1]] + RR(3, 5) + C2[:1] + [M[2]] + RR(5, 7) + C2[1:]
                elif ks < 3:
                    main += [M[0]] + RR(0, 3) + [M[1]] + RR(3, 5) + [M[2]] + RR(5, 7) + [csm[ks-1]] + C2
                else:
                    pre = ([waitvm('g1c%d' % (c + 1)), waitlds()] + I('s_barrier')) if n + 1 < 40 else []
                    main += [M[0]] + pre + RR(0, 3) + [csm[2]] + RR(3, 5) + [M[1]] + RR(5, 7) + [M[2]]
            flat = []
            for i in main:
                if isinstance(i, list): flat += i
                else: flat.append(i)
            main = flat
            B = list(bg.get(c, []))
            out += self.ts('g1 c%d' % c)
            m1 = merge(main, B, 0.0, 0.7 if self.o.get('mstat') else (0.75 if self.o.get('csdot') else 0.74))
            bar = [k for k, i in enumerate(m1) if i.op == 's_barrier']
            if bar:
                cut = bar[-1]
                while m1[cut - 1].kind in ('waitvm', 'waitlds'): cut -= 1
                out += merge_time(m1[:cut], bgv.get(c, []), 0.5 if c == 0 else 0.02, 0.98) + m1[cut:]
            else:
                out += merge_time(m1, bgv.get(c, []), 0.02, 0.98)
        return out
    def g1_epilogue(self, bg, ldsbg=None):
        ACC = self.G_ACC
        ST_, B1, AX, BX, RS, AD = 116, 118, 76, 88, 92, 94
        CS = self.G_CS
        L = I(f"""
        v_and_b32 {v(AD)}, 31, v1
        v_lshlrev_b32 {v(AD)}, 2, {v(AD)}
        v_add_u32 {v(AD)}, {self.CSA}, {v(AD)}
        s_mul_i32 {s(S_T0)}, {s(S_WAVE)}, 384
        v_add_u32 {v(AD+1)}, {s(S_T0)}, {v(AD)}
        """)
        if self.o.get('csdot'):
            for ft in range(3): L += I(f'v_mov_b32 {v(100+ft)}, {v(CS+ft)}')
            for ft in range(3): L += I(f'v_permlane32_swap_b32 {v(CS+ft)}, {v(100+ft)}')
            for ft in range(3): L += I(f'v_add_f32 {v(CS+ft)}, {v(CS+ft)}, {v(100+ft)}')
        else:
            for ft in range(3): L += I(f'v_accvgpr_read_b32 {v(CS+ft)}, {a_(208+16*ft)}')
        for ft in range(3): L += I(f'ds_write_b32 {v(AD+1)}, {v(CS+ft)} offset:{128*ft}')
        L += [waitlds()] + I('s_barrier') + self.ts('ep: barrier')
        for w in range(4):
            for ft in range(3): L += I(f'ds_read_b32 {v(100+3*w+ft)}, {v(AD)} offset:{384*w + 128*ft}')
        L += I(f"""
        v_cmp_gt_u32 vcc, 32, v1
        v_rcp_f32 {v(RS)}, {v(ST_+1)}
        v_xor_b32 {v(BX)}, 0x80000000, {v(ST_)}
        v_lshrrev_b32 {v(BX+1)}, 16, {v(BX)}
        v_or_b32 {v(BX)}, {v(BX)}, {v(BX+1)}
        v_lshrrev_b32 {v(BX+1)}, 16, {v(ST_+1)}
        v_mov_b32 {v(BX+2)}, 0
        v_mov_b32 {v(BX+3)}, 0
        """)
        for ft in range(3):
            a = AX + 4 * ft; cs = CS + ft
            L += I(f"""
            v_add_f32 {v(cs)}, {v(100+ft)}, {v(103+ft)}
            v_add_f32 {v(a)}, {v(106+ft)}, {v(109+ft)}
            v_add_f32 {v(cs)}, {v(cs)}, {v(a)}
            v_cvt_pk_bf16_f32 {v(a)}, {v(cs)}, {v(cs)}
            v_lshlrev_b32 {v(a+1)}, 16, {v(a)}
            v_sub_f32 {v(a+1)}, {v(cs)}, {v(a+1)}
            v_cvt_pk_bf16_f32 {v(a)}, {v(cs)}, {v(a+1)}
            v_cndmask_b32 {v(a)}, 0, {v(a)}, vcc
            v_cndmask_b32 {v(a+1)}, 0, {v(B1+ft)}, vcc
            v_mov_b32 {v(a+2)}, 0
            v_mov_b32 {v(a+3)}, 0
            v_mfma_f32_32x32x16_bf16 {v(ACC+16*ft,16)}, {v(a,4)}, {v(BX,4)}, {v(ACC+16*ft,16)}
            """)
        L += I(f"""
        s_lshl_b32 {s(S_T0)}, {s(S_T)}, 3
        s_lshl_b32 {s(S_T1)}, {s(S_WAVE)}, 1
        s_add_u32 {s(S_T0)}, {s(S_T0)}, {s(S_T1)}
        s_mul_i32 {s(S_T0)}, {s(S_T0)}, {48*1024}
        s_mul_i32 {s(S_T1)}, {s(S_FS)}, 3072
        s_add_u32 {s(S_T0)}, {s(S_T0)}, {s(S_T1)}
        s_add_u32 {s(S_T4)}, {s(S_T0)}, {WS_H}
        v_bfe_u32 {v(AD)}, v1, 4, 1
        v_mul_u32_u24 {v(AD)}, {48*1024}, {v(AD)}
        v_lshrrev_b32 {v(AD+1)}, 5, v1
        v_lshl_add_u32 {v(AD)}, {v(AD+1)}, 8, {v(AD)}
        v_and_b32 {v(AD+1)}, 15, v1
        v_lshl_add_u32 {v(AD)}, {v(AD+1)}, 4, {v(AD)}
        """)
        E = []
        for ft in range(3):
            A = ACC + 16 * ft
            for cc in range(2):
                for p in range(4 * cc, 4 * cc + 4):
                    r = A + 2 * p
                    E += I(f"""
                    v_max_f32 {v(r)}, 0, {v(r)}
                    v_max_f32 {v(r+1)}, 0, {v(r+1)}
                    v_pk_mul_f32 {v(r,2)}, {v(r,2)}, {v(RS,2)} op_sel_hi:[1,0]
                    v_pk_mul_f32 {v(r,2)}, {v(r,2)}, {v(r,2)}
                    """)
                for d in range(4):
                    r = A + 8 * cc + 2 * d
                    E += I(f'v_cvt_pk_bf16_f32 {v(A+8*cc+d)}, {v(r)}, {v(r+1)}')
                E += I(f'buffer_store_dwordx4 {v(A+8*cc,4)}, {v(AD)}, {s(SRD_WS,4)}, {s(S_T4)} offen offset:{1024*ft + 512*cc} sc1', tag='hstore')
        if ldsbg: E = merge(E, ldsbg)
        return L + self.ts('ep: xmfma') + merge_time(E, bg)

    def w2_setup(self, vaddr):
        return I(f"""
        s_mul_i32 {s(S_W2OFF)}, {s(S_CS)}, {48*5120}
        s_mul_i32 {s(S_T0)}, {s(S_WAVE)}, {12*5120}
        s_add_u32 {s(S_W2OFF)}, {s(S_W2OFF)}, {s(S_T0)}
        s_add_u32 {s(S_W2OFF)}, {s(S_W2OFF)}, {WS_W2T + (20480 if self.rot else 0)}
        v_lshlrev_b32 {v(vaddr)}, 4, v1
        """)
    def w2_load(self, n, vaddr):
        L = I(f'buffer_load_dwordx4 {a_(4*n,4)}, {v(vaddr)}, {s(SRD_WS,4)}, {s(S_W2OFF)} offen offset:{1024*(n%4)} sc1', tag='w2')
        if n % 4 == 3:
            if self.rot and n == 39: L += I(f's_sub_u32 {s(S_W2OFF)}, {s(S_W2OFF)}, {61440 - 4096}')
            else: L += I(f's_add_u32 {s(S_W2OFF)}, {s(S_W2OFF)}, 4096')
        return L

    CWS = 21248
    C_S0, C_S1, C_S2 = 208, 224, 240
    C_ACC, C_XF, C_HF, C_HD, C_XB, C_HB = 20, 52, 116, 132, 136, 137
    def c_dload(self):
        return I(f"""
        s_lshl_b32 {s(S_T0)}, {s(S_ID)}, 2
        s_add_u32 {s(S_T0)}, {s(S_T0)}, {s(S_WAVE)}
        s_lshl_b32 {s(S_T1)}, {s(S_T0)}, 1
        s_and_b32 {s(S_T1)}, {s(S_T1)}, -4
        s_load_dword {s(S_DVAL)}, {s(P_SSMD,2)}, {s(S_T1)}
        """)
    def c_hload(self):
        A = 202
        L = I(f"""
        s_lshl_b32 {s(S_T0)}, {s(S_ID)}, 2
        s_add_u32 {s(S_T0)}, {s(S_T0)}, {s(S_WAVE)}
        s_lshl_b32 {s(S_T0)}, {s(S_T0)}, 12
        v_lshlrev_b32 {v(A)}, 4, v1
        """)
        for i in range(4):
            L += I(f'buffer_load_dwordx4 {v(self.C_S0+4*i,4)}, {v(A)}, {s(SRD_H,4)}, {s(S_T0)} offen offset:{1024*i}{NT}')
        return L
    def c_prep_regs(self):
        S0, S1, S2 = self.C_S0, self.C_S1, self.C_S2
        L = []
        DP = 'row_mask:0xf bank_mask:0xf'
        for i in range(4):
            s0, q2, q3, q1, p2 = S0 + 4*i, S1 + 4*i, S2 + 4*i, 160 + 4*i, 203
            if i == 0:
                L += I(f'v_mov_b32 {v(q2)}, 0\nv_mov_b32 {v(p2)}, 0')
            else:
                L += I(f'v_mov_b32_dpp {v(q2)}, {v(s0-1)} wave_ror:1 {DP}\nv_mov_b32_dpp {v(p2)}, {v(s0-2)} wave_ror:1 {DP}')
            L += I(f"""
            v_mov_b32 {v(q2+1)}, {v(s0)}
            v_mov_b32 {v(q2+2)}, {v(s0+1)}
            v_mov_b32_dpp {v(q2)}, {v(s0+3)} wave_shr:1 {DP}
            v_mov_b32_dpp {v(p2)}, {v(s0+2)} wave_shr:1 {DP}
            v_mov_b32 {v(q2+3)}, {v(s0+2)}
            v_alignbit_b32 {v(q1+1)}, {v(s0+1)}, {v(s0)}, 16
            v_alignbit_b32 {v(q1+2)}, {v(s0+2)}, {v(s0+1)}, 16
            v_alignbit_b32 {v(q1+3)}, {v(s0+3)}, {v(s0+2)}, 16
            v_alignbit_b32 {v(q1)}, {v(s0)}, {v(q2)}, 16
            v_alignbit_b32 {v(q3)}, {v(q2)}, {v(p2)}, 16
            v_mov_b32 {v(q3+2)}, {v(q1+1)}
            v_mov_b32 {v(q3+3)}, {v(q1+2)}
            v_mov_b32 {v(q3+1)}, {v(q1)}
            """)
        return L
    def c_prep_addr(self):
        L = []
        L += I(f"""
        s_mul_i32 {s(S_T0)}, {s(S_WAVE)}, {self.CWS}
        s_add_u32 {s(S_T0)}, {s(S_T0)}, 90112
        s_cmp_eq_u32 {s(S_WAVE)}, 3
        s_cselect_b32 {s(S_T0)}, 32768, {s(S_T0)}
        v_lshlrev_b32 v176, 4, v1
        v_add_u32 v176, {s(S_T0)}, v176
        v_bfe_u32 v177, v1, 1, 2
        v_mul_u32_u24 v177, 4160, v177
        v_and_b32 v178, 1, v1
        v_lshl_add_u32 v177, v178, 4, v177
        v_add_u32 v177, {s(S_T0)}, v177
        v_min_u32 v179, 29, v1
        v_lshlrev_b32 v179, 4, v179
        s_add_u32 {s(S_T0)}, {s(S_T0)}, 16640
        v_add_u32 v179, {s(S_T0)}, v179
        v_mov_b32 v180, 0
        v_mov_b32 v181, 0
        v_mov_b32 v182, 0
        v_mov_b32 v183, 0
        """)
        XB, HB, HD = self.C_XB, self.C_HB, self.C_HD
        L += I(f"""
        v_and_b32 v184, 15, v1
        v_lshrrev_b32 v185, 4, v1
        v_lshlrev_b32 {v(XB)}, 5, v184
        v_lshlrev_b32 v186, 4, v185
        v_sub_u32 {v(XB)}, {v(XB)}, v186
        v_add_u32 {v(XB)}, 48, {v(XB)}
        v_add_u32 {v(XB)}, {s(S_T0)}, {v(XB)}
        v_bfe_u32 v187, v1, 2, 2
        v_mul_u32_u24 {v(HB)}, 4160, v187
        v_add_u32 {v(HB)}, {v(HB)}, v186
        v_and_b32 v187, 3, v1
        v_lshl_add_u32 {v(HB)}, v187, 3, {v(HB)}
        s_sub_u32 {s(S_T0)}, {s(S_T0)}, {16640 - 8}
        v_add_u32 {v(HB)}, {s(S_T0)}, {v(HB)}
        s_and_b32 {s(S_T1)}, {s(S_WAVE)}, 1
        s_lshl_b32 {s(S_T1)}, {s(S_T1)}, 4
        s_lshr_b32 {s(S_DVAL)}, {s(S_DVAL)}, {s(S_T1)}
        s_and_b32 {s(S_DVAL)}, {s(S_DVAL)}, 0xffff
        v_lshrrev_b32 v186, 3, v184
        v_add_u32 v186, v186, v185
        v_and_b32 v187, 1, v184
        v_lshlrev_b32 v187, 4, v187
        v_lshlrev_b32 v187, v187, {s(S_DVAL)}
        v_bfe_u32 v188, v184, 1, 2
        v_mov_b32 v189, 99
        v_cmp_eq_u32 vcc, 1, v186
        v_cndmask_b32 v188, v189, v188, vcc
        """)
        for w in range(4): L += I(f'v_cmp_eq_u32 vcc, {w}, v188\nv_cndmask_b32 {v(HD+w)}, 0, v187, vcc')
        return L
    def c_write_copies(self):
        S0, S1, S2 = self.C_S0, self.C_S1, self.C_S2
        L = I('ds_write_b128 v177, v[180:183]\nds_write_b128 v179, v[180:183]')
        for i in range(4):
            L += I(f'ds_write_b128 v176, {v(S0+4*i,4)} offset:{32 + 1024*i}')
            L += I(f'ds_write_b128 v176, {v(160+4*i,4)} offset:{32 + 4160 + 1024*i}')
            L += I(f'ds_write_b128 v176, {v(S1+4*i,4)} offset:{32 + 2*4160 + 1024*i}')
            L += I(f'ds_write_b128 v176, {v(S2+4*i,4)} offset:{32 + 3*4160 + 1024*i}')
        return L
    C_XL = 140
    def c_xload(self):
        L = I(f"""
        s_lshl_b32 {s(S_T0)}, {s(S_ID)}, 2
        s_add_u32 {s(S_T0)}, {s(S_T0)}, {s(S_WAVE)}
        s_lshl_b32 {s(S_T0)}, {s(S_T0)}, 12
        s_add_u32 {s(S_T0)}, {s(S_T0)}, {WS_KVT}
        v_lshlrev_b32 v138, 4, v1
        """)
        for i in range(4): L += I(f'buffer_load_dwordx4 {v(self.C_XL+4*i,4)}, v138, {s(SRD_WS,4)}, {s(S_T0)} offen offset:{1024*i} sc1')
        return L
    def c_xwrite(self):
        return [Ins(f'ds_write_b128 v176, {v(self.C_XL+4*i,4)} offset:{16640 + 480 + 1024*i}') for i in range(4)]
    def c_xread(self, q, b):
        return Ins(f'ds_read_b128 {v(self.C_XF + 32*(q&1) + 4*b, 4)}, {v(self.C_XB)} offset:{512*b + 64*(7-q)}')
    C_AORD = (0, 7, 1, 6, 2, 5, 3, 4)
    def c_hread(self, idx):
        q, a = idx // 8, self.C_AORD[idx % 8]
        r = self.C_HF + 4 * (idx % 4)
        return [Ins(f'ds_read_b64_tr_b16 {v(r+2*al,2)}, {v(self.C_HB)} offset:{512*a + 64*q + 8*(1-al)}') for al in range(2)]
    def c_main(self, bg):
        ACC = self.C_ACC
        out = [self.c_xread(0, b) for b in range(8)]
        for idx in range(3): out += self.c_hread(idx)
        for b in range(8): out += I(f'v_mfma_f32_16x16x32_bf16 {v(ACC+4*b,4)}, {v(self.C_HD,4)}, {v(self.C_XF+4*b,4)}, 0')
        for q in range(8):
            main = []
            for ai, a in enumerate(self.C_AORD):
                idx = 8 * q + ai
                hr = self.C_HF + 4 * (idx % 4)
                first = True
                for b in range(7 - a, -1, -1):
                    main.append(Ins(f'v_mfma_f32_16x16x32_bf16 {v(ACC+4*(a+b),4)}, {v(hr,4)}, {v(self.C_XF+32*(q&1)+4*b,4)}, {v(ACC+4*(a+b),4)}'))
                    if first and idx + 3 < 64: main += self.c_hread(idx + 3)
                    first = False
            xr = [self.c_xread(q + 1, b) for b in range(8)] if q < 7 else []
            if q in (0, 2, 4, 6, 7): out += self.ts('conv q%d' % q)
            m1 = merge(main, xr, 0.0, 0.7)
            out += merge(m1, bg.get(q, []), 0.0, 1.0)
        return out
    def c_post(self):
        ACC = self.C_ACC
        L = I(f"""
        s_lshl_b32 {s(S_T0)}, {s(S_ID)}, 2
        s_add_u32 {s(S_T0)}, {s(S_T0)}, {s(S_WAVE)}
        s_lshl_b32 {s(S_T0)}, {s(S_T0)}, 12
        s_add_u32 {s(S_T0)}, {s(S_T0)}, {WS_YT}
        v_and_b32 v52, 15, v1
        v_lshlrev_b32 v52, 5, v52
        v_bfe_u32 v53, v1, 4, 1
        v_lshl_add_u32 v52, v53, 9, v52
        v_bfe_u32 v53, v1, 5, 1
        v_lshl_add_u32 v52, v53, 4, v52
        """)
        for p in range(4):
            Q = 56 + 4 * p
            a0, a1 = ACC + 8 * p, ACC + 8 * p + 4
            L += I(f"""
            v_cvt_pk_bf16_f32 {v(Q)}, {v(a0)}, {v(a0+1)}
            v_cvt_pk_bf16_f32 {v(Q+1)}, {v(a0+2)}, {v(a0+3)}
            v_cvt_pk_bf16_f32 {v(Q+2)}, {v(a1)}, {v(a1+1)}
            v_cvt_pk_bf16_f32 {v(Q+3)}, {v(a1+2)}, {v(a1+3)}
            v_permlane16_swap_b32 {v(Q)}, {v(Q+2)}
            v_permlane16_swap_b32 {v(Q+1)}, {v(Q+3)}
            """)
            L += I(f'buffer_store_dwordx4 {v(Q,4)}, v52, {s(SRD_WS,4)}, {s(S_T0)} offen offset:{1024*p} sc1', tag='ystore')
        return L

    G2_ACC = (20, 40)
    G2_HR, G2_NR, G2_OFF = 104, 38, 11
    G2_HV = 2
    G2_RA = 5
    F_X, F_B, F_ST, F_Y = 60, 70, 80, 82
    F_PP, F_XU, F_T = 188, 104, 124
    def hreg(self, n): return self.G2_HR + 4 * ((n + self.G2_OFF) % self.G2_NR)
    def g2_setup(self):
        L = I(f"""
        v_lshlrev_b32 v8, 4, v1
        v_add_u32 v2, {4096 if self.rot else 0}, v8
        v_add_u32 v3, {8192 if self.rot else 4096}, v8
        v_add_u32 v4, {0 if self.rot else 8192}, v8
        s_mul_i32 {s(S_T0)}, {s(S_WAVE)}, {12*1024}
        s_add_u32 {s(S_T0)}, {s(S_T0)}, {WS_H}
        s_lshl_b32 {s(S_T1)}, {s(S_T64)}, 2
        """)
        for sg in range(4):
            L += I(f"""
            s_add_u32 {s(S_T2)}, {s(S_WAVE)}, {1+sg}
            s_and_b32 {s(S_T2)}, {s(S_T2)}, 3
            s_add_u32 {s(S_T3)}, {s(S_T1)}, {s(S_T2)}
            s_mul_i32 {s(S_T3)}, {s(S_T3)}, {48*1024}
            s_add_u32 {s(S_HOFF+sg)}, {s(S_T3)}, {s(S_T0)}
            """)
            if sg < 3:
                L += I(f"""
                s_mul_i32 {s(S_T2)}, {s(S_T2)}, 15360
                s_add_u32 {s(S_T2)}, {s(S_T2)}, {5120*sg}
                v_add_u32 {v(self.G2_RA+sg)}, {s(S_T2)}, v8
                """)
        L += I(f's_mul_i32 {s(S_T2)}, {s(S_WAVE)}, 15360\nv_add_u32 v8, {s(S_T2)}, v8')
        return L
    def g2_hload(self, n):
        sg, kk = n // 12, n % 12
        return Ins(f'buffer_load_dwordx4 {v(self.hreg(n),4)}, {v(self.G2_HV + kk//4)}, {s(SRD_WS,4)}, {s(S_HOFF+sg)} offen offset:{1024*(kk%4)} sc1')
    def f_loads(self):
        L = I(f"""
        s_lshl_b32 {s(S_T0)}, {s(S_T64)}, 6
        s_lshl_b32 {s(S_T1)}, {s(S_WAVE)}, 4
        s_add_u32 {s(S_T0)}, {s(S_T0)}, {s(S_T1)}
        v_and_b32 v9, 15, v1
        v_add_u32 v9, {s(S_T0)}, v9
        v_lshrrev_b32 v10, 4, v1
        s_mul_i32 {s(S_T2)}, {s(S_CS)}, 160
        v_lshl_add_u32 v10, v10, 3, {s(S_T2)}
        v_mul_u32_u24 v11, 1280, v9
        v_add_u32 v11, v11, v10
        """)
        for ct in range(5): L += I(f'buffer_load_dwordx2 {v(self.F_X+2*ct,2)}, v11, {s(SRD_Q,4)}, 0 offen offset:{32*ct}')
        for ct in range(5): L += I(f'global_load_dwordx2 {v(self.F_B+2*ct,2)}, v10, {s(P_B2,2)} offset:{32*ct}')
        L += I(f"""
        v_lshlrev_b32 v12, 3, v9
        v_add_u32 v12, {WS_STATS}, v12
        buffer_load_dwordx2 {v(self.F_ST,2)}, v12, {s(SRD_WS,4)}, 0 offen sc1
        """)
        return L
    def f_yloads(self):
        L = I(f"""
        v_lshlrev_b32 v12, 11, v10
        v_lshl_add_u32 v12, v9, 1, v12
        v_add_u32 v12, {WS_YT}, v12
        """)
        for ct in range(5):
            for r in range(4):
                L += I(f's_mov_b32 {s(S_T0)}, {(16*ct + r)*4096}')
                L += I(f'buffer_load_ushort {v(self.F_Y+4*ct+r)}, v12, {s(SRD_WS,4)}, {s(S_T0)} offen sc1')
        return L
    def f_pre(self):
        XU, SU, T, PP = self.F_XU, self.F_Y, self.F_T, self.F_PP
        X, B, ST_ = self.F_X, self.F_B, self.F_ST
        L = I(f"""
        v_rcp_f32 {v(T)}, {v(ST_+1)}
        v_mul_f32 {v(T+1)}, {v(ST_)}, {v(T)}
        v_xor_b32 {v(T+1)}, 0x80000000, {v(T+1)}
        """)
        for p in range(10):
            L += I(f"""
            v_lshlrev_b32 {v(XU+2*p)}, 16, {v(X+p)}
            v_and_b32 {v(XU+2*p+1)}, 0xffff0000, {v(X+p)}
            v_lshlrev_b32 {v(SU+2*p)}, 16, {v(SU+2*p)}
            v_lshlrev_b32 {v(SU+2*p+1)}, 16, {v(SU+2*p+1)}
            v_fma_f32 {v(T+2)}, {v(XU+2*p)}, {v(T)}, {v(T+1)}
            v_fma_f32 {v(T+3)}, {v(XU+2*p+1)}, {v(T)}, {v(T+1)}
            v_mul_f32 {v(SU+2*p)}, {v(SU+2*p)}, {v(T+2)}
            v_mul_f32 {v(SU+2*p+1)}, {v(SU+2*p+1)}, {v(T+3)}
            """)
        P2 = []
        for p in range(10):
            P2 += I(f"""
            v_lshlrev_b32 {v(T+4)}, 16, {v(B+p)}
            v_and_b32 {v(T+5)}, 0xffff0000, {v(B+p)}
            v_add_f32 {v(PP+2*p)}, {v(PP+2*p)}, {v(PP+20+2*p)}
            v_add_f32 {v(PP+2*p+1)}, {v(PP+2*p+1)}, {v(PP+21+2*p)}
            v_add_f32 {v(T+4)}, {v(T+4)}, {v(PP+40+2*p)}
            v_add_f32 {v(T+5)}, {v(T+5)}, {v(PP+41+2*p)}
            v_add_f32 {v(PP+2*p)}, {v(PP+2*p)}, {v(T+4)}
            v_add_f32 {v(PP+2*p+1)}, {v(PP+2*p+1)}, {v(T+5)}
            """)
        return L, P2
    def f_final(self):
        ACC = self.G2_ACC[1]; PP = self.F_PP
        XU, SU, T, X = self.F_XU, self.F_Y, self.F_T, self.F_X
        L = I(f's_mov_b32 {s(S_T0)}, {f2h(-1.4426950408889634)}')
        for ct in range(5):
            for h in range(2):
                p = 2 * ct + h
                U = T + 2 + 2 * (p & 1) + 4
                L += I(f"""
                v_pk_add_f32 {v(ACC+2*p,2)}, {v(ACC+2*p,2)}, {v(PP+2*p,2)}
                v_mul_f32 {v(U)}, {s(S_T0)}, {v(ACC+2*p)}
                v_mul_f32 {v(U+1)}, {s(S_T0)}, {v(ACC+2*p+1)}
                v_exp_f32 {v(U)}, {v(U)}
                v_exp_f32 {v(U+1)}, {v(U+1)}
                v_add_f32 {v(U)}, 1.0, {v(U)}
                v_add_f32 {v(U+1)}, 1.0, {v(U+1)}
                v_rcp_f32 {v(U)}, {v(U)}
                v_rcp_f32 {v(U+1)}, {v(U+1)}
                v_pk_mul_f32 {v(U,2)}, {v(U,2)}, {v(ACC+2*p,2)}
                v_pk_fma_f32 {v(U,2)}, {v(U,2)}, {v(SU+2*p,2)}, {v(XU+2*p,2)}
                v_cvt_pk_bf16_f32 {v(X+p)}, {v(U)}, {v(U+1)}
                """)
            L += I(f'buffer_store_dwordx2 {v(X+2*ct,2)}, v11, {s(SRD_OUT,4)}, 0 offen offset:{32*ct}')
        return L
    def f_pre_ct(self, ct):
        XU, SU, T, PP = self.F_XU, self.F_Y, self.F_T, self.F_PP
        X, B = self.F_X, self.F_B
        L = []
        for p in (2*ct, 2*ct + 1):
            L += I(f"""
            v_lshlrev_b32 {v(T+4)}, 16, {v(B+p)}
            v_and_b32 {v(T+5)}, 0xffff0000, {v(B+p)}
            v_add_f32 {v(PP+2*p)}, {v(PP+2*p)}, {v(PP+20+2*p)}
            v_add_f32 {v(PP+2*p+1)}, {v(PP+2*p+1)}, {v(PP+21+2*p)}
            v_add_f32 {v(T+4)}, {v(T+4)}, {v(PP+40+2*p)}
            v_add_f32 {v(T+5)}, {v(T+5)}, {v(PP+41+2*p)}
            v_add_f32 {v(PP+2*p)}, {v(PP+2*p)}, {v(T+4)}
            v_add_f32 {v(PP+2*p+1)}, {v(PP+2*p+1)}, {v(T+5)}
            """)
        return L
    def f_pre_x(self):
        XU, SU, T = self.F_XU, self.F_Y, self.F_T
        X, ST_ = self.F_X, self.F_ST
        L = I(f"""
        v_rcp_f32 {v(T)}, {v(ST_+1)}
        v_mul_f32 {v(T+1)}, {v(ST_)}, {v(T)}
        v_xor_b32 {v(T+1)}, 0x80000000, {v(T+1)}
        """)
        per = []
        for p in range(10):
            per.append(I(f"""
            v_lshlrev_b32 {v(XU+2*p)}, 16, {v(X+p)}
            v_and_b32 {v(XU+2*p+1)}, 0xffff0000, {v(X+p)}
            v_lshlrev_b32 {v(SU+2*p)}, 16, {v(SU+2*p)}
            v_lshlrev_b32 {v(SU+2*p+1)}, 16, {v(SU+2*p+1)}
            v_fma_f32 {v(T+2)}, {v(XU+2*p)}, {v(T)}, {v(T+1)}
            v_fma_f32 {v(T+3)}, {v(XU+2*p+1)}, {v(T)}, {v(T+1)}
            v_mul_f32 {v(SU+2*p)}, {v(SU+2*p)}, {v(T+2)}
            v_mul_f32 {v(SU+2*p+1)}, {v(SU+2*p+1)}, {v(T+3)}
            """))
        return L, per
    def f_fin_ct(self, ct):
        ACC = self.G2_ACC[1]; PP = self.F_PP
        XU, SU, T, X = self.F_XU, self.F_Y, self.F_T, self.F_X
        L = []
        for h in range(2):
            p = 2 * ct + h
            U = T + 6 + 2 * h
            L += I(f"""
            v_add_f32 {v(ACC+2*p)}, {v(ACC+2*p)}, {v(PP+2*p)}
            v_add_f32 {v(ACC+2*p+1)}, {v(ACC+2*p+1)}, {v(PP+2*p+1)}
            v_mul_f32 {v(U)}, {s(S_T0)}, {v(ACC+2*p)}
            v_mul_f32 {v(U+1)}, {s(S_T0)}, {v(ACC+2*p+1)}
            v_exp_f32 {v(U)}, {v(U)}
            v_exp_f32 {v(U+1)}, {v(U+1)}
            v_add_f32 {v(U)}, 1.0, {v(U)}
            v_add_f32 {v(U+1)}, 1.0, {v(U+1)}
            v_rcp_f32 {v(U)}, {v(U)}
            v_rcp_f32 {v(U+1)}, {v(U+1)}
            v_mul_f32 {v(U)}, {v(U)}, {v(ACC+2*p)}
            v_mul_f32 {v(U+1)}, {v(U+1)}, {v(ACC+2*p+1)}
            v_fma_f32 {v(U)}, {v(U)}, {v(SU+2*p)}, {v(XU+2*p)}
            v_fma_f32 {v(U+1)}, {v(U+1)}, {v(SU+2*p+1)}, {v(XU+2*p+1)}
            v_cvt_pk_bf16_f32 {v(X+p)}, {v(U)}, {v(U+1)}
            """)
        L += I(f'buffer_store_dwordx2 {v(X+2*ct,2)}, v11, {s(SRD_OUT,4)}, 0 offen offset:{32*ct}{OUTMOD}')
        return L
    def g2_main(self, first_unloaded, mid, last):
        out = []
        nxt = first_unloaded
        for sg in range(3):
            ACC = self.G2_ACC[sg & 1]
            for kk in range(12):
                n = sg * 12 + kk
                M = []
                for ct in range(5):
                    c = '0' if kk == 0 else v(ACC + 4 * ct, 4)
                    M.append(Ins(f'v_mfma_f32_16x16x32_bf16 {v(ACC+4*ct,4)}, {a_(20*kk+4*ct,4)}, {v(self.hreg(n),4)}, {c}'))
                B = []
                cnt = 0
                while nxt < 48 and nxt - self.G2_NR <= n - 1 and cnt < 1 and (nxt - first_unloaded) <= n:
                    B.append(self.g2_hload(nxt)); nxt += 1; cnt += 1
                B += mid.get(n, [])
                if sg >= 1 and kk == 1:
                    P = self.G2_ACC[(sg - 1) & 1]
                    B += [Ins(f'ds_write_b128 {v(self.G2_RA+sg-1)}, {v(P+4*ct,4)} offset:{1024*ct}') for ct in range(5)]
                if kk == 0 or n in (1, 4): out += self.ts('g2 n%d' % n)
                out += merge(M, B)
        assert nxt == 48, nxt
        out += self.ts('g2 n36')
        ACC = self.G2_ACC[1]
        P = self.G2_ACC[0]
        px0, pxp = self.f_pre_x()
        setup = I(f's_mov_b32 {s(S_T0)}, {f2h(-1.4426950408889634)}')
        for ct in range(5):
            M = []
            for kk in range(12):
                c = '0' if kk == 0 else v(ACC + 4 * ct, 4)
                M.append(Ins(f'v_mfma_f32_16x16x32_bf16 {v(ACC+4*ct,4)}, {a_(20*kk+4*ct,4)}, {v(self.hreg(36+kk),4)}, {c}'))
            B = []
            if ct == 0:
                B += [Ins(f'ds_write_b128 {v(self.G2_RA+2)}, {v(P+4*c2,4)} offset:{1024*c2}') for c2 in range(5)]
                B += last + [waitlds()] + I('s_barrier')
                for sp in range(3):
                    for c2 in range(2):
                        B.append(Ins(f'ds_read_b128 {v(self.F_PP + 4*(5*sp+c2), 4)}, v8 offset:{5120*sp + 1024*c2}'))
                B += px0 + setup
            else:
                if ct < 4:
                    c2 = ct + 1
                    for sp in range(3): B.append(Ins(f'ds_read_b128 {v(self.F_PP + 4*(5*sp+c2), 4)}, v8 offset:{5120*sp + 1024*c2}'))
                pc = ct - 1
                B += self.f_pre_ct(pc) + pxp[2*pc] + pxp[2*pc+1] + self.f_fin_ct(pc)
            out += merge(M, B)
        out += self.ts('G2 main done')
        out += self.f_pre_ct(4) + pxp[8] + pxp[9] + self.f_fin_ct(4)
        return out

TSNAMES = {}
def build_role(role, o):
    g = Gen(role, o)
    L = []
    def ts(name): return g.ts(name)
    L += ts('entry')
    if o.get('ts'): L += I('s_memrealtime s[6:7]\ns_waitcnt lgkmcnt(0)\nv_writelane_b32 v19, s6, 62')
    if o.get('pfcode'):
        L += I(f"""
        s_getpc_b64 s[6:7]
        """)
        L[-1].text += f'\nLpc_{role}:'
        L += I(f"""
        s_mov_b32 s8, Lend_{role}-Lpc_{role}-4
        v_and_b32 v3, 63, v0
        v_lshlrev_b32 v3, 7, v3
        v_lshrrev_b32 v4, 6, v0
        v_lshl_add_u32 v3, v4, 13, v3
        v_min_u32 v3, s8, v3
        global_load_dword a203, v3, s[6:7]
        """)
    L += g.prologue()
    first = [(SRD_K, P_K, S*D*2), (SRD_V, P_V, S*D*2), (SRD_H, P_SHK, D*4*2), (SRD_Q, P_Q, S*D*2), (SRD_WS, P_WS, WS_BYTES), (SRD_W1, P_W1, D*F*2)]
    if (role == 'B') != bool(o.get('bp2')): first += [(SRD_W2, P_W2, D*F*2)]
    rest = [(SRD_OUT, P_OUT, S*D*2)] + ([(SRD_H, P_SSMK, S*D*2)] if role == 'A' else [])
    L += g.srds(first)
    L += I(f's_load_dword {s(S_EPOCH)}, {s(P_WS,2)}, {WS_EPOCH}')
    if o.get('pftlb'):
        L += g.srds([(SRD_OUT, P_OUT, S*D*2)])
        L += I(f"""
        v_lshlrev_b32 v3, 20, v1
        buffer_load_dword a200, v3, {s(SRD_WS,4)}, 0 offen
        buffer_load_dword a201, v3, {s(SRD_OUT,4)}, 0 offen
        """)
    L += ts('prologue')
    if role == 'A': L += g.c_dload()
    if o.get('pfmall') and o.get('bp'):
        if role == 'A':
            L += I(f"""
            s_lshl_b32 {s(S_T0)}, {s(S_ID)}, 2
            s_add_u32 {s(S_T0)}, {s(S_T0)}, {s(S_WAVE)}
            s_mul_i32 {s(S_T1)}, {s(S_T0)}, 32
            v_min_u32 v20, 31, v1
            v_add_u32 v20, {s(S_T1)}, v20
            v_lshlrev_b32 v20, 7, v20
            buffer_load_dword a204, v20, {s(SRD_Q,4)}, 0 offen
            s_mul_i32 {s(S_T1)}, {s(S_T0)}, 24
            v_min_u32 v20, 23, v1
            v_add_u32 v20, {s(S_T1)}, v20
            v_lshlrev_b32 v20, 7, v20
            buffer_load_dword a205, v20, {s(SRD_W1,4)}, 0 offen
            """)
    elif o.get('pfmall'):
        L += I(f"""
        s_lshl_b32 {s(S_T0)}, {s(S_ID)}, 2
        s_add_u32 {s(S_T0)}, {s(S_T0)}, {s(S_WAVE)}
        s_mul_i32 {s(S_T1)}, {s(S_T0)}, 20
        v_min_u32 v20, 19, v1
        v_add_u32 v20, {s(S_T1)}, v20
        v_lshlrev_b32 v20, 7, v20
        buffer_load_dword a204, v20, {s(SRD_Q,4)}, 0 offen
        s_mul_i32 {s(S_T1)}, {s(S_T0)}, 15
        v_min_u32 v20, 14, v1
        v_add_u32 v20, {s(S_T1)}, v20
        v_lshlrev_b32 v20, 7, v20
        buffer_load_dword a205, v20, {s(SRD_W1,4)}, 0 offen
        """)
    if o.get('bp'):
        bg = {c: [] for c in range(10)}
        bgv = {c: [] for c in range(10)}
        if role == 'A':
            L += g.g1_setup(20)
            L += g.g1_dma(0) + g.g1_dma(1)
            if o.get('bp2'):
                g.W2STG = 131072
                L += g.p_w2_load(240)
                for ps in range(2): L += g.ap_stat_load(184 + 18*ps, ps)
            L += ts('P loads')
            L += merge_time(g.srds(rest) + g.g1_setup2(20) + g.g1_init() + g.g1_ones() + g.make_tag(), g.g1_dma(2), 0.0, 1.0)
            L += ts('P done')
            if o.get('bp2'):
                w1_, w2_ = g.p_w2_store(240)
                st_ = []; sst = []
                for ps in range(2):
                    x = g.p_stat_compute(184 + 18*ps)
                    sst.append(x[-1]); st_ += x[:-1]
                for i in sst: i.tag = 'pstore'
                bg[1] += w1_ + st_[:len(st_)//2]
                bg[2] += st_[len(st_)//2:] + sst + w2_
                bg[4] += [waitvm('pstore')]
                bg[5] += g.set_flag(WS_FLAG_W, f's_mov_b32 {s(S_T0)}, {s(S_ID)}', 124, 125)
        else:
            g.W2STG = 0
            L += g.bp_setup()
            L += g.bp_kv_load(20)
            fa0, fr0 = g.bp_fetch(0, 20, 48, 64, 80)
            fa1, fr1 = g.bp_fetch(1, 20, 48, 64, 96)
            L += g.g1_setup(112) + fa0 + fa1
            L += [waitvm('kvdma')] + I('s_barrier')
            L += ts('P loads')
            c0, wr0 = g.bp_compute(20, 48, 64, 80, 128, 166)
            c1, wr1 = g.bp_compute(20, 48, 64, 96, 128, 166)
            w2ld = [] if o.get('bp2') else g.p_w2_load(108) + I('v_mov_b32 v253, v121\nv_mov_b32 v254, v122')
            ld = []
            if not o.get('bp2'):
                for ps in range(3): ld += g.bp_stat_load(184 + 18*ps, ps)
            L += fr0 + w2ld + merge_time(c0 + wr0 + fr1 + c1 + wr1, ld, 0.05, 0.8) + [waitlds()] + I('s_barrier')
            L += ts('pk1 done')
            w1_, w2_ = ([], []) if o.get('bp2') else g.p_w2_store(240)
            st_ = []
            for ps in range(0 if o.get('bp2') else 3):
                x = g.p_stat_compute(184 + 18*ps)
                for i in x:
                    if i.tag == 'wstore': i.tag = 'pstore'
                st_ += x
            L += g.bp_store(128, 20) + w1_ + w2_ + st_ + [waitlds()] + I('s_barrier')
            L += ts('P stores')
            L += merge_time(g.srds(rest) + g.g1_setup2(20) + g.g1_init() + g.g1_ones() + g.make_tag(), g.g1_dma(0), 0.0, 1.0)
            L += [waitvm('pstore')] + I('s_barrier') + g.set_flag(WS_FLAG_P, f's_mov_b32 {s(S_T0)}, {s(S_ID)}', 124, 125)
            L += g.g1_dma(1) + g.g1_dma(2)
            L += ts('P done')
        for c in range(0, 7): bgv[c] += g.g1_dma(c + 3)
    else:
        L += g.g1_setup(20)
        L += g.g1_dma(0)
        if not o.get('x_g1only'):
            L += g.p_kv_load()
            if role == 'B': L += g.p_w2_load(240)
            if not o.get('mstat'): L += g.p_stat_load(214)
        L += ts('P loads')
        L += merge_time(g.srds(rest) + g.g1_setup2(20) + g.g1_init() + g.g1_ones() + g.make_tag(), g.g1_dma(1) + g.g1_dma(2), 0.0, 1.0)
        L += ts('P done')
        pk1, pk2 = g.p_kv_compute()
        st1, st2 = g.p_stat_compute(214, split=True)
        bg = {c: [] for c in range(10)}
        bgv = {c: [] for c in range(10)}
        for c in range(0, 7): bgv[c] += g.g1_dma(c + 3)
        if o.get('mstat'): st1, st2 = [], []
        bg[0] += st1 + [waitvm('kvdma')]
        stores = st2
        if role == 'B':
            w1_, w2_ = g.p_w2_store(240)
            bg[0] = w1_ + bg[0]
            stores = stores + w2_
        n1 = len(pk1)
        bg[1] += g.p_kv_fetch() + pk1[:n1 // 2]
        bg[2] += pk1[n1 // 2:]
        bg[3] += pk2 + stores
    bg[5] += I(f"""
        s_mul_i32 {s(S_T0)}, {s(S_FS)}, 192
        v_and_b32 v121, 31, v1
        v_lshl_add_u32 v121, v121, 1, {s(S_T0)}
        global_load_ushort v118, v121, {s(P_B1,2)}
        global_load_ushort v119, v121, {s(P_B1,2)} offset:64
        global_load_ushort v120, v121, {s(P_B1,2)} offset:128
        """)
    PW = int(o.get('pw') or 5)
    if o.get('bp'):
        PW = 2
        pflag = []
    else:
        bg[PW] += [waitvm('pstore')]
        pflag = g.set_flag(WS_FLAG_P, f's_mov_b32 {s(S_T0)}, {s(S_ID)}', 124, 125)
    comb = I(f"""
        s_mul_i32 {s(S_T0)}, {s(S_CS)}, 12
        s_mul_i32 {s(S_T1)}, {s(S_WAVE)}, 3
        s_add_u32 {s(S_T0)}, {s(S_T0)}, {s(S_T1)}
        s_add_u32 {s(S_T0)}, {s(S_T0)}, {NA}
        v_min_u32 v126, 2, v1
        v_add_u32 v126, {s(S_T0)}, v126
        s_lshl_b32 {s(S_T0)}, {s(S_T)}, 7
        s_lshl_b32 {s(S_T1)}, {s(S_WAVE)}, 5
        s_add_u32 {s(S_T0)}, {s(S_T0)}, {s(S_T1)}
        s_and_b32 {s(S_T1)}, {s(S_T0)}, 0xf8
        s_lshr_b32 {s(S_T0)}, {s(S_T0)}, 8
        s_add_u32 {s(S_T0)}, {s(S_T0)}, {s(S_T1)}
        v_and_b32 v127, 3, v1
        v_lshlrev_b32 v127, 3, v127
        v_add_u32 v127, {s(S_T0)}, v127
        v_lshrrev_b32 v125, 2, v1
        v_cmp_eq_u32 vcc, 1, v125
        v_cndmask_b32 v126, v126, v127, vcc
        """)
    if o.get('mstat'): comb = comb[:6]
    if o.get('bp'):
        comb = comb[:6] + I(f"""
        s_lshl_b32 {s(S_T0)}, {s(S_T)}, 1
        s_lshr_b32 {s(S_T1)}, {s(S_WAVE)}, 1
        s_add_u32 {s(S_T0)}, {s(S_T0)}, {s(S_T1)}
        s_mul_i32 {s(S_T0)}, {s(S_T0)}, 3
        s_add_u32 {s(S_T0)}, {s(S_T0)}, {NA}
        v_and_b32 v127, 3, v1
        v_min_u32 v127, 2, v127
        v_add_u32 v127, {s(S_T0)}, v127
        v_lshrrev_b32 v125, 2, v1
        v_cmp_eq_u32 vcc, 1, v125
        v_cndmask_b32 v126, v126, v127, vcc
        """)
        if role == 'A':
            comb += I(f"""
            s_mul_i32 {s(S_T0)}, {s(S_ID)}, 1093
            s_lshr_b32 {s(S_T0)}, {s(S_T0)}, 16
            s_add_u32 {s(S_T0)}, {s(S_T0)}, {NA}
            v_and_b32 v127, 31, v1
            v_mul_u32_u24 v127, 3, v127
            v_add_u32 v127, {s(S_T0)}, v127
            v_cmp_lt_u32 vcc, 31, v1
            v_cndmask_b32 v126, v126, v127, vcc
            """)
    if o.get('bp2'):
        comb = I(f"""
        s_mul_i32 {s(S_T0)}, {s(S_CS)}, 12
        s_mul_i32 {s(S_T1)}, {s(S_WAVE)}, 3
        s_add_u32 {s(S_T0)}, {s(S_T0)}, {s(S_T1)}
        v_min_u32 v126, 2, v1
        v_add_u32 v126, {s(S_T0)}, v126
        s_lshl_b32 {s(S_T0)}, {s(S_T)}, 7
        s_lshl_b32 {s(S_T1)}, {s(S_WAVE)}, 5
        s_add_u32 {s(S_T0)}, {s(S_T0)}, {s(S_T1)}
        s_add_u32 {s(S_T1)}, {s(S_T0)}, 31
        s_mul_i32 {s(S_T0)}, {s(S_T0)}, 5042
        s_lshr_b32 {s(S_T0)}, {s(S_T0)}, 16
        s_mul_i32 {s(S_T1)}, {s(S_T1)}, 5042
        s_lshr_b32 {s(S_T1)}, {s(S_T1)}, 16
        v_and_b32 v127, 3, v1
        v_add_u32 v127, {s(S_T0)}, v127
        v_min_u32 v127, {s(S_T1)}, v127
        v_lshrrev_b32 v125, 2, v1
        v_cmp_eq_u32 vcc, 1, v125
        v_cndmask_b32 v126, v126, v127, vcc
        v_lshlrev_b32 v126, 6, v126
        v_add_u32 v126, {WS_FLAG_W}, v126
        """)
        if role == 'A':
            comb += I(f"""
            s_mul_i32 {s(S_T0)}, {s(S_ID)}, 1093
            s_lshr_b32 {s(S_T0)}, {s(S_T0)}, 16
            s_add_u32 {s(S_T0)}, {s(S_T0)}, {NA}
            v_and_b32 v127, 31, v1
            v_mul_u32_u24 v127, 3, v127
            v_add_u32 v127, {s(S_T0)}, v127
            v_lshlrev_b32 v127, 6, v127
            v_add_u32 v127, {WS_FLAG_P}, v127
            v_cmp_lt_u32 vcc, 31, v1
            v_cndmask_b32 v126, v126, v127, vcc
            """)
        comb += I(f'buffer_load_dword v127, v126, {s(SRD_WS,4)}, 0 offen sc1')
    elif o.get('bp'): pass
    elif role == 'A':
        comb += I(f"""
        s_mul_i32 {s(S_T0)}, {s(S_ID)}, 3277
        s_lshr_b32 {s(S_T0)}, {s(S_T0)}, 16
        s_lshl_b32 {s(S_T0)}, {s(S_T0)}, 3
        v_and_b32 v127, 3, v1
        v_lshlrev_b32 v127, 6, v127
        v_bfe_u32 v125, v1, 2, 3
        v_add_u32 v127, v127, v125
        v_add_u32 v127, {s(S_T0)}, v127
        v_cmp_lt_u32 vcc, 31, v1
        v_cndmask_b32 v126, v126, v127, vcc
        """)
    if not o.get('bp2'): comb += I(f"""
        v_lshlrev_b32 v126, 6, v126
        v_add_u32 v126, {WS_FLAG_P}, v126
        buffer_load_dword v127, v126, {s(SRD_WS,4)}, 0 offen sc1
        """)
    w2l = [g.w2_load(n, 139) for n in range(60)]
    k = 0
    stat_ld = I(f"""
        s_lshl_b32 {s(S_T0)}, {s(S_T)}, 7
        s_lshl_b32 {s(S_T1)}, {s(S_WAVE)}, 5
        s_add_u32 {s(S_T0)}, {s(S_T0)}, {s(S_T1)}
        v_and_b32 v126, 31, v1
        v_add_u32 v126, {s(S_T0)}, v126
        v_lshlrev_b32 v126, 3, v126
        v_add_u32 v126, {WS_STATS}, v126
        buffer_load_dwordx2 v[116:117], v126, {s(SRD_WS,4)}, 0 offen sc1
        """)
    if role == 'A':
        bg[5] = g.c_hload() + bg[5]
        pa = g.c_prep_addr()
        bg[5] += pa
        bg[7] = g.c_prep_regs() + bg[7]
    PC = int(o.get('pc') or min(PW + 3, 9))
    if o.get('bp') and role == 'A' and o.get('pfmall'): pass
    bg[PC - 1] += comb
    if o.get('x_w2early'):
        bg[6] += g.w2_setup(139)
        bg[PC] += g.poll(127, 126, 'p') + stat_ld
    else:
        bg[PC] += g.poll(127, 126, 'p') + g.w2_setup(139) + ([] if o.get('mstat') else stat_ld)
    if role == 'A':
        bg[PC] += g.c_xload()
        bg[7] += g.g2_setup()
        cw = g.c_write_copies()
        bg[9] += cw
        per = {9: 5} if PC < 9 else {}
    else:
        per = {9: 7} if PC < 9 else {}
    if o.get('x_w2early'):
        ne = int(o.get('x_w2early'))
        per = {7: ne, 8: ne, 9: ne}
    bg[PW + 1] = pflag + bg[PW + 1]
    for c in sorted(per):
        for _ in range(per[c]): bgv[c] += w2l[k]; k += 1
    if o.get('x_nobg') or o.get('x_g1only'):
        for c in range(10): bg[c] = []
        bgv[9] = []
        g.tail = []
    if o.get('x_nopk'):
        for c in (2, 3, 4): bg[c] = [i for i in bg[c] if i.kind in ('waitvm',) or i.tag == 'flag']
    if o.get('x_stop'):
        L += g.g1_main(bg, bgv) + ts('G1 main done') + [waitvmall()] + ts('end')
        L += I(f"""
        s_lshl_b32 {s(S_T0)}, {s(S_ID)}, 10
        s_lshl_b32 {s(S_T1)}, {s(S_WAVE)}, 8
        s_add_u32 {s(S_T0)}, {s(S_T0)}, {s(S_T1)}
        s_add_u32 {s(S_T0)}, {s(S_T0)}, {WS_TS}
        v_lshlrev_b32 v2, 2, v1
        buffer_store_dword v19, v2, {s(SRD_WS,4)}, {s(S_T0)} offen
        s_endpgm
        """)
        TSNAMES[role] = g.tsnames
        st = Stream(); st.ins = L
        return render(finalize(st)) + ''.join(g.tail) + f'Lend_{role}:\n    s_endpgm\n'
    L += g.g1_main(bg, bgv)
    L += ts('G1 main done')
    if o.get('mstat'): L += g.g1_stat_final()
    gflag = g.set_flag(WS_FLAG_G, f's_lshl_b32 {s(S_T0)}, {s(S_T)}, 4\ns_add_u32 {s(S_T0)}, {s(S_T0)}, {s(S_FS)}', 16, 17)
    hflag_idx = f's_lshr_b32 {s(S_T0)}, {s(S_T64)}, 1\ns_lshl_b32 {s(S_T0)}, {s(S_T0)}, 4\ns_lshl_b32 {s(S_T1)}, {s(S_WAVE)}, 2\ns_add_u32 {s(S_T0)}, {s(S_T0)}, {s(S_T1)}'
    if role == 'A':
        e_bg = []
        for _ in range(11): e_bg += w2l[k]; k += 1
        L += g.g1_epilogue(e_bg, g.c_xwrite())
        L += ts('G1 epilogue')
        cb = {q: [] for q in range(8)}
        cb[2] += [waitvm('hstore')] + I('s_barrier') + gflag
        rem = 60 - k
        qi = 0
        for j in range(rem):
            cb[j * 5 // rem] += w2l[k]; k += 1
        cb[4] = g.flag_load(WS_FLAG_G, hflag_idx, 'v_and_b32 v13, 3, v1', 13, 14) + cb[4]
        cb[5] += g.poll(14, 13, 'g1')
        NPRE = 20
        hp = [g.g2_hload(n) for n in range(NPRE)]
        cb[5] += hp[:6]; cb[6] += hp[6:13]; cb[7] += hp[13:]
        L += g.c_main(cb)
        L += ts('conv main')
        L += g.c_post()
        cflag = [waitvm('ystore')] + I('s_barrier') + g.set_flag(WS_FLAG_C, f's_mov_b32 {s(S_T0)}, {s(S_ID)}', 16, 17)
        first_unl = NPRE
    else:
        e_bg = []
        for _ in range(6): e_bg += w2l[k]; k += 1
        L += g.g1_epilogue(e_bg)
        L += ts('G1 epilogue')
        L += g.g2_setup()
        L += [waitvm('hstore')] + I('s_barrier') + gflag
        while k < 60: L += w2l[k]; k += 1
        L += g.flag_load(WS_FLAG_G, hflag_idx, 'v_and_b32 v13, 3, v1', 13, 14)
        L += g.poll(14, 13, 'g1')
        L += ts('G1 flags')
        L += [g.g2_hload(n) for n in range(38)]
        cflag = I('s_barrier')
        first_unl = 38
    L += ts('G2 start')
    mid = {}
    fl = g.f_loads()
    mid[3] = fl[:11]
    for j in range(4): mid[5 + 2*j] = [fl[11 + j]]
    for j in range(5): mid[13 + 2*j] = [fl[15 + j]]
    mid[23] = fl[20:]
    mid[10] = cflag
    mid[16] = I(f"""
        s_cmp_eq_u32 {s(S_ID)}, 0
        s_cselect_b32 {s(S_T4)}, {s(S_TAG)}, 0
        s_cselect_b32 {s(S_T5)}, 0, {OOB}
        s_lshl_b32 {s(S_T0)}, {s(S_WAVE)}, 6
        v_add_u32 v15, {s(S_T0)}, v1
        v_lshlrev_b32 v15, 6, v15
        v_add_u32 v15, {WS_FLAG_G if o.get('bp') else WS_FLAG_P}, v15
        v_or_b32 v15, {s(S_T5)}, v15
        buffer_load_dword v18, v15, {s(SRD_WS,4)}, 0 offen sc1
        """)
    mid[24] = g.poll(18, 15, 'tk', exp=S_T4)
    epoch_store = I(f"""
        v_mov_b32 v18, {OOB}
        v_mov_b32 v15, {s(S_T5)}
        v_cmp_eq_u32 vcc, 0, v0
        v_cndmask_b32 v15, v18, v15, vcc
        v_mov_b32 v18, {s(S_TAG)}
        buffer_store_dword v18, v15, {s(SRD_WS,4)}, 0 offen sc1
        """)
    mid[22] = g.flag_load(WS_FLAG_C, f's_mul_i32 {s(S_T0)}, {s(S_CS)}, 20', 'v_min_u32 v13, 19, v1', 13, 14)
    yl = g.f_yloads()
    mid[29] = g.poll(14, 13, 'y') + yl[:9]
    for j, n in enumerate(range(30, 35)): mid[n] = yl[9 + 7*j: 9 + 7*(j+1)]
    mid[35] = yl[9 + 35:]
    L += g.g2_main(first_unl, mid, [])
    L += epoch_store
    L += ts('F done')
    if o.get('ts'):
        L += [waitvmall()] + ts('end')
        L += I('s_memrealtime s[6:7]\ns_waitcnt lgkmcnt(0)\nv_writelane_b32 v19, s6, 63')
        L += I(f"""
        s_lshl_b32 {s(S_T0)}, {s(S_ID)}, 10
        s_lshl_b32 {s(S_T1)}, {s(S_WAVE)}, 8
        s_add_u32 {s(S_T0)}, {s(S_T0)}, {s(S_T1)}
        s_add_u32 {s(S_T0)}, {s(S_T0)}, {WS_TS}
        v_lshlrev_b32 v2, 2, v1
        buffer_store_dword v19, v2, {s(SRD_WS,4)}, {s(S_T0)} offen
        """)
        TSNAMES[role] = g.tsnames
    L += I('s_endpgm')
    st = Stream(); st.ins = L
    return render(finalize(st)) + ''.join(g.tail) + f'Lend_{role}:\n    s_endpgm\n'

HEADER = """; Kernarg layout (112 bytes, ptrs only): q k v shift_k ssm_k ssm_D B_x w1 b1 w2 b2 out debug ws
;   P  : LN statistics, kv = shortconv(k)*v transposed to [channel][token], w2 re-tiled into MFMA fragments   (hand-off through d_ws)
; Hand-offs: write-through (sc1) stores, vmcnt wait, barrier, flag word tagged with a per-launch value derived from the epoch word in d_ws.
; @launch grid=(256,1,1) block=(256,1,1) lds=163840
.amdgcn_target "amdgcn-amd-amdhsa--gfx950"
.text
.globl {n}_kernel
.p2align 8
.type {n}_kernel,@function
{n}_kernel:
"""
FOOTER = """
.section .rodata,"a"
.p2align 6
.amdhsa_kernel {n}_kernel
  .amdhsa_next_free_vgpr 512
  .amdhsa_next_free_sgpr 102
  .amdhsa_accum_offset 256
  .amdhsa_group_segment_fixed_size 0
  .amdhsa_kernarg_size 112
  .amdhsa_user_sgpr_count 2
  .amdhsa_user_sgpr_kernarg_segment_ptr 1
  .amdhsa_system_sgpr_workgroup_id_x 1
.end_amdhsa_kernel
"""
def build(o):
    global NT, OUTMOD
    OUTMOD = ' sc1' if o.get('outsc1') else (' nt' if o.get('outnt') else '')
    NT = ' nt' if o.get('nt') else ''
    txt = HEADER.format(n=NAME)
    txt += f"""    s_cmp_ge_u32 s2, 256
    s_cbranch_scc1 L_exit
    s_cmp_ge_u32 s2, {NA}
    s_cbranch_scc1 L_roleB
"""
    txt += build_role('A', o)
    txt += "L_exit:\n    s_endpgm\n.p2align 6\nL_roleB:\n"
    txt += build_role('B', o)
    txt += FOOTER.format(n=NAME)
    return txt

if __name__ == '__main__':
    o = {}
    for k in sys.argv[2:]:
        if '=' in k: a, b = k.split('='); o[a] = b
        else: o[k] = True
    out = sys.argv[1] if len(sys.argv) > 1 else 'k.s'
    open(out, 'w').write(build(o))
    if o.get('ts'): json.dump(TSNAMES, open(out + '.ts.json', 'w'))
    print("wrote", out)
```
